```python
import torch

def _softmax(x, axis=-1):
    return torch.softmax(x, dim=axis)

def _gelu(x):
    return torch.nn.functional.gelu(x, approximate='tanh')

def _silu(x):
    return torch.nn.functional.silu(x)

def _sigmoid(x):
    return torch.sigmoid(x)

def _layernorm(x, axis=-1, eps=1e-05):
    m = x.mean(dim=axis, keepdim=True)
    v = x.var(dim=axis, keepdim=True, unbiased=False)
    return (x - m) / torch.sqrt(v + eps)

def _scatter_add(tgt, idx, src, axis=0):
    return tgt.clone().index_add_(axis, idx, src)

def _segment_sum(src, seg, n):
    out = torch.zeros((n,) + src.shape[1:], dtype=src.dtype)
    return out.index_add_(0, seg, src)

def _pad(x, pw):
    flat = tuple((v for pair in reversed(pw) for v in pair))
    return torch.nn.functional.pad(x, flat)
kernel_name = 'adaLN_cond__sliding_local_dilated__glu_gated_glu__prompt'

def setup_inputs():

    _w = lambda a: (lambda t: t.to(torch.bfloat16) if t.is_floating_point() else t)(torch.as_tensor(a))

    def _A_setup():
        B, S, D = (1, 2048, 576)
        return {'x': _w((lambda *s: torch.randn(*s, dtype=torch.bfloat16) * 0.05)(B, S, D)), 'wqkv': _w((lambda *s: torch.randn(*s, dtype=torch.bfloat16) * 0.05)(D, 3 * D)), 'wo': _w((lambda *s: torch.randn(*s, dtype=torch.bfloat16) * 0.05)(D, D))}
    _A_in = _A_setup()

    def _B_setup():
        B, S, D, F = (1, 2048, 576, 4608)
        return {'x': _w((lambda *s: torch.randn(*s, dtype=torch.bfloat16) * 0.05)(B, S, D)), 'w_gate': _w((lambda *s: torch.randn(*s, dtype=torch.bfloat16) * 0.05)(D, F)), 'w_up': _w((lambda *s: torch.randn(*s, dtype=torch.bfloat16) * 0.05)(D, F)), 'w_down': _w((lambda *s: torch.randn(*s, dtype=torch.bfloat16) * 0.05)(F, D))}
    _B_in = _B_setup()
    return {'A_x': _A_in['x'], 'A_wqkv': _A_in['wqkv'], 'A_wo': _A_in['wo'], 'B_x': _B_in['x'], 'B_w_gate': _B_in['w_gate'], 'B_w_up': _B_in['w_up'], 'B_w_down': _B_in['w_down'], 'c': _w((lambda *s: torch.randn(*s, dtype=torch.bfloat16) * 0.1)(1, 576) * 8.0), 'w_mod': _w((lambda *s: torch.randn(*s, dtype=torch.bfloat16) * 0.1)(576, 6 * 576) * 576 ** (-0.5) * 8.0)}

def reference(A_x, A_wqkv, A_wo, B_x, B_w_gate, B_w_up, B_w_down, c, w_mod):

    def _A_ref(x, wqkv, wo):
        B, S, D = x.shape
        H = 32
        Dh = D // H
        W, dil = (8, 2)
        qkv = (lambda x, *d: x.permute(*d))((x @ wqkv).reshape(B, S, 3, H, Dh), 2, 0, 3, 1, 4)
        q, k, v = (qkv[0], qkv[1], qkv[2])
        scale = Dh ** (-0.5)
        pos = torch.arange(S)
        off = torch.arange(W) * dil
        idx = pos[:, None] - off[None, :]
        mask = idx >= 0
        idx_c = torch.where(mask, idx, 0).reshape(-1)
        kg = k[:, :, idx_c, :].reshape(B, H, S, W, Dh)
        vg = v[:, :, idx_c, :].reshape(B, H, S, W, Dh)
        logits = torch.einsum('bhsd,bhswd->bhsw', q, kg) * scale
        logits = torch.where(mask[None, None, :, :], logits, -1000000000.0)
        attn = _softmax(logits, axis=-1)
        o = torch.einsum('bhsw,bhswd->bhsd', attn, vg)
        return (lambda x, *d: x.permute(*d))(o, 0, 2, 1, 3).reshape(B, S, D) @ wo

    def _B_ref(x, w_gate, w_up, w_down):
        g = torch.einsum('bsd,df->bsf', x, w_gate)
        u = torch.einsum('bsd,df->bsf', x, w_up)
        h = _sigmoid(g) * u
        return torch.einsum('bsf,fd->bsd', h, w_down)
    x = A_x
    mod = (_silu(c) @ w_mod).reshape(c.shape[0], 6, 1, -1)
    sa, ca, ga, sb, cb, gb = (mod[:, 0].clone(), mod[:, 1].clone(), mod[:, 2].clone(), mod[:, 3].clone(), mod[:, 4].clone(), mod[:, 5].clone())
    h = _layernorm(x, axis=-1) * (1 + ca) + sa
    x = x + ga * _A_ref(h, A_wqkv, A_wo)
    h = _layernorm(x, axis=-1) * (1 + cb) + sb
    x = x + gb * _B_ref(h, B_w_gate, B_w_up, B_w_down)
    return x
```

```python
import re, copy
KNAME = "adaLN_cond__sliding_local_dilated__glu_gated_glu__prompt_kernel"

REG_RE = re.compile(r'^(-?)(?:abs\()?([vas])(?:\[(\d+):(\d+)\]|(\d+))\)?$')

def regs_of(tok):
    tok = tok.strip()
    neg = tok.lstrip('-').strip('|')
    if neg in ('vcc', 'vcc_lo', 'vcc_hi'): return [('s', 'vcc')]
    if neg in ('exec', 'exec_lo', 'exec_hi'): return [('s', 'exec')]
    if neg == 'm0': return [('s', 'm0')]
    m = REG_RE.match(tok)
    if not m: return []
    k = m.group(2)
    if m.group(3) is not None:
        return [(k, i) for i in range(int(m.group(3)), int(m.group(4)) + 1)]
    return [(k, int(m.group(5)))]

TRANS = ('v_exp_f32', 'v_log_f32', 'v_rcp_f32', 'v_rsq_f32', 'v_sqrt_f32', 'v_sin_f32', 'v_cos_f32', 'v_rcp_iflag_f32')

class Ins:
    __slots__ = ('text', 'op', 'dst', 'src', 'kind', 'ops', 'mods', 'nstates', 'srcC', 'srcAB', 'passes', 'sdata', 'vmem_addr_s', 'dpp', 'lds_dma')
    def __init__(self, text):
        self.text = text
        t = text.split(';')[0].strip()
        self.dst = []; self.src = []; self.kind = 'other'; self.nstates = 1
        self.srcC = []; self.srcAB = []; self.passes = 0; self.sdata = []; self.dpp = False; self.lds_dma = False
        self.ops = []; self.mods = ''
        if not t:
            self.op = ''; self.kind = 'pseudo'; self.nstates = 0; return
        if t.endswith(':'):
            self.op = t; self.kind = 'label'; self.nstates = 0; return
        if t.startswith('.'):
            self.op = t; self.kind = 'directive'; self.nstates = 0; return
        sp = t.split(None, 1)
        op = sp[0]; rest = sp[1] if len(sp) > 1 else ''
        base = re.sub(r'_(e32|e64|dpp|sdwa)$', '', op)
        self.op = base
        parts = []; depth = 0; cur = ''
        for ch in rest:
            if ch in '[(': depth += 1
            if ch in '])': depth -= 1
            if ch == ',' and depth == 0:
                parts.append(cur.strip()); cur = ''
            else: cur += ch
        if cur.strip(): parts.append(cur.strip())
        if parts:
            last = parts[-1].split(None, 1)
            parts[-1] = last[0]
            self.mods = last[1] if len(last) > 1 else ''
        self.ops = parts
        R = [regs_of(p) for p in parts]
        flat = lambda L: [r for x in L for r in x]
        self.dpp = op.endswith('_dpp') or 'row_' in self.mods or 'quad_perm' in self.mods
        if base.startswith('v_mfma'):
            self.kind = 'mfma'
            self.dst = R[0]; self.srcAB = R[1] + R[2]; self.srcC = R[3]; self.src = self.srcAB + self.srcC
            self.passes = 8 if '32x32x16' in base else 4 if '16x16x32' in base else None
            assert self.passes, text
        elif base.startswith('v_'):
            self.kind = 'trans' if base in TRANS else 'valu'
            if base.startswith('v_cmp'):
                self.dst = R[0]; self.src = flat(R[1:])
                assert not base.startswith('v_cmpx')
            elif base in ('v_permlane16_swap_b32', 'v_permlane32_swap_b32', 'v_swap_b32'):
                self.dst = R[0] + R[1]; self.src = R[0] + R[1]
            elif base in ('v_add_co_u32', 'v_sub_co_u32', 'v_subrev_co_u32', 'v_addc_co_u32', 'v_subb_co_u32', 'v_mad_u64_u32'):
                self.dst = R[0] + R[1]; self.src = flat(R[2:])
            elif base in ('v_fmac_f32', 'v_dot2c_f32_bf16', 'v_pk_fmac_f16', 'v_fmac_f32_dpp'):
                self.dst = R[0]; self.src = flat(R)
            elif base == 'v_nop':
                pass
            else:
                self.dst = R[0]; self.src = flat(R[1:])
                if self.dpp: self.src = flat(R)
            if base == 'v_cndmask_b32' and len(parts) == 3: self.src.append(('s', 'vcc'))
        elif base.startswith('ds_'):
            self.kind = 'ds'
            if base.startswith('ds_read') or base.startswith('ds_bpermute') or base.startswith('ds_permute') or base.startswith('ds_swizzle'):
                self.dst = R[0]; self.src = flat(R[1:])
            else:
                self.src = flat(R); self.sdata = flat(R[1:])
        elif base.startswith('buffer_') or base.startswith('global_'):
            self.kind = 'vmem'
            words = (self.mods + ' ').split()
            if base in ('buffer_wbl2', 'buffer_inv'):
                pass
            elif 'lds' in words or '_lds_' in base:
                self.lds_dma = True; self.src = flat(R) + [('s', 'm0')]
            elif '_load' in base:
                self.dst = R[0]; self.src = flat(R[1:])
                if 'd16' in base: self.src = flat(R)
            elif '_store' in base:
                self.src = flat(R)
                self.sdata = R[0] if base.startswith('buffer_') else R[1]
            elif 'atomic' in base:
                if base.startswith('buffer_'):
                    self.src = flat(R); self.sdata = R[0]
                    if 'sc0' in words: self.dst = R[0]
                else:
                    if 'sc0' in words: self.dst = R[0]; self.src = flat(R[1:])
                    else: self.src = flat(R)
            else:
                raise ValueError(text)
        elif base.startswith('s_load') or base.startswith('s_buffer_load') or base in ('s_memtime', 's_memrealtime'):
            self.kind = 'smem'; self.dst = R[0]; self.src = flat(R[1:])
        elif base == 's_nop':
            self.kind = 'nop'; self.nstates = int(parts[0], 0) + 1
        elif base == 's_waitcnt':
            self.kind = 'wait'
        elif base.startswith('s_cbranch') or base == 's_branch':
            self.kind = 'branch'
            if 'vcc' in base: self.src = [('s', 'vcc')]
            if 'exec' in base: self.src = [('s', 'exec')]
        elif base in ('s_barrier', 's_endpgm', 's_sleep', 's_setprio'):
            self.kind = 'misc'
        elif base.startswith('s_cmp') or base.startswith('s_bitcmp'):
            self.kind = 'salu'; self.src = flat(R)
        elif base.startswith('s_'):
            self.kind = 'salu'
            self.dst = list(R[0]) if R else []; self.src = flat(R[1:])
            if 'saveexec' in base: self.dst = self.dst + [('s', 'exec')]; self.src.append(('s', 'exec'))
            if base in ('s_addk_i32', 's_mulk_i32', 's_cmov_b32'): self.src += R[0]
        else:
            raise ValueError("unknown instruction: " + text)

def ov(a, b):
    return not set(a).isdisjoint(b)

def need(p, c):
    n = 0
    pv = p.kind in ('valu', 'trans')
    cv = c.kind in ('valu', 'trans')
    if pv:
        vd = [r for r in p.dst if r[0] in 'va']
        sd = [r for r in p.dst if r[0] == 's']
        if vd:
            if c.kind == 'mfma' and ov(vd, c.src): n = max(n, 2)
            if c.op in ('v_readlane_b32', 'v_readfirstlane_b32') and ov(vd, c.src): n = max(n, 1)
            if cv and c.dpp and ov(vd, c.src): n = max(n, 2)
            if c.op.startswith('v_permlane') and ov(vd, c.src): n = max(n, 2)
            if p.kind == 'trans' and c.kind == 'valu' and ov(vd, c.src): n = max(n, 1)
            if p.kind == 'trans' and c.kind in ('ds', 'vmem') and ov(vd, c.src): n = max(n, 1)
            if 'op_sel' in p.mods and not p.op.startswith('v_pk') and cv and ov(vd, c.src + c.dst): n = max(n, 1)
        if sd:
            if cv and ov(sd, c.src):
                n = max(n, 4 if c.op in ('v_readlane_b32', 'v_writelane_b32') else 2)
            if c.kind == 'vmem' and ov(sd, c.src): n = max(n, 5)
            if c.kind in ('salu', 'smem', 'branch') and ov(sd, c.src): n = max(n, 3)
    if p.op.startswith('v_dot'):
        if c.op != p.op:
            if ov(p.dst, c.src + c.dst): n = max(n, 3)
        else:
            ab = regs_of(c.ops[1]) + regs_of(c.ops[2])
            if ov(p.dst, ab): n = max(n, 3)
    if p.kind == 'mfma':
        P = p.passes
        if c.kind == 'mfma':
            if ov(p.dst, c.srcAB): n = max(n, {4: 8, 8: 12}[P])
            if ov(p.dst, c.srcC) and not (p.dst == c.srcC and P == c.passes): n = max(n, {4: 6, 8: 10}[P])
            if ov(p.dst, c.dst) and not ov(p.dst, c.srcC): n = max(n, {4: 8, 8: 12}[P])
        elif cv:
            if ov(p.dst, c.src + c.dst): n = max(n, {4: 8, 8: 12}[P])
            if ov(p.srcC, c.dst): n = max(n, {4: 3, 8: 7}[P])
        elif c.kind in ('ds', 'vmem'):
            if ov(p.dst, c.src + c.dst): n = max(n, {4: 8, 8: 12}[P])
    if p.kind == 'salu' and ('s', 'm0') in p.dst and c.lds_dma: n = max(n, 1)
    if p.kind == 'salu' and ('s', 'exec') in p.dst and (c.dpp or c.kind == 'mfma' or c.op.startswith('v_permlane')): n = max(n, 1)
    if p.kind in ('vmem', 'ds') and len(p.sdata) >= 3 and ov(p.sdata, c.dst):
        n = max(n, 2)
    return n

class State:
    def __init__(self):
        self.recent = []
        self.vm = []
        self.lg = []
    def clone(self):
        s = State(); s.recent = list(self.recent); s.vm = list(self.vm); s.lg = list(self.lg); return s

class Asm:
    def __init__(self, check=True):
        self.ins = []
        self.uid = 0
        self.check = check
    def __call__(self, s):
        for l in s.split("\n"):
            l = l.strip()
            if l: self.ins.append(l)
    def label(self, base):
        self.uid += 1
        return f"{base}_{self.uid}"
    def finish(self):
        out = []; st = State(); saved = {}; nnop = 0
        errs = []
        for li, l in enumerate(self.ins):
            if l.startswith(';@'):
                w = l[2:].split()
                if w[0] == 'fork': saved[w[1]] = st.clone()
                elif w[0] == 'restore':
                    saved[w[1] + '_end'] = st.clone(); st = saved[w[1]].clone()
                elif w[0] == 'join':
                    o = saved[w[1] + '_end']
                    if len(o.vm) != len(st.vm) or len(o.lg) != len(st.lg):
                        errs.append(f"join {w[1]}: counters differ vm {len(o.vm)} vs {len(st.vm)} lg {len(o.lg)} vs {len(st.lg)}")
                    n = min(len(o.vm), len(st.vm))
                    st.vm = [(a[0], a[1] + b[1]) for a, b in zip(o.vm[len(o.vm)-n:], st.vm[len(st.vm)-n:])]
                    n = min(len(o.lg), len(st.lg))
                    st.lg = [(a[0], a[1] + b[1]) for a, b in zip(o.lg[len(o.lg)-n:], st.lg[len(st.lg)-n:])]
                    st.recent = st.recent + o.recent
                elif w[0] == 'drained':
                    if st.vm or st.lg: errs.append(f"{l}: outstanding vm {len(st.vm)} lg {len(st.lg)}")
                elif w[0] == 'assume_drained':
                    st.vm = []; st.lg = []
                continue
            c = Ins(l)
            if c.kind in ('pseudo', 'label', 'directive'):
                out.append(l); continue
            req = 0
            for p, d in st.recent:
                k = need(p, c) - d
                if k > req: req = k
            if req > 0:
                nnop += 1
                out.append(f"s_nop {req-1}")
                st.recent = [(p, d + req) for p, d in st.recent]
            touched = set(c.src) | set(c.dst)
            if self.check:
                for q, nm in ((st.vm, 'vm'), (st.lg, 'lg')):
                    for t, regs in q:
                        if regs and not touched.isdisjoint(regs):
                            if nm == 'vm' and c.kind == 'vmem' and touched.isdisjoint(set(regs) - set(c.dst)) and set(c.src).isdisjoint(regs):
                                continue
                            if nm == 'lg' and c.kind == 'ds' and not t.startswith('s_') and set(c.src).isdisjoint(regs):
                                continue
                            errs.append(f"line {li}: '{l}' touches registers of pending {nm} op '{t}'")
            if c.kind == 'vmem': st.vm.append((l, list(c.dst)))
            elif c.kind == 'ds': st.lg.append((l, list(c.dst)))
            elif c.kind == 'smem': st.lg.append((l, list(c.dst)))
            elif c.kind == 'wait':
                m = re.search(r'vmcnt\((\d+)\)', l)
                if m:
                    n = int(m.group(1)); assert n <= 63, l
                    while len(st.vm) > n: st.vm.pop(0)
                m = re.search(r'lgkmcnt\((\d+)\)', l)
                if m:
                    n = int(m.group(1)); assert n <= 15, l
                    if n > 0 and any(t.startswith('s_') for t, _ in st.lg):
                        errs.append(f"line {li}: counted lgkmcnt with SMEM outstanding")
                    while len(st.lg) > n: st.lg.pop(0)
            out.append(l)
            st.recent = [(p, d + c.nstates) for p, d in st.recent if d + c.nstates < 20]
            st.recent.append((c, 0))
        if errs:
            raise RuntimeError("checker:\n" + "\n".join(errs[:30]))
        self.nnop = nnop
        return "\n".join(("" if x.endswith(":") else "    ") + x for x in out) + "\n"

def file_text(header, kernels):
    out = header
    if len(kernels) == 1 and kernels[0]['name'] == KNAME:
        k = kernels[0]
        out += f"; @launch grid=({k['grid']},1,1) block=({k['block']},1,1) lds={k['lds']}\n"
    else:
        for k in kernels:
            out += f"; @launch kernel={k['name']} grid=({k['grid']},1,1) block=({k['block']},1,1) lds={k['lds']}\n"
    out += '.amdgcn_target "amdgcn-amd-amdhsa--gfx950"\n.text\n'
    seen = set(); descs = ""
    for k in kernels:
        if k['name'] in seen: continue
        seen.add(k['name'])
        name = k['name']
        acc = (k['vgpr'] + 3) // 4 * 4
        nfv = acc + k['agpr'] if k['agpr'] else k['vgpr']
        out += f".globl {name}\n.p2align 8\n.type {name},@function\n{name}:\n{k['body']}"
        descs += f""".section .rodata,"a"
.p2align 6
.amdhsa_kernel {name}
  .amdhsa_next_free_vgpr {nfv}
  .amdhsa_next_free_sgpr {k.get('sgpr', 102)}
  .amdhsa_accum_offset {acc}
  .amdhsa_group_segment_fixed_size 0
  .amdhsa_kernarg_size 96
  .amdhsa_user_sgpr_count 2
  .amdhsa_user_sgpr_kernarg_segment_ptr 1
  .amdhsa_system_sgpr_workgroup_id_x 1
  .amdhsa_float_denorm_mode_32 3
.end_amdhsa_kernel
"""
    return out + descs
```

```python
from asm2 import *
S, D, F = 2048, 576, 4608
WO_SW  = 0
WGU_SW = 0x100000
WD_SW  = 0xC00000
MOD    = 0x1200000
O_X    = 0x1300000
X1     = 0x1600000
PART   = 0x1900000
FLAGS  = 0x2C00000
STAMPS = 0x3000000
WS_BYTES = 268435456
LOG2E = 1.4426950408889634

import struct
def fbits(x):
    return "0x%08x" % struct.unpack("<I", struct.pack("<f", x))[0]

SX, SQKV, SWO, SWG, SWU, SWD, SC, SMOD, SOUT, SWS = [f"s[{28+4*i}:{31+4*i}]" for i in range(10)]
sW = "s68"
sI = "s69"
sJ = "s70"
sB = "s2"
vL, vN, vQ = "v1", "v2", "v3"

def vr(b, n=4): return f"v[{b}:{b+n-1}]" if n > 1 else f"v{b}"
def ar(b, n=4): return f"a[{b}:{b+n-1}]" if n > 1 else f"a{b}"

def prologue(a, end_label, grid=256):
    a(f"""
    s_cmp_ge_u32 s2, {grid}
    s_cbranch_scc1 {end_label}
    s_load_dwordx16 s[4:19], s[0:1], 0
    s_load_dwordx8 s[20:27], s[0:1], 64
    v_lshrrev_b32 v4, 6, v0
    v_and_b32 {vL}, 63, v0
    v_readfirstlane_b32 {sW}, v4
    v_and_b32 {vN}, 15, {vL}
    v_lshrrev_b32 {vQ}, 4, {vL}
    s_waitcnt lgkmcnt(0)
    """)
    srcs = [(4, S*D*2), (6, D*3*D*2), (8, D*D*2), (12, D*F*2), (14, D*F*2), (16, F*D*2), (18, D*2), (20, D*6*D*2), (22, S*D*2), (26, WS_BYTES)]
    for i, (p, n) in enumerate(srcs):
        b = 28 + 4*i
        a(f"s_mov_b32 s{b}, s{p}\ns_mov_b32 s{b+1}, s{p+1}\ns_mov_b32 s{b+2}, {n}\ns_mov_b32 s{b+3}, 0x20000")

def map_F(a):
    a(f"s_and_b32 {sJ}, {sB}, 7\ns_lshr_b32 {sI}, {sB}, 3")

def map_M(a):
    a(f"""s_and_b32 {sI}, {sB}, 7
    s_lshl_b32 {sI}, {sI}, 2
    s_lshr_b32 s4, {sB}, 6
    s_add_u32 {sI}, {sI}, s4
    s_lshr_b32 {sJ}, {sB}, 3
    s_and_b32 {sJ}, {sJ}, 7""")

def swz_g(a, dst, row, t0):
    a(f"""v_lshrrev_b32 {t0}, 1, {row}
    v_xor_b32 {dst}, {t0}, {row}
    v_lshrrev_b32 {dst}, 2, {dst}
    v_and_b32 {dst}, 1, {dst}
    v_and_b32 {t0}, 1, {t0}
    v_lshl_or_b32 {dst}, {dst}, 1, {t0}""")

def stamp(a, idx, enable):
    if not enable: return
    a(f"""s_memrealtime s[96:97]
    s_waitcnt lgkmcnt(0)
    v_writelane_b32 v0, s96, {idx}""")

def stamp_flush(a, lo, hi, enable, extra=()):
    if not enable: return
    a(f"""s_waitcnt vmcnt(0)
    s_lshl_b32 s98, s2, 2
    s_add_u32 s98, s98, {sW}
    s_lshl_b32 s98, s98, 8
    s_add_u32 s98, s98, {STAMPS}
    v_lshlrev_b32 v4, 2, {vL}
    s_mov_b32 exec_lo, {(((1 << hi) - 1) & ~((1 << lo) - 1)) | sum(1 << e for e in extra)}
    s_mov_b32 exec_hi, 0
    buffer_store_dword v0, v4, {SWS}, s98 offen
    s_mov_b64 exec, -1""")

class Vm:
    def __init__(self, a):
        self.a = a; self.q = []
    def issue(self, text, tag=None):
        self.a(text); self.q.append(tag)
    def wait(self, *tags):
        idx = max((i for i, t in enumerate(self.q) if t in tags), default=-1)
        if idx < 0: return
        n = len(self.q) - 1 - idx
        self.a(f"s_waitcnt vmcnt({n})")
        self.q = self.q[idx+1:]
    def drain(self):
        self.a("s_waitcnt vmcnt(0)"); self.q = []
```

```python
from gen_common import *

def tr_addr(a, dst, rowexpr_reg, t0, t1):
    swz_g(a, t0, rowexpr_reg, t1)
    a(f"""v_lshlrev_b32 {t0}, 5, {t0}
    v_lshl_or_b32 {dst}, {rowexpr_reg}, 7, {t0}
    v_and_b32 {t1}, 3, {vN}
    v_lshl_or_b32 {dst}, {t1}, 3, {dst}""")

def dma_chunk(a, dst, odd, t0, t1):
    a(f"v_lshrrev_b32 {t0}, 3, {vL}")
    if odd: a(f"v_or_b32 {t0}, 8, {t0}")
    swz_g(a, dst, t0, t1)
    a(f"""v_lshlrev_b32 {dst}, 1, {dst}
    v_and_b32 {t1}, 7, {vL}
    v_xor_b32 {dst}, {dst}, {t1}""")

ZW = 17408

def unit_decode(a, it):
    a(f"""s_lshl_b32 s10, {sI}, 2
    s_add_u32 s10, s10, {sW}
    s_add_u32 s10, s10, {128*it}
    s_mul_i32 s11, s10, 405
    s_lshr_b32 s11, s11, 16
    s_mul_i32 s4, s11, 162
    s_sub_u32 s4, s10, s4
    s_mul_i32 s12, s4, 57
    s_lshr_b32 s12, s12, 9
    s_mul_i32 s5, s12, 9
    s_sub_u32 s13, s4, s5
    s_cmp_eq_u32 s11, 1
    s_cselect_b32 s72, s44, s40
    s_cselect_b32 s73, s45, s41
    s_cmp_eq_u32 s11, 2
    s_cselect_b32 s72, s48, s72
    s_cselect_b32 s73, s49, s73
    s_mov_b32 s74, {D*F*2}
    s_mov_b32 s75, 0x20000
    s_movk_i32 s14, 9216
    s_cselect_b32 s14, 1152, s14
    s_mul_i32 s4, s12, {32*9216}
    s_mul_i32 s5, {sJ}, 1152
    s_add_u32 s4, s4, s5
    s_mul_i32 s5, {sJ}, {576*1152}
    s_mul_i32 s6, s12, {32*1152}
    s_add_u32 s5, s5, s6
    s_cmp_eq_u32 s11, 2
    s_cselect_b32 s15, s5, s4
    s_lshl_b32 s4, s13, 7
    s_add_u32 s15, s15, s4
    s_mul_i32 s4, {sJ}, 36
    s_lshl_b32 s5, s13, 2
    s_add_u32 s4, s4, s5
    s_mul_i32 s4, s4, 18
    s_add_u32 s4, s4, s12
    s_lshl_b32 s5, s4, 11
    s_lshl_b32 s6, s11, 10
    s_add_u32 s5, s5, s6
    s_add_u32 s5, s5, {WGU_SW}
    s_lshl_b32 s4, s4, 10
    s_add_u32 s4, s4, {WD_SW}
    s_cmp_eq_u32 s11, 2
    s_cselect_b32 s16, s4, s5
    s_mov_b32 s17, 36864
    s_cselect_b32 s17, 18432, s17""")

def k0(stamps=False):
    a = Asm()
    prologue(a, "L_k0_end")
    map_F(a)
    stamp(a, 0, stamps)
    dma_chunk(a, "v8", 0, "v4", "v5"); dma_chunk(a, "v9", 1, "v4", "v5")
    a(f"""v_lshlrev_b32 v8, 4, v8
    v_lshlrev_b32 v9, 4, v9
    v_lshrrev_b32 v10, 3, {vL}
    v_lshlrev_b32 v11, 4, {vL}
    s_mul_i32 s76, {sW}, {ZW}
    v_lshrrev_b32 v6, 2, {vN}""")
    a(f"v_lshl_add_u32 v7, {vQ}, 3, v6"); tr_addr(a, "v12", "v7", "v4", "v5")
    a(f"v_add_u32 v7, 4, v7"); tr_addr(a, "v13", "v7", "v4", "v5")
    a(f"v_lshl_add_u32 v7, {vQ}, 2, v6"); tr_addr(a, "v14", "v7", "v4", "v5")
    a(f"v_add_u32 v7, 16, v7"); tr_addr(a, "v15", "v7", "v4", "v5")
    for r in (12, 13, 14, 15): a(f"v_add_u32 v{r}, s76, v{r}")
    a(f"""s_cmp_lt_u32 {sB}, 54
    s_cbranch_scc0 L_k0_nomod1
    s_mul_i32 s4, {sW}, 144
    v_add_u32 v16, s4, v10
    v_lshlrev_b32 v17, 1, v16
    s_movk_i32 s5, 6912
    v_mul_lo_u32 v16, v16, s5
    v_and_b32 v4, 7, {vL}
    v_lshl_add_u32 v16, v4, 4, v16
    s_lshl_b32 s5, {sB}, 7
    v_add_u32 v16, s5, v16""")
    for t in range(18):
        a(f"buffer_load_ushort v{40+t}, v17, {SC}, 0 offen offset:{16*t}")
    for t in range(18):
        a(f"s_mov_b32 s4, {55296*t}\nbuffer_load_dwordx4 {vr(64+4*t)}, v16, {SMOD}, s4 offen")
    a("L_k0_nomod1:")
    for it in range(4):
        if it == 3:
            a(f"""s_lshl_b32 s10, {sI}, 2
            s_add_u32 s10, s10, {sW}
            s_cmp_lt_u32 s10, 102
            s_cbranch_scc0 L_k0_wo_dma""")
        unit_decode(a, it)
        a(f"""v_mul_lo_u32 v18, v10, s14
        v_add_u32 v19, v18, v9
        v_add_u32 v18, v18, v8
        s_lshl_b32 s18, s14, 3""")
        for ii in range(4):
            a(f"s_add_u32 m0, s76, {it*4096 + ii*1024}")
            a(f"buffer_load_dwordx4 v{18 + (ii&1)}, s[72:75], s15 offen lds")
            if ii < 3: a("s_add_u32 s15, s15, s18")
        a(f"s_mov_b32 s{80+3*it}, s16\ns_mov_b32 s{81+3*it}, s17\ns_mov_b32 s{82+3*it}, s11")
    a(f"""s_branch L_k0_dma_done
    L_k0_wo_dma:
    s_cmp_lt_u32 s10, 120
    s_cbranch_scc0 L_k0_dma_done
    s_sub_u32 s12, s10, 102
    s_mul_i32 s15, s12, {32*1152}
    s_mul_i32 s4, {sJ}, 144
    s_add_u32 s15, s15, s4
    s_movk_i32 s14, 1152
    v_mul_lo_u32 v18, v10, s14
    v_add_u32 v19, v18, v9
    v_add_u32 v18, v18, v8
    v_mul_lo_u32 v20, {vL}, s14
    v_add_u32 v20, 128, v20
    v_mov_b32 v4, 0x7ffffff0
    v_cmp_gt_u32 vcc, 32, {vL}
    v_cndmask_b32 v20, v4, v20, vcc
    s_add_u32 m0, s76, {3*4096 + 4096}
    buffer_load_dwordx4 v20, {SWO}, s15 offen lds""")
    for ii in range(4):
        a(f"s_add_u32 m0, s76, {3*4096 + ii*1024}")
        a(f"buffer_load_dwordx4 v{18 + (ii&1)}, {SWO}, s15 offen lds")
        if ii < 3: a(f"s_add_u32 s15, s15, {8*1152}")
    a("L_k0_dma_done:")
    a(f""";@assume_drained
    s_waitcnt vmcnt(0)
    s_cmp_lt_u32 {sB}, 54
    s_cbranch_scc0 L_k0_nomod2""")
    stamp(a, 1, stamps)
    a(f"v_mov_b32 v22, {fbits(-LOG2E)}")
    for t in range(18):
        r = 40 + t
        a(f"""v_lshlrev_b32 v{r}, 16, v{r}
        v_mul_f32 v4, v22, v{r}
        v_exp_f32 v4, v4
        v_add_f32 v4, 1.0, v4
        v_rcp_f32 v4, v4
        v_mul_f32 v4, v4, v{r}
        v_cvt_pk_bf16_f32 v4, v4, v4
        v_lshlrev_b32 v{r}, 16, v4""")
    for e in range(8): a(f"v_mov_b32 v{24+e}, 0")
    for t in range(18):
        for d in range(4):
            w = 64 + 4*t + d
            a(f"""v_lshlrev_b32 v4, 16, v{w}
            v_and_b32 v5, 0xffff0000, v{w}
            v_fmac_f32 v{24+2*d}, v4, v{40+t}
            v_fmac_f32 v{25+2*d}, v5, v{40+t}""")
    for e in range(8):
        a(f"v_add_f32_dpp v{24+e}, v{24+e}, v{24+e} row_ror:8 row_mask:0xf bank_mask:0xf")
    for op in ("v_permlane16_swap_b32", "v_permlane32_swap_b32"):
        for e in range(8): a(f"v_mov_b32 v{32+e}, v{24+e}")
        for e in range(8): a(f"{op} v{24+e}, v{32+e}")
        for e in range(8): a(f"v_add_f32 v{24+e}, v{24+e}, v{32+e}")
    MZ = 4*ZW
    a(f"""v_and_b32 v4, 7, {vL}
    v_lshlrev_b32 v4, 5, v4
    s_lshl_b32 s4, {sW}, 8
    s_add_u32 s4, s4, {MZ}
    v_add_u32 v4, s4, v4
    ds_write_b128 v4, v[24:27]
    ds_write_b128 v4, v[28:31] offset:16
    s_waitcnt lgkmcnt(0)
    s_barrier
    s_cmp_eq_u32 {sW}, 0
    s_cbranch_scc0 L_k0_nomod2
    v_lshlrev_b32 v4, 2, {vL}
    v_add_u32 v5, {MZ}, v4
    ds_read_b32 v24, v5
    ds_read_b32 v25, v5 offset:256
    ds_read_b32 v26, v5 offset:512
    ds_read_b32 v27, v5 offset:768
    s_waitcnt lgkmcnt(0)
    v_add_f32 v24, v24, v25
    v_add_f32 v26, v26, v27
    v_add_f32 v24, v24, v26
    v_cvt_pk_bf16_f32 v24, v24, v24
    v_lshlrev_b32 v24, 16, v24
    v_add_f32 v25, 1.0, v24
    v_cvt_pk_bf16_f32 v25, v25, v25
    v_lshlrev_b32 v25, 16, v25
    s_mul_i32 s4, {sB}, 57
    s_lshr_b32 s4, s4, 9
    s_cmp_eq_u32 s4, 1
    s_cselect_b32 s5, 1, 0
    s_cmp_eq_u32 s4, 4
    s_cselect_b32 s5, 1, s5
    s_cmp_eq_u32 s5, 1
    s_cselect_b64 vcc, -1, 0
    v_cndmask_b32 v24, v24, v25, vcc
    s_lshl_b32 s4, {sB}, 8
    s_add_u32 s4, s4, {MOD}
    buffer_store_dword v24, v4, {SWS}, s4 offen
    L_k0_nomod2:""")
    stamp(a, 2, stamps)
    for it in range(4):
        if it == 3:
            a(f"""s_lshl_b32 s10, {sI}, 2
            s_add_u32 s10, s10, {sW}
            s_cmp_lt_u32 s10, 102
            s_cbranch_scc0 L_k0_wo_tr""")
        a(f"""s_cmp_eq_u32 s{82+3*it}, 2
        s_cselect_b64 vcc, -1, 0
        v_cndmask_b32 v16, v12, v14, vcc
        v_cndmask_b32 v17, v13, v15, vcc
        s_mov_b32 s4, s{80+3*it}""")
        for tau in range(4):
            if tau:
                a(f"v_xor_b32 v18, {32*tau}, v16\nv_xor_b32 v19, {32*tau}, v17")
            x, y = ("v18", "v19") if tau else ("v16", "v17")
            b = 64 + 16*it + 4*tau
            a(f"ds_read_b64_tr_b16 {vr(b,2)}, {x} offset:{it*4096}\nds_read_b64_tr_b16 {vr(b+2,2)}, {y} offset:{it*4096}")
        for tau in range(4):
            b = 64 + 16*it + 4*tau
            a(f"s_waitcnt lgkmcnt({2*(3-tau)})")
            a(f"buffer_store_dwordx4 {vr(b)}, v11, {SWS}, s4 offen")
            if tau < 3: a(f"s_add_u32 s4, s4, s{81+3*it}")
    a(f"""s_branch L_k0_out
    L_k0_wo_tr:
    s_cmp_lt_u32 s10, 120
    s_cbranch_scc0 L_k0_out""")
    a(f"v_lshrrev_b32 v6, 2, {vN}\nv_lshl_add_u32 v7, {vQ}, 3, v6")
    for hf in range(2):
        if hf: a("v_add_u32 v7, 4, v7")
        swz_g(a, "v4", "v7", "v5")
        a(f"""v_lshlrev_b32 v4, 1, v4
        v_and_b32 v5, 3, {vN}
        v_xor_b32 v4, v4, v5
        v_lshlrev_b32 v4, 4, v4
        v_lshl_or_b32 v4, v7, 7, v4
        v_add_u32 v{16+hf}, s76, v4
        v_xor_b32 v{18+hf}, 64, v{16+hf}
        v_and_b32 v5, 1, v5
        v_lshlrev_b32 v5, 3, v5
        v_lshl_or_b32 v5, v7, 4, v5
        v_add_u32 v{20+hf}, s76, v5""")
    Z = 3*4096
    for t in range(4):
        x, y = (16, 17) if t < 2 else (18, 19)
        a(f"ds_read_b64_tr_b16 {vr(112+4*t,2)}, v{x} offset:{Z + 8*(t&1)}\nds_read_b64_tr_b16 {vr(114+4*t,2)}, v{y} offset:{Z + 8*(t&1)}")
    a(f"ds_read_b64_tr_b16 {vr(128,2)}, v20 offset:{Z+4096}\nds_read_b64_tr_b16 {vr(130,2)}, v21 offset:{Z+4096}")
    a(f"""s_sub_u32 s12, s10, 102
    s_mul_i32 s4, {sJ}, 90
    s_add_u32 s4, s4, s12
    s_lshl_b32 s4, s4, 10
    s_add_u32 s4, s4, {WO_SW}
    s_waitcnt lgkmcnt(0)""")
    for t in range(5):
        a(f"buffer_store_dwordx4 {vr(112+4*t)}, v11, {SWS}, s4 offen")
        if t < 4: a("s_add_u32 s4, s4, 18432")
    a("L_k0_out:")
    a(";@assume_drained")
    if stamps: a("s_waitcnt vmcnt(0)")
    stamp(a, 3, stamps)
    stamp_flush(a, 0, 4, stamps)
    a("L_k0_end:\ns_endpgm")
    return dict(name="k0_kernel", body=a.finish(), vgpr=256, agpr=0, sgpr=102, grid=256, block=256, lds=4*ZW + 1024)
```

```python
from gen_common import *
from gen_k0 import tr_addr, dma_chunk

HRT = 18432
STG = 20480
MV  = 157696
KB, VB, QB, OB = 0, 15360, 40960, 53248
TILES = [[0, 1, 9, 10], [2, 3, 11, 12], [4, 5, 6], [7, 8, 13]]
sMSK = "s90"

def wfrag(tau, s):
    i = tau*18 + s
    return ar(4*i) if i < 64 else vr(224 + 4*(i-64))
def halo(s):
    return 24 + 4*s if s < 10 else 224 + 4*(s-10)

def chunk_off16(T, h):
    cc8 = 2*T + h
    if cc8 >= 27: return 0xFF
    seg, r = divmod(cc8, 9)
    return [72, 144, 0][seg] + r

def ln_masks(a):
    a(f"""v_and_b32 v4, 3, {vN}
    v_cmp_eq_u32 s[76:77], 1, v4
    v_cmp_eq_u32 s[78:79], 2, v4
    v_cmp_eq_u32 s[80:81], 3, v4
    v_lshrrev_b32 v4, 2, {vN}
    v_cmp_eq_u32 s[82:83], v4, {vQ}
    s_mov_b32 {sMSK}, 0xffff0000""")

def ln_stats_mfma(a, raw, ones, acc):
    for s in range(18):
        r = vr(raw(s))
        a(f"v_mfma_f32_16x16x32_bf16 {vr(acc)}, {vr(ones)}, {r}, {vr(acc) if s else 0}")
        a(f"v_mfma_f32_16x16x32_bf16 {vr(acc+4)}, {r}, {r}, {vr(acc+4) if s else 0}")

def bfround(a, x):
    a(f"v_cvt_pk_bf16_f32 {x}, {x}, {x}\nv_and_b32 {x}, {sMSK}, {x}")

def ln_scalars(a, acc, out):
    a(f"""v_cndmask_b32 v4, v{acc+4}, v{acc+5}, s[76:77]
    v_cndmask_b32 v4, v4, v{acc+6}, s[78:79]
    v_cndmask_b32 v4, v4, v{acc+7}, s[80:81]
    v_cndmask_b32 v4, 0, v4, s[82:83]
    v_mov_b32 v5, v4
    v_permlane16_swap_b32 v4, v5
    v_add_f32 v4, v4, v5
    v_mov_b32 v5, v4
    v_permlane32_swap_b32 v4, v5
    v_add_f32 v4, v4, v5
    v_mul_f32 v5, {fbits(1.0/576)}, v{acc}
    v_mul_f32 v4, {fbits(1.0/576)}, v4
    v_fma_f32 v4, -v5, v5, v4
    v_max_f32 v4, 0, v4""")
    bfround(a, "v5"); bfround(a, "v4")
    a(f"v_add_f32 v4, {fbits(1e-5)}, v4"); bfround(a, "v4")
    a("v_sqrt_f32 v4, v4"); bfround(a, "v4")
    a(f"""v_rcp_f32 v{out}, v4
    v_mov_b32 v{out+1}, v{out}
    v_mul_f32 v{out+2}, -v5, v{out}
    v_mov_b32 v{out+3}, v{out+2}""")

def p1_setup(a):
    tabs = []
    for w in range(4):
        e = []
        for T in TILES[w] + [99]*(4-len(TILES[w])):
            e += [chunk_off16(T, 0), chunk_off16(T, 1)]
        tabs.append((e[0] | e[1] << 8 | e[2] << 16 | e[3] << 24, e[4] | e[5] << 8 | e[6] << 16 | e[7] << 24))
    a(f"s_mov_b32 s4, {tabs[0][0]}\ns_mov_b32 s5, {tabs[0][1]}")
    for w in range(1, 4):
        a(f"s_cmp_eq_u32 {sW}, {w}\ns_cselect_b32 s4, {tabs[w][0]}, s4\ns_cselect_b32 s5, {tabs[w][1]}, s5")
    a(f"""s_mul_i32 s6, {sJ}, 144
    s_movk_i32 s7, 3456
    v_lshrrev_b32 v10, 3, {vL}
    v_mul_lo_u32 v10, v10, s7
    v_add_u32 v10, s6, v10
    v_mov_b32 v11, s4
    v_mov_b32 v12, s5
    v_mov_b32 v13, 0x7ffffff0""")
    for odd in range(2):
        dma_chunk(a, "v6", odd, "v4", "v5")
        a(f"""v_cmp_gt_u32 vcc, 4, v6
        v_cndmask_b32 v4, v12, v11, vcc
        v_and_b32 v5, 3, v6
        v_lshlrev_b32 v5, 3, v5
        v_lshrrev_b32 v4, v5, v4
        v_and_b32 v4, 0xff, v4
        v_lshl_add_u32 v5, v4, 4, v10
        v_cmp_eq_u32 vcc, 0xff, v4
        v_cndmask_b32 v{8+odd}, v5, v13, vcc""")
    a(f"""s_lshl_b32 s84, {sW}, 15
    s_add_u32 s84, s84, {STG}
    v_lshrrev_b32 v6, 2, {vN}
    v_lshl_add_u32 v7, {vQ}, 3, v6""")
    tr_addr(a, "v10", "v7", "v4", "v5")
    a("v_add_u32 v7, 4, v7"); tr_addr(a, "v11", "v7", "v4", "v5")
    for tau in range(1, 4):
        a(f"v_xor_b32 v{10+2*tau}, {32*tau}, v10\nv_xor_b32 v{11+2*tau}, {32*tau}, v11")
    for r in range(10, 18): a(f"v_add_u32 v{r}, s84, v{r}")
    a(f"""s_lshl_b32 s4, {sI}, 6
    s_lshl_b32 s5, {sW}, 4
    s_add_u32 s5, s5, s4
    s_movk_i32 s7, 1152
    v_add_u32 v18, s5, {vN}
    v_mul_lo_u32 v18, v18, s7
    v_lshl_add_u32 v18, {vQ}, 4, v18
    s_sub_i32 s4, s4, 16
    v_add_u32 v19, s4, {vN}
    v_max_i32 v19, 0, v19
    v_mul_lo_u32 v19, v19, s7
    v_lshl_add_u32 v19, {vQ}, 4, v19
    v_lshlrev_b32 v21, 4, {vL}
    s_add_u32 s5, {sW}, 1
    s_mul_i32 s5, s5, {HRT}
    v_add_u32 v20, s5, v21
    v_add_u32 v22, {3*HRT}, v21
    v_lshlrev_b32 v23, 5, {vQ}
    v_add_u32 v23, {MV}, v23""")
    ln_masks(a)

def p1_loads(a):
    for s in range(18):
        a(f"buffer_load_dwordx4 {vr(152+4*s)}, v18, {SX}, 0 offen offset:{64*s}")
    a(f"s_cmp_eq_u32 {sW}, 3\ns_cbranch_scc0 L_p1_nohalo")
    for s in range(18):
        a(f"buffer_load_dwordx4 {vr(halo(s))}, v19, {SX}, 0 offen offset:{64*s}")
    a("L_p1_nohalo:")

def w_dma(a, s):
    for ii in range(4):
        a(f"s_add_u32 m0, s84, {(s % 8)*4096 + ii*1024}")
        a(f"s_mov_b32 s4, {(32*s + 8*ii)*3456}")
        a(f"buffer_load_dwordx4 v{8 + (ii&1)}, {SQKV}, s4 offen lds")

def w_tr(a, s, ntile):
    for tau in range(ntile):
        f = wfrag(tau, s); k = f[0]; b = int(f[2:f.index(':')])
        a(f"ds_read_b64_tr_b16 {k}[{b}:{b+1}], v{10+2*tau} offset:{(s % 8)*4096}")
        a(f"ds_read_b64_tr_b16 {k}[{b+2}:{b+3}], v{11+2*tau} offset:{(s % 8)*4096}")

def w_stage_rest(a, ntile):
    for s in range(18):
        issued = min(8 + s, 18)
        a(f"s_waitcnt vmcnt({4*(issued - s - 1)})")
        w_tr(a, s, ntile)
        if s + 8 < 18:
            a("s_waitcnt lgkmcnt(0)")
            w_dma(a, s + 8)
        elif s % 2 == 1:
            a("s_waitcnt lgkmcnt(0)")
    a("s_waitcnt lgkmcnt(0)")

def ln1_own(a):
    for p in range(72):
        a(f"""v_lshlrev_b32 v{80+2*p}, 16, v{152+p}
        v_and_b32 v{81+2*p}, {sMSK}, v{152+p}""")
        if p: a(f"v_pk_fma_f32 {vr(78+2*p,2)}, {vr(78+2*p,2)}, v[76:77], v[78:79]")
    a("v_pk_fma_f32 v[222:223], v[222:223], v[76:77], v[78:79]")

def ln1_halo(a):
    for s in range(18):
        h = halo(s)
        for d in range(4):
            a(f"v_lshlrev_b32 v{92+2*d}, 16, v{h+d}\nv_and_b32 v{93+2*d}, {sMSK}, v{h+d}")
        for d in range(4):
            a(f"v_pk_fma_f32 {vr(92+2*d,2)}, {vr(92+2*d,2)}, v[88:89], v[90:91]")
        for d in range(4):
            a(f"v_cvt_pk_bf16_f32 v{h+d}, v{92+2*d}, v{93+2*d}")
        a(f"ds_write_b128 v21, {vr(h)} offset:{s*1024}")

def mod_read(a, s, buf, addr="v23", step=128):
    b = 24 + 16*buf
    a(f"""ds_read_b128 {vr(b)}, {addr} offset:{2304 + s*step}
    ds_read_b128 {vr(b+4)}, {addr} offset:{2304 + s*step + 16}
    ds_read_b128 {vr(b+8)}, {addr} offset:{s*step}
    ds_read_b128 {vr(b+12)}, {addr} offset:{s*step + 16}""")

def modulate(a):
    a(f"""s_lshl_b32 s4, {sW}, 10
    v_add_u32 v6, s4, v21
    s_lshl_b32 s4, {sW}, 7
    v_add_u32 v7, s4, v23""")
    def halo_step(k):
        mod_read(a, k, k & 1, "v7", 512)
        a(f"ds_read_b128 v[64:67], v6 offset:{4096*k}\ns_waitcnt lgkmcnt(0)")
        b = 24 + 16*(k & 1)
        for d in range(4):
            a(f"v_lshlrev_b32 v{68+2*d}, 16, v{64+d}\nv_and_b32 v{69+2*d}, {sMSK}, v{64+d}")
        for d in range(4):
            a(f"v_pk_fma_f32 {vr(68+2*d,2)}, {vr(68+2*d,2)}, {vr(b+2*d,2)}, {vr(b+8+2*d,2)}")
        for d in range(4):
            a(f"v_cvt_pk_bf16_f32 v{76+d}, v{68+2*d}, v{69+2*d}")
        a(f"ds_write_b128 v6, v[76:79] offset:{4096*k}")
    for k in range(4): halo_step(k)
    a(f"s_cmp_lt_u32 {sW}, 2\ns_cbranch_scc0 L_p1_h4")
    halo_step(4)
    a("s_waitcnt lgkmcnt(0)\nL_p1_h4:\ns_waitcnt lgkmcnt(0)")
    mod_read(a, 0, 0)
    for s in range(18):
        if s < 17:
            mod_read(a, s+1, (s+1) & 1)
            a("s_waitcnt lgkmcnt(4)" if s == 0 else "s_waitcnt lgkmcnt(5)")
        else:
            a("s_waitcnt lgkmcnt(1)")
        b = 24 + 16*(s & 1); t = 56 + 4*(s & 1)
        for d in range(4):
            x = 80 + 8*s + 2*d
            a(f"v_pk_fma_f32 {vr(x,2)}, {vr(x,2)}, {vr(b+2*d,2)}, {vr(b+8+2*d,2)}")
        for d in range(4):
            x = 80 + 8*s + 2*d
            a(f"v_cvt_pk_bf16_f32 v{t+d}, v{x}, v{x+1}")
        a(f"ds_write_b128 v20, {vr(t)} offset:{s*1024}")

def qkv_gemm(a, units):
    def bread(s):
        for rt in range(5):
            ad, off = ("v21", rt*HRT) if rt < 3 else ("v22", (rt-3)*HRT)
            a(f"ds_read_b128 {vr(160 + 20*(s&1) + 4*rt)}, {ad} offset:{off + s*1024}")
    bread(0)
    for s in range(18):
        if s < 17:
            bread(s+1); a("s_waitcnt lgkmcnt(5)")
        else:
            a("s_waitcnt lgkmcnt(0)")
        for tau, rt in units:
            acc = vr(80 + 4*(5*tau + rt))
            a(f"v_mfma_f32_16x16x32_bf16 {acc}, {wfrag(tau, s)}, {vr(160 + 20*(s&1) + 4*rt)}, {acc if s else 0}")

def rec_addr(a, dst, T, p, kind):
    segbase = {'K': 0, 'V': 72, 'Q': 144}[kind]
    base, nrow, stride, esz = {'K': (KB, 80, 48, 2), 'V': (VB, 80, 80, 4), 'Q': (QB, 64, 48, 2)}[kind]
    a(f"""v_lshlrev_b32 v4, 2, {vQ}
    v_add_u32 v4, {16*T + 2*p - segbase}, v4
    v_mul_u32_u24 v5, 57, v4
    v_lshrrev_b32 v5, 10, v5
    v_mul_u32_u24 v5, {nrow*stride - 18*esz}, v5
    v_mul_u32_u24 v4, {esz}, v4
    v_mul_u32_u24 v6, {stride}, {vN}
    v_add3_u32 {dst}, v4, v5, v6
    v_add_u32 {dst}, {base}, {dst}""")

def rec_write(a, tau, T, kind):
    for p in range(2):
        rec_addr(a, f"v{10+p}", T, p, kind)
    for rt in range(5):
        if kind == 'Q' and rt == 0: continue
        acc = 80 + 4*(5*tau + rt)
        for p in range(2):
            if kind == 'V':
                a(f"ds_write_b64 v{10+p}, {vr(acc+2*p,2)} offset:{rt*1280}")
            else:
                a(f"v_cvt_pk_bf16_f32 v{12+p}, v{acc+2*p}, v{acc+2*p+1}")
                a(f"ds_write_b32 v{10+p}, v{12+p} offset:{(rt - (kind == 'Q'))*768}")

def qkv_epilogue(a, w):
    if w < 2:
        for tau, T in enumerate(TILES[w]):
            rec_write(a, tau, T, 'K' if tau < 2 else 'Q')
    elif w == 2:
        a("s_mov_b32 exec_hi, 0"); rec_write(a, 0, 4, 'K')
        a("s_mov_b32 exec_hi, -1\ns_mov_b32 exec_lo, 0"); rec_write(a, 0, 4, 'V')
        a("s_mov_b32 exec_lo, -1")
        rec_write(a, 1, 5, 'V'); rec_write(a, 2, 6, 'V')
    else:
        rec_write(a, 0, 7, 'V'); rec_write(a, 1, 8, 'V')
        a("s_mov_b32 exec_hi, 0"); rec_write(a, 2, 13, 'Q'); a("s_mov_b32 exec_hi, -1")

def attention(a):
    a(f"""s_lshl_b32 s4, {sW}, 6
    v_add_u32 v4, s4, {vL}
    v_mul_u32_u24 v8, 48, v4
    v_add_u32 v8, {QB}, v8
    s_mul_i32 s4, {sW}, 80
    s_add_u32 s4, s4, 2
    v_add_u32 v4, s4, {vL}
    v_mul_u32_u24 v9, 48, v4
    v_mul_u32_u24 v10, 80, v4
    v_add_u32 v10, {VB}, v10
    ds_read_b128 v[12:15], v8
    ds_read_b128 v[16:19], v8 offset:16
    ds_read_b32 v20, v8 offset:32""")
    K = lambda w: 24 + 12*w
    LG = 120
    for w in range(8):
        off = (14 - 2*w)*48
        a(f"""ds_read_b128 {vr(K(w))}, v9 offset:{off}
        ds_read_b128 {vr(K(w)+4)}, v9 offset:{off+16}
        ds_read_b32 v{K(w)+8}, v9 offset:{off+32}""")
        a(f"v_mov_b32 v{LG+w}, 0")
    def vread(w, base):
        off = (14 - 2*w)*80
        for x in range(4): a(f"ds_read_b128 {vr(base+4*x)}, v10 offset:{off+16*x}")
        a(f"ds_read_b64 {vr(base+16,2)}, v10 offset:{off+64}")
    V1 = lambda w: 128 + 20*w
    a("s_waitcnt lgkmcnt(12)")
    for d in range(9):
        for w in range(4): a(f"v_dot2c_f32_bf16 v{LG+w}, v{12+d}, v{K(w)+d}")
    a("s_waitcnt lgkmcnt(0)")
    for w in range(3): vread(w, V1(w))
    for d in range(9):
        for w in range(4, 8): a(f"v_dot2c_f32_bf16 v{LG+w}, v{12+d}, v{K(w)+d}")
    a("s_waitcnt lgkmcnt(5)")
    vread(3, V1(3))
    a("s_waitcnt lgkmcnt(5)")
    V2 = lambda w: 24 + 20*(w-4)
    vread(4, V2(4));
    a("s_waitcnt lgkmcnt(10)")
    vread(5, V2(5))
    a(f"s_cmp_eq_u32 {sI}, 0\ns_cbranch_scc0 L_p1_nomask\nv_mov_b32 v5, {fbits(-1e9)}")
    for w in range(1, 8):
        a(f"v_cmp_le_u32 vcc, {2*w}, {vL}\nv_cndmask_b32 v{LG+w}, v5, v{LG+w}, vcc")
    a("L_p1_nomask:")
    c = (18 ** -0.5) * LOG2E
    a(f"""s_mov_b32 s4, {fbits(c)}
    v_max3_f32 v4, v{LG}, v{LG+1}, v{LG+2}
    v_max3_f32 v4, v4, v{LG+3}, v{LG+4}
    v_max3_f32 v4, v4, v{LG+5}, v{LG+6}
    v_max_f32 v4, v4, v{LG+7}
    v_mul_f32 v4, s4, v4""")
    for w in range(8): a(f"v_fma_f32 v{LG+w}, v{LG+w}, s4, -v4")
    for w in range(8): a(f"v_exp_f32 v{LG+w}, v{LG+w}")
    a("s_waitcnt lgkmcnt(5)")
    vread(6, V2(6))
    a("s_waitcnt lgkmcnt(10)")
    vread(7, V2(7))
    a(f"""v_add_f32 v4, v{LG}, v{LG+1}
    v_add_f32 v5, v{LG+2}, v{LG+3}
    v_add_f32 v6, v{LG+4}, v{LG+5}
    v_add_f32 v7, v{LG+6}, v{LG+7}
    v_add_f32 v4, v4, v5
    v_add_f32 v6, v6, v7
    v_add_f32 v4, v4, v6
    v_rcp_f32 v6, v4""")
    O = 208
    for w in range(8):
        base = V1(w) if w < 4 else V2(w)
        if w == 4: a("s_waitcnt lgkmcnt(10)")
        if w == 6: a("s_waitcnt lgkmcnt(5)")
        if w == 7: a("s_waitcnt lgkmcnt(0)")
        pp = vr(LG + (w & ~1), 2)
        for d in range(9):
            o = vr(O+2*d, 2)
            if w == 0:
                a(f"v_pk_mul_f32 {o}, {vr(base+2*d,2)}, {pp} op_sel:[0,0] op_sel_hi:[1,0]")
            elif w & 1:
                a(f"v_pk_fma_f32 {o}, {vr(base+2*d,2)}, {pp}, {o} op_sel:[0,1,0] op_sel_hi:[1,1,1]")
            else:
                a(f"v_pk_fma_f32 {o}, {vr(base+2*d,2)}, {pp}, {o} op_sel:[0,0,0] op_sel_hi:[1,0,1]")
    for d in range(9):
        a(f"v_pk_mul_f32 {vr(O+2*d,2)}, {vr(O+2*d,2)}, v[6:7] op_sel:[0,0] op_sel_hi:[1,0]")
    for d in range(9):
        a(f"v_cvt_pk_bf16_f32 v{12+d}, v{O+2*d}, v{O+2*d+1}")
    a(f"""s_mul_i32 s4, {sW}, 36
    s_add_u32 s4, s4, {OB}
    v_mul_u32_u24 v4, 144, {vL}
    v_add_u32 v4, s4, v4""")
    for d in range(0, 8, 2):
        a(f"ds_write2_b32 v4, v{12+d}, v{13+d} offset0:{d} offset1:{d+1}")
    a("ds_write_b32 v4, v20 offset:32")

def o_store(a, sc=""):
    a(f"""s_lshl_b32 s4, {sW}, 4
    v_add_u32 v4, s4, {vN}
    v_mul_u32_u24 v4, 144, v4
    v_lshl_add_u32 v4, {vQ}, 4, v4
    v_add_u32 v4, {OB}, v4
    ds_read_b128 v[12:15], v4
    ds_read_b128 v[16:19], v4 offset:64
    ds_read_b128 v[24:27], v4 offset:128
    s_lshl_b32 s4, {sI}, 2
    s_add_u32 s4, s4, {sW}
    s_mul_i32 s4, s4, 72
    s_mul_i32 s5, {sJ}, 9
    s_add_u32 s4, s4, s5
    s_lshl_b32 s4, s4, 8
    s_add_u32 s4, s4, {O_X}
    v_lshlrev_b32 v5, 4, {vL}
    v_mov_b32 v6, 0x7ffffff0
    v_cmp_gt_u32 vcc, 16, {vL}
    v_cndmask_b32 v6, v6, v5, vcc
    s_waitcnt lgkmcnt(2)
    buffer_store_dwordx4 v[12:15], v5, {SWS}, s4 offen {sc}
    s_waitcnt lgkmcnt(1)
    buffer_store_dwordx4 v[16:19], v5, {SWS}, s4 offen offset:1024 {sc}
    s_waitcnt lgkmcnt(0)
    buffer_store_dwordx4 v[24:27], v6, {SWS}, s4 offen offset:2048 {sc}""")

def k1(stamps=False):
    a = Asm()
    prologue(a, "L_k1_end")
    map_F(a)
    stamp(a, 4, stamps)
    p1_setup(a)
    p1_loads(a)
    a(f"""s_lshl_b32 s4, {sW}, 10
    s_add_u32 m0, s4, {MV}
    s_add_u32 s4, s4, {MOD}
    buffer_load_dwordx4 v21, {SWS}, s4 offen lds
    s_cmp_eq_u32 {sW}, 0
    s_cbranch_scc0 L_k1_m4
    s_mov_b32 m0, {MV + 4096}
    s_mov_b32 s4, {MOD + 4096}
    buffer_load_dwordx4 v21, {SWS}, s4 offen lds
    L_k1_m4:""")
    for s in range(8): w_dma(a, s)
    a(";@assume_drained")
    for r in range(4): a(f"v_mov_b32 v{64+r}, 0x3f803f80")
    a("s_waitcnt vmcnt(32)")
    stamp(a, 5, stamps)
    ln_stats_mfma(a, lambda s: 152 + 4*s, 64, 68)
    a(f"s_cmp_eq_u32 {sW}, 3\ns_cbranch_scc0 L_p1_nohalo2")
    ln_stats_mfma(a, halo, 64, 80)
    ln_scalars(a, 80, 88)
    ln1_halo(a)
    a("s_waitcnt lgkmcnt(0)\nL_p1_nohalo2:")
    ln_scalars(a, 68, 76)
    ln1_own(a)
    stamp(a, 6, stamps)
    a(";@assume_drained")
    a(f"s_cmp_lt_u32 {sW}, 2\ns_cbranch_scc0 L_p1_stgB\n;@fork stg")
    w_stage_rest(a, 4)
    a("s_branch L_p1_stgE\nL_p1_stgB:")
    w_stage_rest(a, 3)
    a(";@join stg\nL_p1_stgE:")
    a("s_waitcnt vmcnt(0) lgkmcnt(0)\ns_barrier")
    stamp(a, 7, stamps)
    modulate(a)
    a("s_waitcnt lgkmcnt(0)\ns_barrier")
    stamp(a, 8, stamps)
    a(f"s_cmp_lt_u32 {sW}, 2\ns_cbranch_scc0 L_p1_gB\n;@fork g")
    qkv_gemm(a, [(t, rt) for rt in range(5) for t in range(4) if t < 2 or rt > 0])
    a(f"s_barrier\ns_cmp_eq_u32 {sW}, 0\ns_cbranch_scc0 L_p1_e1")
    qkv_epilogue(a, 0)
    a("s_branch L_p1_eE\nL_p1_e1:")
    qkv_epilogue(a, 1)
    a("s_branch L_p1_eE\n;@restore g\nL_p1_gB:")
    qkv_gemm(a, [(t, rt) for rt in range(5) for t in range(3)])
    a(f"s_barrier\ns_cmp_eq_u32 {sW}, 2\ns_cbranch_scc0 L_p1_e3")
    qkv_epilogue(a, 2)
    a("s_branch L_p1_eE\nL_p1_e3:")
    qkv_epilogue(a, 3)
    a("L_p1_eE:\n;@assume_drained\ns_waitcnt lgkmcnt(0)\ns_barrier")
    stamp(a, 9, stamps)
    attention(a)
    a("s_waitcnt lgkmcnt(0)\ns_barrier")
    stamp(a, 10, stamps)
    o_store(a)
    if stamps: a("s_waitcnt vmcnt(0)")
    stamp(a, 11, stamps)
    stamp_flush(a, 4, 12, stamps)
    a("L_k1_end:\ns_endpgm")
    return dict(name="k1_kernel", body=a.finish(), vgpr=256, agpr=256, sgpr=102, grid=256, block=256, lds=163840)
```

```python
from gen_common import *
from gen_p1 import sMSK
WOB = 62464

def p2_wo_dma(a, vm):
    a(f"""s_mul_i32 s4, {sJ}, 90
    s_add_u32 s4, s4, {sW}
    s_lshl_b32 s4, s4, 10
    s_add_u32 s4, s4, {WO_SW}
    s_lshl_b32 s5, {sW}, 10
    s_add_u32 s5, s5, {WOB}""")
    for f in range(23):
        a(f"s_add_u32 m0, s5, {f*4096}")
        vm.issue(f"buffer_load_dwordx4 v21, {SWS}, s4 offen lds", 'wo')
        if f < 22: a("s_add_u32 s4, s4, 4096")

def p2_side_loads(a, vm, sc=""):
    a(f"""s_lshl_b32 s4, {sI}, 6
    s_lshl_b32 s5, {sW}, 4
    s_add_u32 s4, s4, s5
    v_add_u32 v4, s4, {vN}
    s_movk_i32 s5, 1152
    v_mul_lo_u32 v4, v4, s5
    s_mul_i32 s5, {sJ}, 144
    v_add_u32 v4, s5, v4
    v_lshl_add_u32 v5, {vQ}, 4, v4
    v_lshl_add_u32 v4, {vQ}, 3, v4
    s_mul_i32 s5, {sJ}, 288
    s_add_u32 s5, s5, {MOD + 1152*4}
    v_lshlrev_b32 v6, 5, {vQ}
    v_lshlrev_b32 v7, 4, {vQ}""")
    vm.issue(f"buffer_load_dwordx4 v[24:27], v5, {SX}, 0 offen", 'side')
    vm.issue(f"buffer_load_dwordx4 v[28:31], v5, {SX}, 0 offen offset:64", 'side')
    vm.issue(f"buffer_load_dwordx2 v[32:33], v4, {SX}, 0 offen offset:128", 'side')
    for k in range(4):
        vm.issue(f"buffer_load_dwordx4 {vr(36+4*k)}, v6, {SWS}, s5 offen offset:{(k>>1)*128 + (k&1)*16} {sc}", 'side')
    vm.issue(f"buffer_load_dwordx4 v[52:55], v7, {SWS}, s5 offen offset:256 {sc}", 'side')

def p2_o_loads(a, vm, sc=""):
    a(f"""s_lshl_b32 s4, {sI}, 2
    s_add_u32 s4, s4, {sW}
    s_mul_i32 s4, s4, {18*1024}
    s_add_u32 s4, s4, {O_X}""")
    for s in range(18):
        if s and s % 4 == 0: a("s_add_u32 s4, s4, 4096")
        vm.issue(f"buffer_load_dwordx4 {vr(80+4*s)}, v21, {SWS}, s4 offen offset:{(s%4)*1024} {sc}", f'o{s}')

def p2_gemm(a, vm):
    a(f"v_add_u32 v22, {WOB}, v21\nv_add_u32 v23, {WOB + 3*18432}, v21")
    def aread(s):
        for t in range(5):
            ad, off = ("v22", t*18432) if t < 3 else ("v23", (t-3)*18432)
            a(f"ds_read_b128 {vr(152 + 20*(s&1) + 4*t)}, {ad} offset:{off + s*1024}")
    aread(0)
    for s in range(18):
        if s < 17:
            aread(s+1); a("s_waitcnt lgkmcnt(5)")
        else: a("s_waitcnt lgkmcnt(0)")
        vm.wait(f'o{s}')
        for t in range(5):
            acc = vr(56 + 4*t)
            a(f"v_mfma_f32_16x16x32_bf16 {acc}, {vr(152 + 20*(s&1) + 4*t)}, {vr(80+4*s)}, {acc if s else 0}")

def p2_epilogue(a, vm, sc=""):
    vm.wait('side')
    a(f"""s_lshl_b32 s4, {sI}, 2
    s_add_u32 s4, s4, {sW}
    s_mul_i32 s4, s4, 72
    s_mul_i32 s5, {sJ}, 9
    s_add_u32 s4, s4, s5
    s_lshl_b32 s4, s4, 8
    s_add_u32 s4, s4, {X1}
    v_lshlrev_b32 v6, 4, {vN}
    v_lshl_add_u32 v6, {vQ}, 3, v6
    v_mov_b32 v7, 0x7ffffff0
    v_cmp_gt_u32 vcc, 32, {vL}
    v_cndmask_b32 v6, v7, v6, vcc""")
    for pr in range(3):
        nd = 4 if pr < 2 else 2
        x = 24 + 4*pr; g = 36 + 8*pr; acc = 56 + 8*pr
        for d in range(nd):
            a(f"v_lshlrev_b32 v{80+2*d}, 16, v{x+d}\nv_and_b32 v{81+2*d}, {sMSK}, v{x+d}")
        for d in range(nd):
            a(f"v_pk_fma_f32 {vr(80+2*d,2)}, {vr(acc+2*d,2)}, {vr(g+2*d,2)}, {vr(80+2*d,2)}")
        for d in range(nd):
            a(f"v_cvt_pk_bf16_f32 v{x+d}, v{80+2*d}, v{81+2*d}")
        if pr < 2:
            vm.issue(f"buffer_store_dwordx4 {vr(x)}, v21, {SWS}, s4 offen offset:{1024*pr} {sc}")
        else:
            vm.issue(f"buffer_store_dwordx2 {vr(x,2)}, v6, {SWS}, s4 offen offset:2048 {sc}")

def k2(stamps=False):
    a = Asm(); vm = Vm(a)
    prologue(a, "L_k2_end")
    map_M(a)
    stamp(a, 12, stamps)
    a(f"v_lshlrev_b32 v21, 4, {vL}\ns_mov_b32 {sMSK}, 0xffff0000")
    p2_wo_dma(a, vm)
    p2_side_loads(a, vm)
    p2_o_loads(a, vm)
    vm.wait('wo')
    a("s_barrier")
    stamp(a, 13, stamps)
    p2_gemm(a, vm)
    stamp(a, 14, stamps)
    p2_epilogue(a, vm)
    if stamps: vm.drain()
    stamp(a, 15, stamps)
    stamp_flush(a, 12, 16, stamps)
    a("L_k2_end:\ns_endpgm")
    return dict(name="k2_kernel", body=a.finish(), vgpr=256, agpr=0, sgpr=102, grid=256, block=256, lds=163840)
```

```python
from gen_common import *
from gen_p1 import sMSK, MV, HRT, ln_masks, ln_stats_mfma, ln_scalars, mod_read
HH = 73728
RING = 32
sT1 = 4
sT2 = 13
sPT = 71
PT = [71, 72, 73, 74, 75, 84, 85, 86, 87]
TT = [91, 92, 93, 94, 95, 22, 23, 24, 25]

def bfrag(r, s):
    i = 4*s + r
    return ar(4*i) if i < 64 else vr(224 + 4*(i-64))
def ring(x): return 96 + 4*(x % RING)

def p3_setup(a):
    a(f"""s_mul_i32 s26, {sI}, 57
    s_lshr_b32 s26, s26, 9
    s_mul_i32 s26, s26, 9
    s_sub_u32 s26, {sI}, s26
    s_mul_i32 s27, {sJ}, 36
    s_add_u32 s27, s27, {sW}""")
    for t in range(9):
        a(f"""s_add_u32 s88, s26, {t}
        s_cmp_ge_u32 s88, 9
        s_cselect_b32 s89, 9, 0
        s_sub_u32 s88, s88, s89
        s_lshl_b32 s{TT[t]}, s88, 11
        s_lshl_b32 s88, s88, 2
        s_add_u32 s88, s88, s27
        s_mul_i32 s88, s88, 36864
        s_add_u32 s{sT1+t}, s88, {WGU_SW}""")
    a(f"""s_mul_i32 s26, {sI}, 72
    s_add_u32 s26, s26, {sJ}""")
    for t in range(9):
        if t == 0: a("s_mov_b32 s88, 8")
        else: a(f"s_add_u32 s88, {sJ}, {t}\ns_and_b32 s88, s88, 7")
        a(f"""s_lshl_b32 s89, s88, 2
        s_add_u32 s89, s89, s27
        s_mul_i32 s89, s89, 18432
        s_add_u32 s{sT2+t}, s89, {WD_SW}
        s_lshl_b32 s88, s88, 3
        s_add_u32 s88, s88, s26
        s_lshl_b32 s88, s88, 2
        s_add_u32 s88, s88, {sW}
        s_lshl_b32 s88, s88, 11
        s_add_u32 s{PT[t]}, s88, {PART}""")
    a(f"v_lshlrev_b32 v21, 4, {vL}")
    for g in range(9): a(f"v_add_u32 v{8+g}, {4096*g}, v21")
    a(f"""v_add_u32 v22, {3*HRT}, v21
    v_lshlrev_b32 v23, 5, {vQ}
    v_add_u32 v23, {MV}, v23
    s_mul_i32 s88, {sW}, {HRT}
    v_add_u32 v20, s88, v21
    s_and_b32 s88, {sW}, 1
    s_lshl_b32 s88, s88, 3
    s_lshr_b32 s89, {sW}, 1
    s_lshl_b32 s89, s89, 10
    s_add_u32 s88, s88, s89
    s_add_u32 s88, s88, {HH}
    v_add_u32 v19, s88, v21""")
    ln_masks(a)

def stream_load(a, vm, x):
    if x >= 486: return
    if x < 324: base, k = sT1 + x // 36, x % 36
    else: base, k = sT2 + (x-324) // 18, (x-324) % 18
    vm.issue(f"buffer_load_dwordx4 {vr(ring(x))}, v{8 + k//4}, {SWS}, s{base} offen offset:{(k%4)*1024}", f'w{x}')

def p3_x1_loads(a, vm, sc=""):
    a(f"""s_lshl_b32 s88, {sI}, 2
    s_add_u32 s88, s88, {sW}
    s_mul_i32 s88, s88, {18*1024}
    s_add_u32 s88, s88, {X1}""")
    for s in range(18):
        vm.issue(f"buffer_load_dwordx4 {vr(152+4*s)}, v{8 + s//4}, {SWS}, s88 offen offset:{(s%4)*1024} {sc}", 'x1')

def p3_mod_dma(a, vm, sc=""):
    a(f"""s_lshl_b32 s88, {sW}, 10
    s_add_u32 m0, s88, {MV}
    s_add_u32 s88, s88, {MOD + 6912}""")
    vm.issue(f"buffer_load_dwordx4 v21, {SWS}, s88 offen {sc} lds", 'mv')
    a(f"""s_mov_b32 m0, {MV + 4096}
    s_mov_b32 s88, {MOD + 6912 + 4096}""")
    vm.issue(f"buffer_load_dwordx4 v21, {SWS}, s88 offen {sc} lds", 'mv')

def ln2(a, vm):
    for r in range(4): a(f"v_mov_b32 v{64+r}, 0x3f803f80")
    vm.wait('x1', 'mv')
    a("s_barrier")
    mod_read(a, 0, 0)
    ln_stats_mfma(a, lambda s: 152 + 4*s, 64, 68)
    ln_scalars(a, 68, 76)
    for s in range(18):
        if s < 17:
            mod_read(a, s+1, (s+1) & 1)
        u = 80 + 8*(s & 1); b = 24 + 16*(s & 1); t = 56 + 4*(s & 1)
        for d in range(4):
            a(f"v_lshlrev_b32 v{u+2*d}, 16, v{152+4*s+d}\nv_and_b32 v{u+2*d+1}, {sMSK}, v{152+4*s+d}")
        for d in range(4):
            a(f"v_pk_fma_f32 {vr(u+2*d,2)}, {vr(u+2*d,2)}, v[76:77], v[78:79]")
        a("s_waitcnt lgkmcnt(4)" if s == 0 else "s_waitcnt lgkmcnt(5)" if s < 17 else "s_waitcnt lgkmcnt(1)")
        for d in range(4):
            a(f"v_pk_fma_f32 {vr(u+2*d,2)}, {vr(u+2*d,2)}, {vr(b+2*d,2)}, {vr(b+8+2*d,2)}")
        for d in range(4):
            a(f"v_cvt_pk_bf16_f32 v{t+d}, v{u+2*d}, v{u+2*d+1}")
        a(f"ds_write_b128 v20, {vr(t)} offset:{s*1024}")

def bread(a, s, base):
    for r in range(4):
        ad, off = ("v21", r*HRT) if r < 3 else ("v22", 0)
        a(f"ds_read_b128 {bfrag(r, s)}, {ad} offset:{off + s*1024}")

def glu_ops(acc, tt):
    ops = [f"v_add_u32 v18, s{TT[tt]}, v19"]
    for r in range(4):
        g = acc + 8*r; u = g + 4; t = 88 + 4*(r & 1)
        ops += [f"v_mul_f32 v{t+e}, s89, v{g+e}" for e in range(4)]
        ops += [f"v_exp_f32 v{t+e}, v{t+e}" for e in range(4)]
        ops += [f"v_add_f32 v{t+e}, 1.0, v{t+e}" for e in range(4)]
        ops += [f"v_rcp_f32 v{t+e}, v{t+e}" for e in range(4)]
        ops += [f"v_mul_f32 v{t+e}, v{t+e}, v{u+e}" for e in range(4)]
        ops += [f"v_cvt_pk_bf16_f32 v{t+e}, v{t+2*e}, v{t+2*e+1}" for e in range(2)]
        ops += [f"ds_write_b64 v18, {vr(t,2)} offset:{r*HRT}"]
    return ops

def gemm1(a, vm, stamps=False):
    a(f"s_mov_b32 s89, {fbits(-LOG2E)}")
    for s in range(3): bread(a, s, 0)
    for t in range(9):
        acc = 24 + 32*(t & 1)
        fill = glu_ops(24 + 32*((t-1) & 1), t-1) if t else []
        nm = 0
        for s in range(18):
            x = 36*t + 2*s
            if t == 0:
                a("s_waitcnt lgkmcnt(%d)" % (8 if s < 16 else 4 if s == 16 else 0))
                if s + 3 < 18: bread(a, s+3, 0)
            vm.wait(f'w{x}', f'w{x+1}')
            for r in range(4):
                for m in range(2):
                    c = vr(acc + 8*r + 4*m)
                    a(f"v_mfma_f32_16x16x32_bf16 {c}, {vr(ring(x+m))}, {bfrag(r, s)}, {c if s else 0}")
                    nm += 1
                    if nm > 6 and fill: a(fill.pop(0))
            stream_load(a, vm, x + RING); stream_load(a, vm, x + RING + 1)
        assert not fill
    for op in glu_ops(24, 8): a(op)

def epi2_ops(acc, t, sc):
    ops = []
    for r in range(4):
        ops += [f"v_cvt_pk_bf16_f32 v{56+2*r}, v{acc+4*r}, v{acc+4*r+1}", f"v_cvt_pk_bf16_f32 v{57+2*r}, v{acc+4*r+2}, v{acc+4*r+3}"]
        if r & 1:
            ops.append(("st", f"buffer_store_dwordx4 {vr(56+2*(r-1))}, v21, {SWS}, s{PT[t]} offen offset:{(r>>1)*1024} {sc}"))
    return ops

def gemm2(a, vm, sc="", keep_last=False):
    a(f"v_add_u32 v20, {HH}, v21\nv_add_u32 v22, {HH + 3*HRT}, v21")
    def hread(s):
        for r in range(4):
            ad, off = ("v20", r*HRT) if r < 3 else ("v22", 0)
            a(f"ds_read_b128 {bfrag(r, s)}, {ad} offset:{off + s*1024}")
    for s in range(3): hread(s)
    def emit(op):
        if isinstance(op, tuple): vm.issue(op[1], 'part')
        else: a(op)
    for t in range(9):
        acc = 24 + 16*(t & 1)
        fill = epi2_ops(24 + 16*((t-1) & 1), t-1, sc) if t else []
        nm = 0
        for s in range(18):
            x = 324 + 18*t + s
            if t == 0:
                a("s_waitcnt lgkmcnt(%d)" % (8 if s < 16 else 4 if s == 16 else 0))
                if s + 3 < 18: hread(s+3)
            vm.wait(f'w{x}')
            for r in range(4):
                c = vr(acc + 4*r)
                a(f"v_mfma_f32_16x16x32_bf16 {c}, {vr(ring(x))}, {bfrag(r, s)}, {c if s else 0}")
                nm += 1
                if nm > 6 and nm % 2 == 0 and fill: emit(fill.pop(0))
            stream_load(a, vm, x + RING)
        assert not fill
    if not keep_last:
        for op in epi2_ops(24, 8, sc): emit(op)

def k3(stamps=False):
    a = Asm(); vm = Vm(a)
    prologue(a, "L_k3_end")
    map_F(a)
    stamp(a, 16, stamps)
    p3_setup(a)
    p3_x1_loads(a, vm)
    p3_mod_dma(a, vm)
    for x in range(14): stream_load(a, vm, x)
    ln2(a, vm)
    for x in range(14, RING): stream_load(a, vm, x)
    a("s_waitcnt lgkmcnt(0)\ns_barrier")
    stamp(a, 17, stamps)
    gemm1(a, vm)
    a("s_waitcnt lgkmcnt(0)\ns_barrier")
    stamp(a, 18, stamps)
    gemm2(a, vm)
    if stamps: vm.drain()
    stamp(a, 19, stamps)
    stamp_flush(a, 16, 20, stamps)
    a("L_k3_end:\ns_endpgm")
    return dict(name="k3_kernel", body=a.finish(), vgpr=256, agpr=256, sgpr=102, grid=256, block=256, lds=163840)

def final_unit(a, vm, blk_s, w_s, rlist, parts, own=None):
    pass

def k4(stamps=False):
    a = Asm(); vm = Vm(a)
    prologue(a, "L_k4_end")
    map_F(a)
    stamp(a, 20, stamps)
    a(f"v_lshlrev_b32 v21, 4, {vL}\ns_mov_b32 {sMSK}, 0xffff0000")
    a(f"""s_mul_i32 s4, {sI}, 9
    s_add_u32 s5, s4, {sJ}
    s_lshl_b32 s5, s5, 5
    s_add_u32 s5, s5, {sW}
    s_lshl_b32 s5, s5, 11
    s_add_u32 s5, s5, {PART}""")
    for p in range(8):
        vm.issue(f"buffer_load_dwordx4 {vr(32+8*p)}, v21, {SWS}, s5 offen", 'p')
        vm.issue(f"buffer_load_dwordx4 {vr(36+8*p)}, v21, {SWS}, s5 offen offset:1024", 'p')
        if p < 7: a("s_add_u32 s5, s5, 8192")
    a(f"""s_add_u32 s5, s4, 8
    s_lshl_b32 s5, s5, 5
    s_and_b32 s6, {sJ}, 1
    s_lshl_b32 s6, s6, 1
    s_and_b32 s7, {sW}, 1
    s_add_u32 s6, s6, s7
    s_add_u32 s5, s5, s6
    s_lshl_b32 s5, s5, 11
    s_add_u32 s5, s5, {PART}
    s_lshr_b32 s7, {sJ}, 1
    s_lshr_b32 s8, s7, 1
    s_lshl_b32 s8, s8, 10
    s_add_u32 s5, s5, s8
    s_and_b32 s8, s7, 1
    s_lshl_b32 s8, s8, 3
    s_add_u32 s5, s5, s8
    s_cmp_lt_u32 {sW}, 2
    s_cselect_b32 s9, 0, 0x7ff00000
    v_add_u32 v20, s9, v21""")
    for p in range(8):
        vm.issue(f"buffer_load_dwordx2 {vr(96+2*p,2)}, v20, {SWS}, s5 offen", 'p8')
        if p < 7: a("s_add_u32 s5, s5, 8192")
    a(f"""v_lshrrev_b32 v4, 1, {vQ}
    v_lshlrev_b32 v4, 8, v4
    v_lshl_add_u32 v4, {vN}, 4, v4
    v_and_b32 v5, 1, {vQ}
    v_lshl_add_u32 v4, v5, 3, v4
    s_movk_i32 s8, 1152
    v_mul_lo_u32 v5, {vN}, s8
    v_lshl_add_u32 v5, {vQ}, 3, v5
    v_lshlrev_b32 v6, 4, {vQ}
    s_lshl_b32 s10, {sI}, 2
    s_mul_i32 s11, s10, 72
    s_lshl_b32 s12, {sJ}, 3
    s_lshl_b32 s13, {sW}, 1
    s_add_u32 s12, s12, s13
    s_add_u32 s12, s12, s11
    s_lshl_b32 s12, s12, 8
    s_add_u32 s12, s12, {X1}
    s_lshl_b32 s13, {sJ}, 2
    s_add_u32 s13, s13, {sW}
    s_lshl_b32 s14, s13, 6
    s_add_u32 s14, s14, {MOD + 5*2304}
    s_mul_i32 s15, {sI}, {64*1152}
    s_lshl_b32 s13, s13, 5
    s_add_u32 s15, s15, s13""")
    for r in range(4):
        vm.issue(f"buffer_load_dwordx2 {vr(112+2*r,2)}, v4, {SWS}, s12 offen", 'x')
        if r < 3: a(f"s_add_u32 s12, s12, {72*256}")
    vm.issue(f"buffer_load_dwordx4 v[120:123], v6, {SWS}, s14 offen", 'x')
    a(f"""s_add_u32 s16, s10, s7
    s_mul_i32 s16, s16, 72
    s_lshl_b32 s17, s6, 1
    s_add_u32 s16, s16, s17
    s_add_u32 s16, s16, 64
    s_lshl_b32 s16, s16, 8
    s_add_u32 s16, s16, {X1}
    s_lshl_b32 s17, s6, 6
    s_add_u32 s17, s17, {MOD + 5*2304 + 512*4}
    s_add_u32 s18, s10, s7
    s_mul_i32 s18, s18, {16*1152}
    s_lshl_b32 s19, s6, 5
    s_add_u32 s18, s18, s19
    s_add_u32 s18, s18, 1024
    v_add_u32 v7, s9, v5""")
    vm.issue(f"buffer_load_dwordx2 v[124:125], v4, {SWS}, s16 offen", 'x')
    vm.issue(f"buffer_load_dwordx4 v[128:131], v6, {SWS}, s17 offen", 'x')
    def accumulate(dst, srcs, first):
        for k, sreg in enumerate(srcs):
            if k == 0 and first:
                a(f"""v_lshlrev_b32 v{dst}, 16, v{sreg}
                v_and_b32 v{dst+1}, {sMSK}, v{sreg}
                v_lshlrev_b32 v{dst+2}, 16, v{sreg+1}
                v_and_b32 v{dst+3}, {sMSK}, v{sreg+1}""")
            else:
                a(f"""v_lshlrev_b32 v8, 16, v{sreg}
                v_and_b32 v9, {sMSK}, v{sreg}
                v_lshlrev_b32 v10, 16, v{sreg+1}
                v_and_b32 v11, {sMSK}, v{sreg+1}
                v_pk_add_f32 {vr(dst,2)}, {vr(dst,2)}, v[8:9]
                v_pk_add_f32 {vr(dst+2,2)}, {vr(dst+2,2)}, v[10:11]""")
    def finish(acc, xr, gb, vaddr, soff):
        a(f"""v_lshlrev_b32 v8, 16, v{xr}
        v_and_b32 v9, {sMSK}, v{xr}
        v_lshlrev_b32 v10, 16, v{xr+1}
        v_and_b32 v11, {sMSK}, v{xr+1}
        v_pk_fma_f32 v[8:9], {vr(acc,2)}, {vr(gb,2)}, v[8:9]
        v_pk_fma_f32 v[10:11], {vr(acc+2,2)}, {vr(gb+2,2)}, v[10:11]
        v_cvt_pk_bf16_f32 v{acc}, v8, v9
        v_cvt_pk_bf16_f32 v{acc+1}, v10, v11""")
        vm.issue(f"buffer_store_dwordx2 {vr(acc,2)}, {vaddr}, {SOUT}, {soff} offen")
    vm.wait('p')
    for r in range(4):
        accumulate(136 + 4*r, [32 + 8*p + 2*r for p in range(8)], True)
    vm.wait('p8', 'x')
    accumulate(152, [96 + 2*p for p in range(8)], True)
    for r in range(4):
        finish(136 + 4*r, 112 + 2*r, 120, "v5", "s15")
        if r < 3: a(f"s_add_u32 s15, s15, {16*1152}")
    finish(152, 124, 128, "v7", "s18")
    if stamps: vm.drain()
    stamp(a, 21, stamps)
    stamp_flush(a, 20, 22, stamps)
    a("L_k4_end:\ns_endpgm")
    return dict(name="k4_kernel", body=a.finish(), vgpr=256, agpr=0, sgpr=102, grid=256, block=256, lds=0)
```

```python
import sys
import asm2, gen_k0, gen_p1, gen_p2, gen_p3
def build(stamps=False, extra=0):
    ks = [gen_k0.k0(stamps), gen_p1.k1(stamps), gen_p2.k2(stamps), gen_p3.k3(stamps), gen_p3.k4(stamps)]
    for e in range(extra):
        ks.append(dict(name="knop_kernel", body="    s_endpgm\n", vgpr=8, agpr=0, sgpr=16, grid=256, block=256, lds=0))
    return asm2.file_text("; multi-kernel version\n", ks)
if __name__ == "__main__":
    open(sys.argv[1], "w").write(build(extra=int(sys.argv[2]) if len(sys.argv) > 2 else 0))
```

```python
import sys
sys.path.insert(0, "work")
from gen_common import *
def kread(name, idx, nld, share, base, seg=1024, sc=""):
    a = Asm()
    prologue(a, f"L_{name}_end")
    stamp(a, 2*idx, True)
    per_wg = nld*4*1024
    if share == 8: a(f"s_lshr_b32 s4, s2, 3")
    else: a(f"s_mov_b32 s4, s2")
    a(f"""s_mul_i32 s4, s4, {per_wg}
    s_mul_i32 s5, {sW}, {nld*1024}
    s_add_u32 s4, s4, s5
    s_add_u32 s4, s4, {base}
    v_lshlrev_b32 v21, 4, {vL}""")
    for i in range(nld):
        if i and i % 4 == 0: a("s_add_u32 s4, s4, 4096")
        a(f"buffer_load_dwordx4 {vr(32+4*i)}, v21, {SWS}, s4 offen offset:{(i%4)*1024} {sc}")
    a("s_waitcnt vmcnt(0)")
    stamp(a, 2*idx+1, True)
    stamp_flush(a, 2*idx, 2*idx+2, True)
    a(f"L_{name}_end:\ns_endpgm")
    return dict(name=name+"_kernel", body=a.finish(), vgpr=256, agpr=0, sgpr=102, grid=256, block=256, lds=0)
def kwrite(name, idx, nst, base, sc=""):
    a = Asm()
    prologue(a, f"L_{name}_end")
    stamp(a, 2*idx, True)
    a(f"""s_mul_i32 s4, s2, {nst*4096}
    s_mul_i32 s5, {sW}, {nst*1024}
    s_add_u32 s4, s4, s5
    s_add_u32 s4, s4, {base}
    v_lshlrev_b32 v21, 4, {vL}
    v_mov_b32 v32, v21
    v_mov_b32 v33, v21
    v_mov_b32 v34, v21
    v_mov_b32 v35, v21""")
    for i in range(nst):
        if i and i % 4 == 0: a("s_add_u32 s4, s4, 4096")
        a(f"buffer_store_dwordx4 v[32:35], v21, {SWS}, s4 offen offset:{(i%4)*1024} {sc}")
    a("s_waitcnt vmcnt(0)")
    stamp(a, 2*idx+1, True)
    stamp_flush(a, 2*idx, 2*idx+2, True)
    a(f"L_{name}_end:\ns_endpgm")
    return dict(name=name+"_kernel", body=a.finish(), vgpr=256, agpr=0, sgpr=102, grid=256, block=256, lds=0)

if __name__ == "__main__":
    from runner import *
    from runner import _hip, _check
    ins = dummy_inputs()
    B = 0x4000000
    def run(name, ks, mode):
        path = "mb7_x.s"
        open(path, "w").write(file_text("", ks))
        p = Prog(path, ins, 2048*576*2)
        acc = []
        for rep in range(5):
            if mode == "flush": p.flush()
            elif mode == "wsfill": p.fill_ws(rep); sync()
            elif mode == "wsfill+flush": p.fill_ws(rep); p.flush()
            p.launch(); sync()
            st = p.ws_np(np.uint32, 1024*64, STAMPS).reshape(256, 4, 64).astype(np.int64)
            acc.append([((st[:,:,2*i+1]-st[:,:,2*i].min()).min()/100, np.median(st[:,:,2*i+1]-st[:,:,2*i].min())/100, (st[:,:,2*i+1]-st[:,:,2*i].min()).max()/100) for i in range(len(ks))])
        m = np.median(np.array(acc), axis=0)
        print(name, mode, " ".join("[%.2f %.2f %.2f]" % tuple(x) for x in m), flush=True)
        p.k.unload(); del p
    for mode in ("flush", "wsfill"):
        run("rd 1/wave distinct", [kread("a", 0, 1, 1, B)], mode)
        run("rd 4/wave distinct (4MB)", [kread("a", 0, 4, 1, B)], mode)
        run("rd 8/wave distinct (8MB)", [kread("a", 0, 8, 1, B)], mode)
        run("rd 18/wave distinct (18MB)", [kread("a", 0, 18, 1, B)], mode)
        run("rd 32/wave distinct (32MB)", [kread("a", 0, 32, 1, B)], mode)
        run("rd 18/wave shared8 (2.3MB uniq)", [kread("a", 0, 18, 8, B)], mode)
    run("wr 2.3MB sc1 then rd shared8, then rd again", [kwrite("w", 0, 2, B, "sc1"), kread("a", 1, 16, 8, B, sc="sc1"), kread("b", 2, 16, 8, B, sc="sc1")], "flush")
    run("wr 2.3MB plain then rd shared8", [kwrite("w", 0, 2, B, ""), kread("a", 1, 16, 8, B)], "flush")
    run("wr 16MB sc1 then rd distinct", [kwrite("w", 0, 16, B, "sc1"), kread("a", 1, 16, 1, B, sc="sc1")], "flush")
    run("wr 16MB plain then rd distinct", [kwrite("w", 0, 16, B, ""), kread("a", 1, 16, 1, B)], "flush")
    run("wr 16MB nt then rd distinct", [kwrite("w", 0, 16, B, "nt"), kread("a", 1, 16, 1, B)], "flush")
    run("wr 16MB sc1 then rd distinct", [kwrite("w", 0, 16, B, "sc1"), kread("a", 1, 16, 1, B, sc="sc1")], "wsfill")
    run("rd 16MB, rd again same", [kread("w", 0, 16, 1, B), kread("a", 1, 16, 1, B)], "flush")
    run("rd 16MB, rd again other xcd", [kread("w", 0, 16, 1, B), kread("a", 1, 16, 1, B+65536)], "flush")
```

```python
import sys
sys.path.insert(0, "work")
from gen_common import *
import gen_k0, gen_p1, gen_p2, gen_p3, mb7
def kbig(name, nbytes_per_wave_k, base):
    a = Asm()
    prologue(a, f"L_{name}_end")
    a(f"""s_lshl_b32 s4, s2, 2
    s_add_u32 s4, s4, {sW}
    s_mul_i32 s4, s4, {nbytes_per_wave_k*1024}
    s_add_u32 s4, s4, {base}
    v_lshlrev_b32 v21, 4, {vL}
    s_mov_b32 s5, 0
    L_loop:""")
    for i in range(32):
        if i % 4 == 0 and i: a("s_add_u32 s4, s4, 4096")
        a(f"buffer_load_dwordx4 {vr(32+4*i)}, v21, {SWS}, s4 offen offset:{(i%4)*1024}")
    a(f"""s_add_u32 s4, s4, 4096
    s_waitcnt vmcnt(0)
    s_add_u32 s5, s5, 32
    s_cmp_lt_u32 s5, {nbytes_per_wave_k}
    s_cbranch_scc1 L_loop
    L_{name}_end:
    s_endpgm""")
    return dict(name=name+"_kernel", body=a.finish(), vgpr=256, agpr=0, sgpr=102, grid=256, block=256, lds=0)
v1 = lambda: [gen_k0.k0(), gen_p1.k1(), gen_p2.k2(), gen_p3.k3(), gen_p3.k4()]
if sys.argv[1] == "gen":
    open("diag_r64.s", "w").write(file_text("", v1() + [kbig("kb", 64, 0x4000000)]))
    open("diag_r0.s", "w").write(file_text("", v1() + [kbig("kb", 64, 0x7f000000)]))
    open("diag_w.s", "w").write(file_text("", v1() + [mb7.kwrite("kw", 15, 32, 0x4000000, "sc1")]))
else:
    from runner import *
    ins = dummy_inputs()
    open("dg_c.s", "w").write(file_text("", [kbig("kc", 192, 0x4000000)]))
    pc = Prog("dg_c.s", ins, 1024)
    for nm, ks in (("v1", v1()), ("r64", v1() + [kbig("kb", 64, 0x4000000)]), ("r0", v1() + [kbig("kb", 64, 0x7f000000)]), ("w32sc1", v1() + [mb7.kwrite("kw", 15, 32, 0x4000000, "sc1")])):
        open("dg_x.s", "w").write(file_text("", ks))
        p = Prog("dg_x.s", ins, 2048*576*2)
        print(nm, "dirty flush", np.median(p.timed(15)))
        def clean():
            p.flush(); pc.launch(); pc.launch(); sync()
        print(nm, "clean-ish flush", np.median(p.timed(15, cold=False, pre=clean)))
        p.k.unload(); del p
```

```python
import re, copy
KNAME = "adaLN_cond__sliding_local_dilated__glu_gated_glu__prompt_kernel"

REG_RE = re.compile(r'^(-?)(?:abs\()?([vas])(?:\[(\d+):(\d+)\]|(\d+))\)?$')

def regs_of(tok):
    tok = tok.strip()
    neg = tok.lstrip('-').strip('|')
    if neg in ('vcc', 'vcc_lo', 'vcc_hi'): return [('s', 'vcc')]
    if neg in ('exec', 'exec_lo', 'exec_hi'): return [('s', 'exec')]
    if neg == 'm0': return [('s', 'm0')]
    m = REG_RE.match(tok)
    if not m: return []
    k = m.group(2)
    if m.group(3) is not None:
        return [(k, i) for i in range(int(m.group(3)), int(m.group(4)) + 1)]
    return [(k, int(m.group(5)))]

TRANS = ('v_exp_f32', 'v_log_f32', 'v_rcp_f32', 'v_rsq_f32', 'v_sqrt_f32', 'v_sin_f32', 'v_cos_f32', 'v_rcp_iflag_f32')

class Ins:
    __slots__ = ('text', 'op', 'dst', 'src', 'kind', 'ops', 'mods', 'nstates', 'srcC', 'srcAB', 'passes', 'sdata', 'vmem_addr_s', 'dpp', 'lds_dma')
    def __init__(self, text):
        self.text = text
        t = text.split(';')[0].strip()
        self.dst = []; self.src = []; self.kind = 'other'; self.nstates = 1
        self.srcC = []; self.srcAB = []; self.passes = 0; self.sdata = []; self.dpp = False; self.lds_dma = False
        self.ops = []; self.mods = ''
        if not t:
            self.op = ''; self.kind = 'pseudo'; self.nstates = 0; return
        if t.endswith(':'):
            self.op = t; self.kind = 'label'; self.nstates = 0; return
        if t.startswith('.'):
            self.op = t; self.kind = 'directive'; self.nstates = 0; return
        sp = t.split(None, 1)
        op = sp[0]; rest = sp[1] if len(sp) > 1 else ''
        base = re.sub(r'_(e32|e64|dpp|sdwa)$', '', op)
        self.op = base
        parts = []; depth = 0; cur = ''
        for ch in rest:
            if ch in '[(': depth += 1
            if ch in '])': depth -= 1
            if ch == ',' and depth == 0:
                parts.append(cur.strip()); cur = ''
            else: cur += ch
        if cur.strip(): parts.append(cur.strip())
        if parts:
            last = parts[-1].split(None, 1)
            parts[-1] = last[0]
            self.mods = last[1] if len(last) > 1 else ''
        self.ops = parts
        R = [regs_of(p) for p in parts]
        flat = lambda L: [r for x in L for r in x]
        self.dpp = op.endswith('_dpp') or 'row_' in self.mods or 'quad_perm' in self.mods
        if base.startswith('v_mfma'):
            self.kind = 'mfma'
            self.dst = R[0]; self.srcAB = R[1] + R[2]; self.srcC = R[3]; self.src = self.srcAB + self.srcC
            self.passes = 8 if '32x32x16' in base else 4 if '16x16x32' in base else None
            assert self.passes, text
        elif base.startswith('v_'):
            self.kind = 'trans' if base in TRANS else 'valu'
            if base.startswith('v_cmp'):
                self.dst = R[0]; self.src = flat(R[1:])
                assert not base.startswith('v_cmpx')
            elif base in ('v_permlane16_swap_b32', 'v_permlane32_swap_b32', 'v_swap_b32'):
                self.dst = R[0] + R[1]; self.src = R[0] + R[1]
            elif base in ('v_add_co_u32', 'v_sub_co_u32', 'v_subrev_co_u32', 'v_addc_co_u32', 'v_subb_co_u32', 'v_mad_u64_u32'):
                self.dst = R[0] + R[1]; self.src = flat(R[2:])
            elif base in ('v_fmac_f32', 'v_dot2c_f32_bf16', 'v_pk_fmac_f16', 'v_fmac_f32_dpp'):
                self.dst = R[0]; self.src = flat(R)
            elif base == 'v_nop':
                pass
            else:
                self.dst = R[0]; self.src = flat(R[1:])
                if self.dpp: self.src = flat(R)
            if base == 'v_cndmask_b32' and len(parts) == 3: self.src.append(('s', 'vcc'))
        elif base.startswith('ds_'):
            self.kind = 'ds'
            if base.startswith('ds_read') or base.startswith('ds_bpermute') or base.startswith('ds_permute') or base.startswith('ds_swizzle'):
                self.dst = R[0]; self.src = flat(R[1:])
            else:
                self.src = flat(R); self.sdata = flat(R[1:])
        elif base.startswith('buffer_') or base.startswith('global_'):
            self.kind = 'vmem'
            words = (self.mods + ' ').split()
            if base in ('buffer_wbl2', 'buffer_inv'):
                pass
            elif 'lds' in words or '_lds_' in base:
                self.lds_dma = True; self.src = flat(R) + [('s', 'm0')]
            elif '_load' in base:
                self.dst = R[0]; self.src = flat(R[1:])
                if 'd16' in base: self.src = flat(R)
            elif '_store' in base:
                self.src = flat(R)
                self.sdata = R[0] if base.startswith('buffer_') else R[1]
            elif 'atomic' in base:
                if base.startswith('buffer_'):
                    self.src = flat(R); self.sdata = R[0]
                    if 'sc0' in words: self.dst = R[0]
                else:
                    if 'sc0' in words: self.dst = R[0]; self.src = flat(R[1:])
                    else: self.src = flat(R)
            else:
                raise ValueError(text)
        elif base.startswith('s_load') or base.startswith('s_buffer_load') or base in ('s_memtime', 's_memrealtime'):
            self.kind = 'smem'; self.dst = R[0]; self.src = flat(R[1:])
        elif base == 's_nop':
            self.kind = 'nop'; self.nstates = int(parts[0], 0) + 1
        elif base == 's_waitcnt':
            self.kind = 'wait'
        elif base.startswith('s_cbranch') or base == 's_branch':
            self.kind = 'branch'
            if 'vcc' in base: self.src = [('s', 'vcc')]
            if 'exec' in base: self.src = [('s', 'exec')]
        elif base in ('s_barrier', 's_endpgm', 's_sleep', 's_setprio'):
            self.kind = 'misc'
        elif base.startswith('s_cmp') or base.startswith('s_bitcmp'):
            self.kind = 'salu'; self.src = flat(R)
        elif base.startswith('s_'):
            self.kind = 'salu'
            self.dst = list(R[0]) if R else []; self.src = flat(R[1:])
            if 'saveexec' in base: self.dst = self.dst + [('s', 'exec')]; self.src.append(('s', 'exec'))
            if base in ('s_addk_i32', 's_mulk_i32', 's_cmov_b32'): self.src += R[0]
        else:
            raise ValueError("unknown instruction: " + text)

def ov(a, b):
    return not set(a).isdisjoint(b)

def need(p, c):
    n = 0
    pv = p.kind in ('valu', 'trans')
    cv = c.kind in ('valu', 'trans')
    if pv:
        vd = [r for r in p.dst if r[0] in 'va']
        sd = [r for r in p.dst if r[0] == 's']
        if vd:
            if c.kind == 'mfma' and ov(vd, c.src): n = max(n, 2)
            if c.op in ('v_readlane_b32', 'v_readfirstlane_b32') and ov(vd, c.src): n = max(n, 1)
            if cv and c.dpp and ov(vd, c.src): n = max(n, 2)
            if c.op.startswith('v_permlane') and ov(vd, c.src): n = max(n, 2)
            if p.kind == 'trans' and c.kind == 'valu' and ov(vd, c.src): n = max(n, 1)
            if p.kind == 'trans' and c.kind in ('ds', 'vmem') and ov(vd, c.src): n = max(n, 1)
            if 'op_sel' in p.mods and not p.op.startswith('v_pk') and cv and ov(vd, c.src + c.dst): n = max(n, 1)
        if sd:
            if cv and ov(sd, c.src):
                n = max(n, 4 if c.op in ('v_readlane_b32', 'v_writelane_b32') else 2)
            if c.kind == 'vmem' and ov(sd, c.src): n = max(n, 5)
            if c.kind in ('salu', 'smem', 'branch') and ov(sd, c.src): n = max(n, 3)
    if p.op.startswith('v_dot'):
        if c.op != p.op:
            if ov(p.dst, c.src + c.dst): n = max(n, 3)
        else:
            ab = regs_of(c.ops[1]) + regs_of(c.ops[2])
            if ov(p.dst, ab): n = max(n, 3)
    if p.kind == 'mfma':
        P = p.passes
        if c.kind == 'mfma':
            if ov(p.dst, c.srcAB): n = max(n, {4: 8, 8: 12}[P])
            if ov(p.dst, c.srcC) and not (p.dst == c.srcC and P == c.passes): n = max(n, {4: 6, 8: 10}[P])
            if ov(p.dst, c.dst) and not ov(p.dst, c.srcC): n = max(n, {4: 8, 8: 12}[P])
        elif cv:
            if ov(p.dst, c.src + c.dst): n = max(n, {4: 8, 8: 12}[P])
            if ov(p.srcC, c.dst): n = max(n, {4: 3, 8: 7}[P])
        elif c.kind in ('ds', 'vmem'):
            if ov(p.dst, c.src + c.dst): n = max(n, {4: 8, 8: 12}[P])
    if p.kind == 'salu' and ('s', 'm0') in p.dst and c.lds_dma: n = max(n, 1)
    if p.kind == 'salu' and ('s', 'exec') in p.dst and (c.dpp or c.kind == 'mfma' or c.op.startswith('v_permlane')): n = max(n, 1)
    if p.kind in ('vmem', 'ds') and len(p.sdata) >= 3 and ov(p.sdata, c.dst):
        n = max(n, 2)
    return n

class State:
    def __init__(self):
        self.recent = []
        self.vm = []
        self.lg = []
    def clone(self):
        s = State(); s.recent = list(self.recent); s.vm = list(self.vm); s.lg = list(self.lg); return s

class Asm:
    def __init__(self, check=True):
        self.ins = []
        self.uid = 0
        self.check = check
    def __call__(self, s):
        for l in s.split("\n"):
            l = l.strip()
            if l: self.ins.append(l)
    def label(self, base):
        self.uid += 1
        return f"{base}_{self.uid}"
    def finish(self):
        out = []; st = State(); saved = {}; nnop = 0
        errs = []
        for li, l in enumerate(self.ins):
            if l.startswith(';@'):
                w = l[2:].split()
                if w[0] == 'fork': saved[w[1]] = st.clone()
                elif w[0] == 'restore':
                    saved[w[1] + '_end'] = st.clone(); st = saved[w[1]].clone()
                elif w[0] == 'join':
                    o = saved[w[1] + '_end']
                    if len(o.vm) != len(st.vm) or len(o.lg) != len(st.lg):
                        errs.append(f"join {w[1]}: counters differ vm {len(o.vm)} vs {len(st.vm)} lg {len(o.lg)} vs {len(st.lg)}")
                    n = min(len(o.vm), len(st.vm))
                    st.vm = [(a[0], a[1] + b[1]) for a, b in zip(o.vm[len(o.vm)-n:], st.vm[len(st.vm)-n:])]
                    n = min(len(o.lg), len(st.lg))
                    st.lg = [(a[0], a[1] + b[1]) for a, b in zip(o.lg[len(o.lg)-n:], st.lg[len(st.lg)-n:])]
                    st.recent = st.recent + o.recent
                elif w[0] == 'drained':
                    if st.vm or st.lg: errs.append(f"{l}: outstanding vm {len(st.vm)} lg {len(st.lg)}")
                elif w[0] == 'assume_drained':
                    st.vm = []; st.lg = []
                elif w[0] == 'assume_drained_lg':
                    st.lg = []
                continue
            c = Ins(l)
            if c.kind in ('pseudo', 'label', 'directive'):
                out.append(l); continue
            req = 0
            for p, d in st.recent:
                k = need(p, c) - d
                if k > req: req = k
            if req > 0:
                nnop += 1
                out.append(f"s_nop {req-1}")
                st.recent = [(p, d + req) for p, d in st.recent]
            touched = set(c.src) | set(c.dst)
            if self.check:
                for q, nm in ((st.vm, 'vm'), (st.lg, 'lg')):
                    for t, regs in q:
                        if regs and not touched.isdisjoint(regs):
                            if nm == 'vm' and c.kind == 'vmem' and touched.isdisjoint(set(regs) - set(c.dst)) and set(c.src).isdisjoint(regs):
                                continue
                            if nm == 'lg' and c.kind == 'ds' and not t.startswith('s_') and set(c.src).isdisjoint(regs):
                                continue
                            errs.append(f"line {li}: '{l}' touches registers of pending {nm} op '{t}'")
            if c.kind == 'vmem':
                if '@uncounted' not in l: st.vm.append((l, list(c.dst)))
            elif c.kind == 'ds': st.lg.append((l, list(c.dst)))
            elif c.kind == 'smem': st.lg.append((l, list(c.dst)))
            elif c.kind == 'wait':
                m = re.search(r'vmcnt\((\d+)\)', l)
                if m:
                    n = int(m.group(1)); assert n <= 63, l
                    while len(st.vm) > n: st.vm.pop(0)
                m = re.search(r'lgkmcnt\((\d+)\)', l)
                if m:
                    n = int(m.group(1)); assert n <= 15, l
                    if n > 0 and any(t.startswith('s_') for t, _ in st.lg):
                        errs.append(f"line {li}: counted lgkmcnt with SMEM outstanding")
                    while len(st.lg) > n: st.lg.pop(0)
            out.append(l)
            st.recent = [(p, d + c.nstates) for p, d in st.recent if d + c.nstates < 20]
            st.recent.append((c, 0))
        if errs:
            raise RuntimeError("checker:\n" + "\n".join(errs[:30]))
        self.nnop = nnop
        return "\n".join(("" if x.endswith(":") else "    ") + x for x in out) + "\n"

def file_text(header, kernels):
    out = header
    if len(kernels) == 1 and kernels[0]['name'] == KNAME:
        k = kernels[0]
        out += f"; @launch grid=({k['grid']},1,1) block=({k['block']},1,1) lds={k['lds']}\n"
    else:
        for k in kernels:
            out += f"; @launch kernel={k['name']} grid=({k['grid']},1,1) block=({k['block']},1,1) lds={k['lds']}\n"
    out += '.amdgcn_target "amdgcn-amd-amdhsa--gfx950"\n.text\n'
    seen = set(); descs = ""
    for k in kernels:
        if k['name'] in seen: continue
        seen.add(k['name'])
        name = k['name']
        acc = (k['vgpr'] + 3) // 4 * 4
        nfv = acc + k['agpr'] if k['agpr'] else k['vgpr']
        out += f".globl {name}\n.p2align 8\n.type {name},@function\n{name}:\n{k['body']}"
        descs += f""".section .rodata,"a"
.p2align 6
.amdhsa_kernel {name}
  .amdhsa_next_free_vgpr {nfv}
  .amdhsa_next_free_sgpr {k.get('sgpr', 102)}
  .amdhsa_accum_offset {acc}
  .amdhsa_group_segment_fixed_size 0
  .amdhsa_kernarg_size 96
  .amdhsa_user_sgpr_count 2
  .amdhsa_user_sgpr_kernarg_segment_ptr 1
  .amdhsa_system_sgpr_workgroup_id_x 1
  .amdhsa_float_denorm_mode_32 3
.end_amdhsa_kernel
"""
    return out + descs
```

```python
from gen_common import *
from gen_k0 import tr_addr, dma_chunk

HRT = 18432
STG = 20480
MV  = 157696
KB, VB, QB, OB = 0, 15360, 40960, 53248
TILES = [[0, 1, 9, 10], [2, 3, 11, 12], [4, 5, 6], [7, 8, 13]]
sMSK = "s90"

def wfrag(tau, s):
    i = tau*18 + s
    return ar(4*i) if i < 64 else vr(224 + 4*(i-64))
def halo(s):
    return 24 + 4*s if s < 10 else 224 + 4*(s-10)

def chunk_off16(T, h):
    cc8 = 2*T + h
    if cc8 >= 27: return 0xFF
    seg, r = divmod(cc8, 9)
    return [72, 144, 0][seg] + r

def ln_masks(a):
    a(f"""v_and_b32 v4, 3, {vN}
    v_cmp_eq_u32 s[76:77], 1, v4
    v_cmp_eq_u32 s[78:79], 2, v4
    v_cmp_eq_u32 s[80:81], 3, v4
    v_lshrrev_b32 v4, 2, {vN}
    v_cmp_eq_u32 s[82:83], v4, {vQ}
    s_mov_b32 {sMSK}, 0xffff0000""")

def ln_stats_mfma(a, raw, ones, acc):
    for s in range(18):
        r = vr(raw(s))
        a(f"v_mfma_f32_16x16x32_bf16 {vr(acc)}, {vr(ones)}, {r}, {vr(acc) if s else 0}")
        a(f"v_mfma_f32_16x16x32_bf16 {vr(acc+4)}, {r}, {r}, {vr(acc+4) if s else 0}")

def bfround(a, x):
    a(f"v_cvt_pk_bf16_f32 {x}, {x}, {x}\nv_and_b32 {x}, {sMSK}, {x}")

def ln_scalars(a, acc, out):
    a(f"""v_cndmask_b32 v4, v{acc+4}, v{acc+5}, s[76:77]
    v_cndmask_b32 v4, v4, v{acc+6}, s[78:79]
    v_cndmask_b32 v4, v4, v{acc+7}, s[80:81]
    v_cndmask_b32 v4, 0, v4, s[82:83]
    v_mov_b32 v5, v4
    v_permlane16_swap_b32 v4, v5
    v_add_f32 v4, v4, v5
    v_mov_b32 v5, v4
    v_permlane32_swap_b32 v4, v5
    v_add_f32 v4, v4, v5
    v_mul_f32 v5, {fbits(1.0/576)}, v{acc}
    v_mul_f32 v4, {fbits(1.0/576)}, v4
    v_fma_f32 v4, -v5, v5, v4
    v_max_f32 v4, 0, v4""")
    bfround(a, "v5"); bfround(a, "v4")
    a(f"v_add_f32 v4, {fbits(1e-5)}, v4"); bfround(a, "v4")
    a("v_sqrt_f32 v4, v4"); bfround(a, "v4")
    a(f"""v_rcp_f32 v{out}, v4
    v_mov_b32 v{out+1}, v{out}
    v_mul_f32 v{out+2}, -v5, v{out}
    v_mov_b32 v{out+3}, v{out+2}""")

def p1_setup(a):
    tabs = []
    for w in range(4):
        e = []
        for T in TILES[w] + [99]*(4-len(TILES[w])):
            e += [chunk_off16(T, 0), chunk_off16(T, 1)]
        tabs.append((e[0] | e[1] << 8 | e[2] << 16 | e[3] << 24, e[4] | e[5] << 8 | e[6] << 16 | e[7] << 24))
    a(f"s_mov_b32 s4, {tabs[0][0]}\ns_mov_b32 s5, {tabs[0][1]}")
    for w in range(1, 4):
        a(f"s_cmp_eq_u32 {sW}, {w}\ns_cselect_b32 s4, {tabs[w][0]}, s4\ns_cselect_b32 s5, {tabs[w][1]}, s5")
    a(f"""s_mul_i32 s6, {sJ}, 144
    s_movk_i32 s7, 3456
    v_lshrrev_b32 v10, 3, {vL}
    v_mul_lo_u32 v10, v10, s7
    v_add_u32 v10, s6, v10
    v_mov_b32 v11, s4
    v_mov_b32 v12, s5
    v_mov_b32 v13, 0x7ffffff0""")
    for odd in range(2):
        dma_chunk(a, "v6", odd, "v4", "v5")
        a(f"""v_cmp_gt_u32 vcc, 4, v6
        v_cndmask_b32 v4, v12, v11, vcc
        v_and_b32 v5, 3, v6
        v_lshlrev_b32 v5, 3, v5
        v_lshrrev_b32 v4, v5, v4
        v_and_b32 v4, 0xff, v4
        v_lshl_add_u32 v5, v4, 4, v10
        v_cmp_eq_u32 vcc, 0xff, v4
        v_cndmask_b32 v{8+odd}, v5, v13, vcc""")
    a(f"""s_lshl_b32 s84, {sW}, 15
    s_add_u32 s84, s84, {STG}
    v_lshrrev_b32 v6, 2, {vN}
    v_lshl_add_u32 v7, {vQ}, 3, v6""")
    tr_addr(a, "v10", "v7", "v4", "v5")
    a("v_add_u32 v7, 4, v7"); tr_addr(a, "v11", "v7", "v4", "v5")
    for tau in range(1, 4):
        a(f"v_xor_b32 v{10+2*tau}, {32*tau}, v10\nv_xor_b32 v{11+2*tau}, {32*tau}, v11")
    for r in range(10, 18): a(f"v_add_u32 v{r}, s84, v{r}")
    a(f"""s_lshl_b32 s4, {sI}, 6
    s_lshl_b32 s5, {sW}, 4
    s_add_u32 s5, s5, s4
    s_movk_i32 s7, 1152
    v_add_u32 v18, s5, {vN}
    v_mul_lo_u32 v18, v18, s7
    v_lshl_add_u32 v18, {vQ}, 4, v18
    s_sub_i32 s4, s4, 16
    v_add_u32 v19, s4, {vN}
    v_max_i32 v19, 0, v19
    v_mul_lo_u32 v19, v19, s7
    v_lshl_add_u32 v19, {vQ}, 4, v19
    v_lshlrev_b32 v21, 4, {vL}
    s_add_u32 s5, {sW}, 1
    s_mul_i32 s5, s5, {HRT}
    v_add_u32 v20, s5, v21
    v_add_u32 v22, {3*HRT}, v21
    v_lshlrev_b32 v23, 5, {vQ}
    v_add_u32 v23, {MV}, v23""")
    ln_masks(a)

def p1_loads(a):
    for s in range(18):
        a(f"buffer_load_dwordx4 {vr(152+4*s)}, v18, {SX}, 0 offen offset:{64*s}")
    a(f"s_cmp_eq_u32 {sW}, 3\ns_cbranch_scc0 L_p1_nohalo")
    for s in range(18):
        a(f"buffer_load_dwordx4 {vr(halo(s))}, v19, {SX}, 0 offen offset:{64*s}")
    a("L_p1_nohalo:")

def w_dma(a, s):
    for ii in range(4):
        a(f"s_add_u32 m0, s84, {(s % 8)*4096 + ii*1024}")
        a(f"s_mov_b32 s4, {(32*s + 8*ii)*3456}")
        a(f"buffer_load_dwordx4 v{8 + (ii&1)}, {SQKV}, s4 offen lds")

def w_tr(a, s, ntile):
    for tau in range(ntile):
        f = wfrag(tau, s); k = f[0]; b = int(f[2:f.index(':')])
        a(f"ds_read_b64_tr_b16 {k}[{b}:{b+1}], v{10+2*tau} offset:{(s % 8)*4096}")
        a(f"ds_read_b64_tr_b16 {k}[{b+2}:{b+3}], v{11+2*tau} offset:{(s % 8)*4096}")

def w_stage_rest(a, ntile):
    for s in range(18):
        issued = min(8 + s, 18)
        a(f"s_waitcnt vmcnt({4*(issued - s - 1)})")
        w_tr(a, s, ntile)
        if s + 8 < 18:
            a("s_waitcnt lgkmcnt(0)")
            w_dma(a, s + 8)
        elif s % 2 == 1:
            a("s_waitcnt lgkmcnt(0)")
    a("s_waitcnt lgkmcnt(0)")

def ln1_own(a):
    for p in range(72):
        a(f"""v_lshlrev_b32 v{80+2*p}, 16, v{152+p}
        v_and_b32 v{81+2*p}, {sMSK}, v{152+p}""")
        if p: a(f"v_pk_fma_f32 {vr(78+2*p,2)}, {vr(78+2*p,2)}, v[76:77], v[78:79]")
    a("v_pk_fma_f32 v[222:223], v[222:223], v[76:77], v[78:79]")

def ln1_halo(a):
    for s in range(18):
        h = halo(s)
        for d in range(4):
            a(f"v_lshlrev_b32 v{92+2*d}, 16, v{h+d}\nv_and_b32 v{93+2*d}, {sMSK}, v{h+d}")
        for d in range(4):
            a(f"v_pk_fma_f32 {vr(92+2*d,2)}, {vr(92+2*d,2)}, v[88:89], v[90:91]")
        for d in range(4):
            a(f"v_cvt_pk_bf16_f32 v{h+d}, v{92+2*d}, v{93+2*d}")
        a(f"ds_write_b128 v21, {vr(h)} offset:{s*1024}")

def mod_read(a, s, buf, addr="v23", step=128):
    b = 24 + 16*buf
    a(f"""ds_read_b128 {vr(b)}, {addr} offset:{2304 + s*step}
    ds_read_b128 {vr(b+4)}, {addr} offset:{2304 + s*step + 16}
    ds_read_b128 {vr(b+8)}, {addr} offset:{s*step}
    ds_read_b128 {vr(b+12)}, {addr} offset:{s*step + 16}""")

def modulate(a, stamps=False):
    a(f"""s_lshl_b32 s4, {sW}, 10
    v_add_u32 v6, s4, v21
    s_lshl_b32 s4, {sW}, 7
    v_add_u32 v7, s4, v23""")
    def halo_step(k):
        mod_read(a, k, k & 1, "v7", 512)
        a(f"ds_read_b128 v[64:67], v6 offset:{4096*k}\ns_waitcnt lgkmcnt(0)")
        b = 24 + 16*(k & 1)
        for d in range(4):
            a(f"v_lshlrev_b32 v{68+2*d}, 16, v{64+d}\nv_and_b32 v{69+2*d}, {sMSK}, v{64+d}")
        for d in range(4):
            a(f"v_pk_fma_f32 {vr(68+2*d,2)}, {vr(68+2*d,2)}, {vr(b+2*d,2)}, {vr(b+8+2*d,2)}")
        for d in range(4):
            a(f"v_cvt_pk_bf16_f32 v{76+d}, v{68+2*d}, v{69+2*d}")
        a(f"ds_write_b128 v6, v[76:79] offset:{4096*k}")
    for k in range(4): halo_step(k)
    a(f"s_cmp_lt_u32 {sW}, 2\ns_cbranch_scc0 L_p1_h4")
    halo_step(4)
    a("s_waitcnt lgkmcnt(0)\nL_p1_h4:\ns_waitcnt lgkmcnt(0)")
    stamp(a, 27, stamps)
    mod_read(a, 0, 0)
    for s in range(18):
        if s < 17:
            mod_read(a, s+1, (s+1) & 1)
            a("s_waitcnt lgkmcnt(4)" if s == 0 else "s_waitcnt lgkmcnt(5)")
        else:
            a("s_waitcnt lgkmcnt(1)")
        b = 24 + 16*(s & 1); t = 56 + 4*(s & 1)
        for d in range(4):
            x = 80 + 8*s + 2*d
            a(f"v_pk_fma_f32 {vr(x,2)}, {vr(x,2)}, {vr(b+2*d,2)}, {vr(b+8+2*d,2)}")
        for d in range(4):
            x = 80 + 8*s + 2*d
            a(f"v_cvt_pk_bf16_f32 v{t+d}, v{x}, v{x+1}")
        a(f"ds_write_b128 v20, {vr(t)} offset:{s*1024}")

def qkv_gemm(a, units):
    def bread(s):
        for rt in range(5):
            ad, off = ("v21", rt*HRT) if rt < 3 else ("v22", (rt-3)*HRT)
            a(f"ds_read_b128 {vr(160 + 20*(s&1) + 4*rt)}, {ad} offset:{off + s*1024}")
    bread(0)
    for s in range(18):
        if s < 17:
            bread(s+1); a("s_waitcnt lgkmcnt(5)")
        else:
            a("s_waitcnt lgkmcnt(0)")
        for tau, rt in units:
            acc = vr(80 + 4*(5*tau + rt))
            a(f"v_mfma_f32_16x16x32_bf16 {acc}, {wfrag(tau, s)}, {vr(160 + 20*(s&1) + 4*rt)}, {acc if s else 0}")

def rec_addr(a, dst, T, p, kind):
    segbase = {'K': 0, 'V': 72, 'Q': 144}[kind]
    base, nrow, stride, esz = {'K': (KB, 80, 48, 2), 'V': (VB, 80, 80, 4), 'Q': (QB, 64, 48, 2)}[kind]
    a(f"""v_lshlrev_b32 v4, 2, {vQ}
    v_add_u32 v4, {16*T + 2*p - segbase}, v4
    v_mul_u32_u24 v5, 57, v4
    v_lshrrev_b32 v5, 10, v5
    v_mul_u32_u24 v5, {nrow*stride - 18*esz}, v5
    v_mul_u32_u24 v4, {esz}, v4
    v_mul_u32_u24 v6, {stride}, {vN}
    v_add3_u32 {dst}, v4, v5, v6
    v_add_u32 {dst}, {base}, {dst}""")

def rec_write(a, tau, T, kind):
    for p in range(2):
        rec_addr(a, f"v{10+p}", T, p, kind)
    for rt in range(5):
        if kind == 'Q' and rt == 0: continue
        acc = 80 + 4*(5*tau + rt)
        for p in range(2):
            if kind == 'V':
                a(f"ds_write_b64 v{10+p}, {vr(acc+2*p,2)} offset:{rt*1280}")
            else:
                a(f"v_cvt_pk_bf16_f32 v{12+p}, v{acc+2*p}, v{acc+2*p+1}")
                a(f"ds_write_b32 v{10+p}, v{12+p} offset:{(rt - (kind == 'Q'))*768}")

def qkv_epilogue(a, w):
    if w < 2:
        for tau, T in enumerate(TILES[w]):
            rec_write(a, tau, T, 'K' if tau < 2 else 'Q')
    elif w == 2:
        a("s_mov_b32 exec_hi, 0"); rec_write(a, 0, 4, 'K')
        a("s_mov_b32 exec_hi, -1\ns_mov_b32 exec_lo, 0"); rec_write(a, 0, 4, 'V')
        a("s_mov_b32 exec_lo, -1")
        rec_write(a, 1, 5, 'V'); rec_write(a, 2, 6, 'V')
    else:
        rec_write(a, 0, 7, 'V'); rec_write(a, 1, 8, 'V')
        a("s_mov_b32 exec_hi, 0"); rec_write(a, 2, 13, 'Q'); a("s_mov_b32 exec_hi, -1")

def attention(a):
    a(f"""s_lshl_b32 s4, {sW}, 6
    v_add_u32 v4, s4, {vL}
    v_mul_u32_u24 v8, 48, v4
    v_add_u32 v8, {QB}, v8
    s_mul_i32 s4, {sW}, 80
    s_add_u32 s4, s4, 2
    v_add_u32 v4, s4, {vL}
    v_mul_u32_u24 v9, 48, v4
    v_mul_u32_u24 v10, 80, v4
    v_add_u32 v10, {VB}, v10
    ds_read_b128 v[12:15], v8
    ds_read_b128 v[16:19], v8 offset:16
    ds_read_b32 v20, v8 offset:32""")
    K = lambda w: 24 + 12*w
    LG = 120
    for w in range(8):
        off = (14 - 2*w)*48
        a(f"""ds_read_b128 {vr(K(w))}, v9 offset:{off}
        ds_read_b128 {vr(K(w)+4)}, v9 offset:{off+16}
        ds_read_b32 v{K(w)+8}, v9 offset:{off+32}""")
        a(f"v_mov_b32 v{LG+w}, 0")
    def vread(w, base):
        off = (14 - 2*w)*80
        for x in range(4): a(f"ds_read_b128 {vr(base+4*x)}, v10 offset:{off+16*x}")
        a(f"ds_read_b64 {vr(base+16,2)}, v10 offset:{off+64}")
    V1 = lambda w: 128 + 20*w
    a("s_waitcnt lgkmcnt(12)")
    for d in range(9):
        for w in range(4): a(f"v_dot2c_f32_bf16 v{LG+w}, v{12+d}, v{K(w)+d}")
    a("s_waitcnt lgkmcnt(0)")
    for w in range(3): vread(w, V1(w))
    for d in range(9):
        for w in range(4, 8): a(f"v_dot2c_f32_bf16 v{LG+w}, v{12+d}, v{K(w)+d}")
    a("s_waitcnt lgkmcnt(5)")
    vread(3, V1(3))
    a("s_waitcnt lgkmcnt(5)")
    V2 = lambda w: 24 + 20*(w-4)
    vread(4, V2(4));
    a("s_waitcnt lgkmcnt(10)")
    vread(5, V2(5))
    a(f"s_cmp_eq_u32 {sI}, 0\ns_cbranch_scc0 L_p1_nomask\nv_mov_b32 v5, {fbits(-1e9)}")
    for w in range(1, 8):
        a(f"v_cmp_le_u32 vcc, {2*w}, {vL}\nv_cndmask_b32 v{LG+w}, v5, v{LG+w}, vcc")
    a("L_p1_nomask:")
    c = (18 ** -0.5) * LOG2E
    a(f"""s_mov_b32 s4, {fbits(c)}
    v_max3_f32 v4, v{LG}, v{LG+1}, v{LG+2}
    v_max3_f32 v4, v4, v{LG+3}, v{LG+4}
    v_max3_f32 v4, v4, v{LG+5}, v{LG+6}
    v_max_f32 v4, v4, v{LG+7}
    v_mul_f32 v4, s4, v4""")
    for w in range(8): a(f"v_fma_f32 v{LG+w}, v{LG+w}, s4, -v4")
    for w in range(8): a(f"v_exp_f32 v{LG+w}, v{LG+w}")
    a("s_waitcnt lgkmcnt(5)")
    vread(6, V2(6))
    a("s_waitcnt lgkmcnt(10)")
    vread(7, V2(7))
    a(f"""v_add_f32 v4, v{LG}, v{LG+1}
    v_add_f32 v5, v{LG+2}, v{LG+3}
    v_add_f32 v6, v{LG+4}, v{LG+5}
    v_add_f32 v7, v{LG+6}, v{LG+7}
    v_add_f32 v4, v4, v5
    v_add_f32 v6, v6, v7
    v_add_f32 v4, v4, v6
    v_rcp_f32 v6, v4""")
    O = 208
    for w in range(8):
        base = V1(w) if w < 4 else V2(w)
        if w == 4: a("s_waitcnt lgkmcnt(10)")
        if w == 6: a("s_waitcnt lgkmcnt(5)")
        if w == 7: a("s_waitcnt lgkmcnt(0)")
        pp = vr(LG + (w & ~1), 2)
        for d in range(9):
            o = vr(O+2*d, 2)
            if w == 0:
                a(f"v_pk_mul_f32 {o}, {vr(base+2*d,2)}, {pp} op_sel:[0,0] op_sel_hi:[1,0]")
            elif w & 1:
                a(f"v_pk_fma_f32 {o}, {vr(base+2*d,2)}, {pp}, {o} op_sel:[0,1,0] op_sel_hi:[1,1,1]")
            else:
                a(f"v_pk_fma_f32 {o}, {vr(base+2*d,2)}, {pp}, {o} op_sel:[0,0,0] op_sel_hi:[1,0,1]")
    for d in range(9):
        a(f"v_pk_mul_f32 {vr(O+2*d,2)}, {vr(O+2*d,2)}, v[6:7] op_sel:[0,0] op_sel_hi:[1,0]")
    for d in range(9):
        a(f"v_cvt_pk_bf16_f32 v{12+d}, v{O+2*d}, v{O+2*d+1}")
    a(f"""s_mul_i32 s4, {sW}, 36
    s_add_u32 s4, s4, {OB}
    v_mul_u32_u24 v4, 144, {vL}
    v_add_u32 v4, s4, v4""")
    for d in range(0, 8, 2):
        a(f"ds_write2_b32 v4, v{12+d}, v{13+d} offset0:{d} offset1:{d+1}")
    a("ds_write_b32 v4, v20 offset:32")

def o_store(a, sc=""):
    a(f"""s_lshl_b32 s4, {sW}, 4
    v_add_u32 v4, s4, {vN}
    v_mul_u32_u24 v4, 144, v4
    v_lshl_add_u32 v4, {vQ}, 4, v4
    v_add_u32 v4, {OB}, v4
    ds_read_b128 v[12:15], v4
    ds_read_b128 v[16:19], v4 offset:64
    ds_read_b128 v[24:27], v4 offset:128
    s_lshl_b32 s4, {sI}, 2
    s_add_u32 s4, s4, {sW}
    s_mul_i32 s4, s4, 72
    s_mul_i32 s5, {sJ}, 9
    s_add_u32 s4, s4, s5
    s_lshl_b32 s4, s4, 8
    s_add_u32 s4, s4, {O_X}
    v_lshlrev_b32 v5, 4, {vL}
    v_mov_b32 v6, 0x7ffffff0
    v_cmp_gt_u32 vcc, 16, {vL}
    v_cndmask_b32 v6, v6, v5, vcc
    s_waitcnt lgkmcnt(2)
    buffer_store_dwordx4 v[12:15], v5, {SWS}, s4 offen {sc}
    s_waitcnt lgkmcnt(1)
    buffer_store_dwordx4 v[16:19], v5, {SWS}, s4 offen offset:1024 {sc}
    s_waitcnt lgkmcnt(0)
    buffer_store_dwordx4 v[24:27], v6, {SWS}, s4 offen offset:2048 {sc}""")

def k1(stamps=False):
    a = Asm()
    prologue(a, "L_k1_end")
    map_F(a)
    stamp(a, 4, stamps)
    p1_setup(a)
    p1_loads(a)
    a(f"""s_lshl_b32 s4, {sW}, 10
    s_add_u32 m0, s4, {MV}
    s_add_u32 s4, s4, {MOD}
    buffer_load_dwordx4 v21, {SWS}, s4 offen lds
    s_cmp_eq_u32 {sW}, 0
    s_cbranch_scc0 L_k1_m4
    s_mov_b32 m0, {MV + 4096}
    s_mov_b32 s4, {MOD + 4096}
    buffer_load_dwordx4 v21, {SWS}, s4 offen lds
    L_k1_m4:""")
    for s in range(8): w_dma(a, s)
    a(";@assume_drained")
    for r in range(4): a(f"v_mov_b32 v{64+r}, 0x3f803f80")
    a("s_waitcnt vmcnt(32)")
    stamp(a, 5, stamps)
    ln_stats_mfma(a, lambda s: 152 + 4*s, 64, 68)
    a(f"s_cmp_eq_u32 {sW}, 3\ns_cbranch_scc0 L_p1_nohalo2")
    ln_stats_mfma(a, halo, 64, 80)
    ln_scalars(a, 80, 88)
    ln1_halo(a)
    a("s_waitcnt lgkmcnt(0)\nL_p1_nohalo2:")
    ln_scalars(a, 68, 76)
    ln1_own(a)
    stamp(a, 6, stamps)
    a(";@assume_drained")
    a(f"s_cmp_lt_u32 {sW}, 2\ns_cbranch_scc0 L_p1_stgB\n;@fork stg")
    w_stage_rest(a, 4)
    a("s_branch L_p1_stgE\nL_p1_stgB:")
    w_stage_rest(a, 3)
    a(";@join stg\nL_p1_stgE:")
    a("s_waitcnt vmcnt(0) lgkmcnt(0)\ns_barrier")
    stamp(a, 7, stamps)
    modulate(a, stamps)
    stamp(a, 28, stamps)
    a("s_waitcnt lgkmcnt(0)\ns_barrier")
    stamp(a, 8, stamps)
    a(f"s_cmp_lt_u32 {sW}, 2\ns_cbranch_scc0 L_p1_gB\n;@fork g")
    qkv_gemm(a, [(t, rt) for rt in range(5) for t in range(4) if t < 2 or rt > 0])
    stamp(a, 26, stamps)
    a(f"s_barrier\ns_cmp_eq_u32 {sW}, 0\ns_cbranch_scc0 L_p1_e1")
    qkv_epilogue(a, 0)
    a("s_branch L_p1_eE\nL_p1_e1:")
    qkv_epilogue(a, 1)
    a("s_branch L_p1_eE\n;@restore g\nL_p1_gB:")
    qkv_gemm(a, [(t, rt) for rt in range(5) for t in range(3)])
    stamp(a, 26, stamps)
    a(f"s_barrier\ns_cmp_eq_u32 {sW}, 2\ns_cbranch_scc0 L_p1_e3")
    qkv_epilogue(a, 2)
    a("s_branch L_p1_eE\nL_p1_e3:")
    qkv_epilogue(a, 3)
    a("L_p1_eE:\n;@assume_drained\ns_waitcnt lgkmcnt(0)\ns_barrier")
    stamp(a, 9, stamps)
    attention(a)
    a("s_waitcnt lgkmcnt(0)\ns_barrier")
    stamp(a, 10, stamps)
    o_store(a)
    if stamps: a("s_waitcnt vmcnt(0)")
    stamp(a, 11, stamps)
    stamp_flush(a, 4, 12, stamps, extra=[26,27,28])
    a("L_k1_end:\ns_endpgm")
    return dict(name="k1_kernel", body=a.finish(), vgpr=256, agpr=256, sgpr=102, grid=256, block=256, lds=163840)
```

```python
from gen_common import *
from gen_p1 import sMSK, MV, HRT, ln_masks, ln_stats_mfma, ln_scalars, mod_read
HH = 73728
RING = 32
sT1 = 4
sT2 = 13
sPT = 71
PT = [32, 33, 34, 35, 36, 37, 38, 39, 71]
TT = [72, 73, 74, 75, 84, 85, 22, 23, 24]

def bfrag(r, s):
    i = 4*s + r
    return ar(4*i) if i < 64 else vr(224 + 4*(i-64))
def ring(x): return 96 + 4*(x % RING)

def p3_setup(a):
    a(f"""s_mul_i32 s26, {sI}, 57
    s_lshr_b32 s26, s26, 9
    s_mul_i32 s26, s26, 9
    s_sub_u32 s26, {sI}, s26
    s_mul_i32 s27, {sJ}, 36
    s_add_u32 s27, s27, {sW}""")
    for t in range(9):
        a(f"""s_add_u32 s88, s26, {t}
        s_cmp_ge_u32 s88, 9
        s_cselect_b32 s89, 9, 0
        s_sub_u32 s88, s88, s89
        s_lshl_b32 s{TT[t]}, s88, 11
        s_lshl_b32 s88, s88, 2
        s_add_u32 s88, s88, s27
        s_mul_i32 s88, s88, 36864
        s_add_u32 s{sT1+t}, s88, {WGU_SW}""")
    a(f"""s_mul_i32 s26, {sI}, 72
    s_add_u32 s26, s26, {sJ}""")
    for t in range(9):
        if t == 0: a("s_mov_b32 s88, 8")
        else: a(f"s_add_u32 s88, {sJ}, {t}\ns_and_b32 s88, s88, 7")
        a(f"""s_lshl_b32 s89, s88, 2
        s_add_u32 s89, s89, s27
        s_mul_i32 s89, s89, 18432
        s_add_u32 s{sT2+t}, s89, {WD_SW}
        s_lshl_b32 s88, s88, 3
        s_add_u32 s88, s88, s26
        s_lshl_b32 s88, s88, 2
        s_add_u32 s88, s88, {sW}
        s_lshl_b32 s88, s88, 11
        s_add_u32 s{PT[t]}, s88, {PART}""")
    a(f"v_lshlrev_b32 v21, 4, {vL}")
    for g in range(9): a(f"v_add_u32 v{8+g}, {4096*g}, v21")
    a(f"""v_add_u32 v22, {3*HRT}, v21
    v_lshlrev_b32 v23, 5, {vQ}
    v_add_u32 v23, {MV}, v23
    s_mul_i32 s88, {sW}, {HRT}
    v_add_u32 v20, s88, v21
    s_and_b32 s88, {sW}, 1
    s_lshl_b32 s88, s88, 3
    s_lshr_b32 s89, {sW}, 1
    s_lshl_b32 s89, s89, 10
    s_add_u32 s88, s88, s89
    s_add_u32 s88, s88, {HH}
    v_add_u32 v19, s88, v21""")
    ln_masks(a)

def stream_load(a, vm, x):
    if x >= 486: return
    if x < 324: base, k = sT1 + x // 36, x % 36
    else: base, k = sT2 + (x-324) // 18, (x-324) % 18
    vm.issue(f"buffer_load_dwordx4 {vr(ring(x))}, v{8 + k//4}, {SWS}, s{base} offen offset:{(k%4)*1024}", f'w{x}')

def p3_x1_loads(a, vm, sc=""):
    a(f"""s_lshl_b32 s88, {sI}, 2
    s_add_u32 s88, s88, {sW}
    s_mul_i32 s88, s88, {18*1024}
    s_add_u32 s88, s88, {X1}""")
    for s in range(18):
        vm.issue(f"buffer_load_dwordx4 {vr(152+4*s)}, v{8 + s//4}, {SWS}, s88 offen offset:{(s%4)*1024} {sc}", 'x1')

def p3_mod_dma(a, vm, sc=""):
    a(f"""s_lshl_b32 s88, {sW}, 10
    s_add_u32 m0, s88, {MV}
    s_add_u32 s88, s88, {MOD + 6912}""")
    vm.issue(f"buffer_load_dwordx4 v21, {SWS}, s88 offen {sc} lds", 'mv')
    a(f"""s_mov_b32 m0, {MV + 4096}
    s_mov_b32 s88, {MOD + 6912 + 4096}""")
    vm.issue(f"buffer_load_dwordx4 v21, {SWS}, s88 offen {sc} lds", 'mv')

def ln2(a, vm, stamps=False):
    for r in range(4): a(f"v_mov_b32 v{64+r}, 0x3f803f80")
    vm.wait('x1', 'mv')
    stamp(a, 22, stamps)
    a("s_barrier")
    mod_read(a, 0, 0)
    ln_stats_mfma(a, lambda s: 152 + 4*s, 64, 68)
    ln_scalars(a, 68, 76)
    if stamps:
        stamp(a, 23, stamps)
    for s in range(18):
        if s < 17:
            mod_read(a, s+1, (s+1) & 1)
        u = 80 + 8*(s & 1); b = 24 + 16*(s & 1); t = 56 + 4*(s & 1)
        for d in range(4):
            a(f"v_lshlrev_b32 v{u+2*d}, 16, v{152+4*s+d}\nv_and_b32 v{u+2*d+1}, {sMSK}, v{152+4*s+d}")
        for d in range(4):
            a(f"v_pk_fma_f32 {vr(u+2*d,2)}, {vr(u+2*d,2)}, v[76:77], v[78:79]")
        a("s_waitcnt lgkmcnt(4)" if s == 0 else "s_waitcnt lgkmcnt(5)" if s < 17 else "s_waitcnt lgkmcnt(1)")
        for d in range(4):
            a(f"v_pk_fma_f32 {vr(u+2*d,2)}, {vr(u+2*d,2)}, {vr(b+2*d,2)}, {vr(b+8+2*d,2)}")
        for d in range(4):
            a(f"v_cvt_pk_bf16_f32 v{t+d}, v{u+2*d}, v{u+2*d+1}")
        a(f"ds_write_b128 v20, {vr(t)} offset:{s*1024}")

def bread(a, s, base):
    for r in range(4):
        ad, off = ("v21", r*HRT) if r < 3 else ("v22", 0)
        a(f"ds_read_b128 {bfrag(r, s)}, {ad} offset:{off + s*1024}")

def glu_ops(acc, tt):
    ops = [f"v_add_u32 v18, s{TT[tt]}, v19"]
    for r in range(4):
        g = acc + 8*r; u = g + 4; t = 88 + 4*(r & 1)
        ops += [f"v_mul_f32 v{t+e}, s89, v{g+e}" for e in range(4)]
        ops += [f"v_exp_f32 v{t+e}, v{t+e}" for e in range(4)]
        ops += [f"v_add_f32 v{t+e}, 1.0, v{t+e}" for e in range(4)]
        ops += [f"v_rcp_f32 v{t+e}, v{t+e}" for e in range(4)]
        ops += [f"v_mul_f32 v{t+e}, v{t+e}, v{u+e}" for e in range(4)]
        ops += [f"v_cvt_pk_bf16_f32 v{t+e}, v{t+2*e}, v{t+2*e+1}" for e in range(2)]
        ops += [f"ds_write_b64 v18, {vr(t,2)} offset:{r*HRT}"]
    return ops

def gemm1(a, vm, stamps=False):
    a(f"s_mov_b32 s89, {fbits(-LOG2E)}")
    for s in range(3): bread(a, s, 0)
    for t in range(9):
        acc = 24 + 32*(t & 1)
        fill = glu_ops(24 + 32*((t-1) & 1), t-1) if t else []
        nm = 0
        for s in range(18):
            x = 36*t + 2*s
            if t == 0:
                a("s_waitcnt lgkmcnt(%d)" % (8 if s < 16 else 4 if s == 16 else 0))
                if s + 3 < 18: bread(a, s+3, 0)
            vm.wait(f'w{x}', f'w{x+1}')
            for r in range(4):
                for m in range(2):
                    c = vr(acc + 8*r + 4*m)
                    a(f"v_mfma_f32_16x16x32_bf16 {c}, {vr(ring(x+m))}, {bfrag(r, s)}, {c if s else 0}")
                    nm += 1
                    if nm > 6 and fill: a(fill.pop(0))
            stream_load(a, vm, x + RING); stream_load(a, vm, x + RING + 1)
        assert not fill
    stamp(a, 25, stamps)
    for op in glu_ops(24, 8): a(op)

def epi2_ops(acc, t, sc):
    ops = []
    for r in range(4):
        ops += [f"v_cvt_pk_bf16_f32 v{56+2*r}, v{acc+4*r}, v{acc+4*r+1}", f"v_cvt_pk_bf16_f32 v{57+2*r}, v{acc+4*r+2}, v{acc+4*r+3}"]
        if r & 1:
            ops.append(("st", f"buffer_store_dwordx4 {vr(56+2*(r-1))}, v21, {SWS}, s{PT[t]} offen offset:{(r>>1)*1024} {sc}"))
    return ops

def gemm2(a, vm, sc="", keep_last=False, pre_last=None):
    a(f"v_add_u32 v20, {HH}, v21\nv_add_u32 v22, {HH + 3*HRT}, v21")
    def hread(s):
        for r in range(4):
            ad, off = ("v20", r*HRT) if r < 3 else ("v22", 0)
            a(f"ds_read_b128 {bfrag(r, s)}, {ad} offset:{off + s*1024}")
    for s in range(3): hread(s)
    def emit(op):
        if isinstance(op, tuple): vm.issue(op[1], 'part')
        else: a(op)
    for t in range(9):
        acc = 24 + 16*(t & 1)
        fill = epi2_ops(24 + 16*((t-1) & 1), t-1, sc) if t else []
        nm = 0
        for s in range(18):
            if t == 8 and s == 6 and pre_last: pre_last()
            x = 324 + 18*t + s
            if t == 0:
                a("s_waitcnt lgkmcnt(%d)" % (8 if s < 16 else 4 if s == 16 else 0))
                if s + 3 < 18: hread(s+3)
            vm.wait(f'w{x}')
            for r in range(4):
                c = vr(acc + 4*r)
                a(f"v_mfma_f32_16x16x32_bf16 {c}, {vr(ring(x))}, {bfrag(r, s)}, {c if s else 0}")
                nm += 1
                if nm > 6 and nm % 2 == 0 and fill: emit(fill.pop(0))
            stream_load(a, vm, x + RING)
        assert not fill
    if not keep_last:
        for op in epi2_ops(24, 8, sc): emit(op)

def k3(stamps=False):
    a = Asm(); vm = Vm(a)
    prologue(a, "L_k3_end")
    map_F(a)
    stamp(a, 16, stamps)
    p3_setup(a)
    p3_x1_loads(a, vm)
    p3_mod_dma(a, vm)
    for x in range(14): stream_load(a, vm, x)
    ln2(a, vm, stamps)
    stamp(a, 24, stamps)
    for x in range(14, RING): stream_load(a, vm, x)
    a("s_waitcnt lgkmcnt(0)\ns_barrier")
    stamp(a, 17, stamps)
    gemm1(a, vm, stamps)
    a("s_waitcnt lgkmcnt(0)\ns_barrier")
    stamp(a, 18, stamps)
    gemm2(a, vm)
    if stamps: vm.drain()
    stamp(a, 19, stamps)
    stamp_flush(a, 16, 20, stamps, extra=[22,23,24,25])
    a("L_k3_end:\ns_endpgm")
    return dict(name="k3_kernel", body=a.finish(), vgpr=256, agpr=256, sgpr=102, grid=256, block=256, lds=163840)

def final_unit(a, vm, blk_s, w_s, rlist, parts, own=None):
    pass

def k4(stamps=False):
    a = Asm(); vm = Vm(a)
    prologue(a, "L_k4_end")
    map_F(a)
    stamp(a, 20, stamps)
    a(f"v_lshlrev_b32 v21, 4, {vL}\ns_mov_b32 {sMSK}, 0xffff0000")
    a(f"""s_mul_i32 s4, {sI}, 9
    s_add_u32 s5, s4, {sJ}
    s_lshl_b32 s5, s5, 5
    s_add_u32 s5, s5, {sW}
    s_lshl_b32 s5, s5, 11
    s_add_u32 s5, s5, {PART}""")
    for p in range(8):
        vm.issue(f"buffer_load_dwordx4 {vr(32+8*p)}, v21, {SWS}, s5 offen", 'p')
        vm.issue(f"buffer_load_dwordx4 {vr(36+8*p)}, v21, {SWS}, s5 offen offset:1024", 'p')
        if p < 7: a("s_add_u32 s5, s5, 8192")
    a(f"""s_add_u32 s5, s4, 8
    s_lshl_b32 s5, s5, 5
    s_and_b32 s6, {sJ}, 1
    s_lshl_b32 s6, s6, 1
    s_and_b32 s7, {sW}, 1
    s_add_u32 s6, s6, s7
    s_add_u32 s5, s5, s6
    s_lshl_b32 s5, s5, 11
    s_add_u32 s5, s5, {PART}
    s_lshr_b32 s7, {sJ}, 1
    s_lshr_b32 s8, s7, 1
    s_lshl_b32 s8, s8, 10
    s_add_u32 s5, s5, s8
    s_and_b32 s8, s7, 1
    s_lshl_b32 s8, s8, 3
    s_add_u32 s5, s5, s8
    s_cmp_lt_u32 {sW}, 2
    s_cselect_b32 s9, 0, 0x7ff00000
    v_add_u32 v20, s9, v21""")
    for p in range(8):
        vm.issue(f"buffer_load_dwordx2 {vr(96+2*p,2)}, v20, {SWS}, s5 offen", 'p8')
        if p < 7: a("s_add_u32 s5, s5, 8192")
    a(f"""v_lshrrev_b32 v4, 1, {vQ}
    v_lshlrev_b32 v4, 8, v4
    v_lshl_add_u32 v4, {vN}, 4, v4
    v_and_b32 v5, 1, {vQ}
    v_lshl_add_u32 v4, v5, 3, v4
    s_movk_i32 s8, 1152
    v_mul_lo_u32 v5, {vN}, s8
    v_lshl_add_u32 v5, {vQ}, 3, v5
    v_lshlrev_b32 v6, 4, {vQ}
    s_lshl_b32 s10, {sI}, 2
    s_mul_i32 s11, s10, 72
    s_lshl_b32 s12, {sJ}, 3
    s_lshl_b32 s13, {sW}, 1
    s_add_u32 s12, s12, s13
    s_add_u32 s12, s12, s11
    s_lshl_b32 s12, s12, 8
    s_add_u32 s12, s12, {X1}
    s_lshl_b32 s13, {sJ}, 2
    s_add_u32 s13, s13, {sW}
    s_lshl_b32 s14, s13, 6
    s_add_u32 s14, s14, {MOD + 5*2304}
    s_mul_i32 s15, {sI}, {64*1152}
    s_lshl_b32 s13, s13, 5
    s_add_u32 s15, s15, s13""")
    for r in range(4):
        vm.issue(f"buffer_load_dwordx2 {vr(112+2*r,2)}, v4, {SWS}, s12 offen", 'x')
        if r < 3: a(f"s_add_u32 s12, s12, {72*256}")
    vm.issue(f"buffer_load_dwordx4 v[120:123], v6, {SWS}, s14 offen", 'x')
    a(f"""s_add_u32 s16, s10, s7
    s_mul_i32 s16, s16, 72
    s_lshl_b32 s17, s6, 1
    s_add_u32 s16, s16, s17
    s_add_u32 s16, s16, 64
    s_lshl_b32 s16, s16, 8
    s_add_u32 s16, s16, {X1}
    s_lshl_b32 s17, s6, 6
    s_add_u32 s17, s17, {MOD + 5*2304 + 512*4}
    s_add_u32 s18, s10, s7
    s_mul_i32 s18, s18, {16*1152}
    s_lshl_b32 s19, s6, 5
    s_add_u32 s18, s18, s19
    s_add_u32 s18, s18, 1024
    v_add_u32 v7, s9, v5""")
    vm.issue(f"buffer_load_dwordx2 v[124:125], v4, {SWS}, s16 offen", 'x')
    vm.issue(f"buffer_load_dwordx4 v[128:131], v6, {SWS}, s17 offen", 'x')
    def accumulate(dst, srcs, first):
        for k, sreg in enumerate(srcs):
            if k == 0 and first:
                a(f"""v_lshlrev_b32 v{dst}, 16, v{sreg}
                v_and_b32 v{dst+1}, {sMSK}, v{sreg}
                v_lshlrev_b32 v{dst+2}, 16, v{sreg+1}
                v_and_b32 v{dst+3}, {sMSK}, v{sreg+1}""")
            else:
                a(f"""v_lshlrev_b32 v8, 16, v{sreg}
                v_and_b32 v9, {sMSK}, v{sreg}
                v_lshlrev_b32 v10, 16, v{sreg+1}
                v_and_b32 v11, {sMSK}, v{sreg+1}
                v_pk_add_f32 {vr(dst,2)}, {vr(dst,2)}, v[8:9]
                v_pk_add_f32 {vr(dst+2,2)}, {vr(dst+2,2)}, v[10:11]""")
    def finish(acc, xr, gb, vaddr, soff):
        a(f"""v_lshlrev_b32 v8, 16, v{xr}
        v_and_b32 v9, {sMSK}, v{xr}
        v_lshlrev_b32 v10, 16, v{xr+1}
        v_and_b32 v11, {sMSK}, v{xr+1}
        v_pk_fma_f32 v[8:9], {vr(acc,2)}, {vr(gb,2)}, v[8:9]
        v_pk_fma_f32 v[10:11], {vr(acc+2,2)}, {vr(gb+2,2)}, v[10:11]
        v_cvt_pk_bf16_f32 v{acc}, v8, v9
        v_cvt_pk_bf16_f32 v{acc+1}, v10, v11""")
        vm.issue(f"buffer_store_dwordx2 {vr(acc,2)}, {vaddr}, {SOUT}, {soff} offen")
    vm.wait('p')
    for r in range(4):
        accumulate(136 + 4*r, [32 + 8*p + 2*r for p in range(8)], True)
    vm.wait('p8', 'x')
    accumulate(152, [96 + 2*p for p in range(8)], True)
    for r in range(4):
        finish(136 + 4*r, 112 + 2*r, 120, "v5", "s15")
        if r < 3: a(f"s_add_u32 s15, s15, {16*1152}")
    finish(152, 124, 128, "v7", "s18")
    if stamps: vm.drain()
    stamp(a, 21, stamps)
    stamp_flush(a, 20, 22, stamps)
    a("L_k4_end:\ns_endpgm")
    return dict(name="k4_kernel", body=a.finish(), vgpr=256, agpr=0, sgpr=102, grid=256, block=256, lds=0)
```

```python
import sys
from gen_common import *
from gen_k0 import tr_addr, dma_chunk
import gen_p1 as P1
import gen_p2 as P2
import gen_p3 as P3
from gen_p1 import HRT, STG, MV, TILES, wfrag, chunk_off16, sMSK, KB, VB, QB, OB

MODT  = MOD + 0x8000
EPOCH = FLAGS + 0x8000
F_O, F_X, F_S, F_P, F_W, F_M = [FLAGS + 0x1000*k for k in range(6)]
sTAG = "s3"
SC1 = "sc1"
WOSTG = 151552
ZB = 92160
POLL_MAX = 1 << 18
OOB = 0x7ffffff0

def map1(a):
    a(f"""s_and_b32 s4, {sB}, 7
    s_lshr_b32 s5, {sB}, 3
    s_lshr_b32 {sI}, s4, 1
    s_lshl_b32 {sI}, {sI}, 3
    s_lshr_b32 s6, s5, 2
    s_add_u32 {sI}, {sI}, s6
    s_and_b32 {sJ}, s4, 1
    s_lshl_b32 {sJ}, {sJ}, 2
    s_and_b32 s6, s5, 3
    s_add_u32 {sJ}, {sJ}, s6""")

def smem_poll(a, name, chunks, wave=1):
    a(f"s_cmp_eq_u32 {sW}, {wave}\ns_cbranch_scc0 L_{name}_skip\ns_mov_b32 s89, 0")
    for ci, (soff, nd, nvalid) in enumerate(chunks):
        a(f"""s_add_u32 s86, s64, {soff}
        s_addc_u32 s87, s65, 0
        L_{name}_{ci}:
        s_load_dwordx{nd} s[40:{40+nd-1}], s[86:87], 0 glc
        s_add_u32 s89, s89, 1
        s_cmp_gt_u32 s89, {POLL_MAX}
        s_cbranch_scc1 L_{name}_to
        s_waitcnt lgkmcnt(0)""")
        for k in range(nvalid): a(f"s_xor_b32 s{40+k}, s{40+k}, {sTAG}")
        n = nvalid; step = 1
        while step < n:
            for k in range(0, n - step, 2*step): a(f"s_or_b32 s{40+k}, s{40+k}, s{40+k+step}")
            step *= 2
        if nvalid == 1: a("s_cmp_lg_u32 s40, 0")
        a(f"s_cbranch_scc1 L_{name}_{ci}")
    a(f"L_{name}_to:\ns_waitcnt lgkmcnt(0)\nL_{name}_skip:")

def vmem_poll(a, name, vaddr, nlanes, wave=1, first_issued=False):
    if wave is not None: a(f"s_cmp_eq_u32 {sW}, {wave}\ns_cbranch_scc0 L_{name}_skip")
    m = (1 << nlanes) - 1
    a(f"s_mov_b32 s89, 0\ns_mov_b32 exec_lo, {m & 0xffffffff}\ns_mov_b32 exec_hi, {m >> 32}")
    if first_issued: a(f"s_branch L_{name}_chk")
    a(f"""L_{name}:
    buffer_load_dword v7, {vaddr}, {SWS}, 0 offen sc1 ;@uncounted
    s_add_u32 s89, s89, 1
    s_cmp_gt_u32 s89, {POLL_MAX}
    s_cbranch_scc1 L_{name}_to
    L_{name}_chk:
    s_waitcnt vmcnt(0)
    v_cmp_ne_u32 vcc, {sTAG}, v7
    s_cbranch_vccnz L_{name}
    L_{name}_to:
    s_waitcnt vmcnt(0)
    s_mov_b64 exec, -1
    L_{name}_skip:""")

def flag_store(a, vm, addr_exprs, wave=0):
    L = a.label("L_fl")
    a(f"s_cmp_eq_u32 {sW}, {wave}\ns_cbranch_scc0 {L}\nv_mov_b32 v4, {sTAG}\ns_mov_b64 exec, 1")
    for e in addr_exprs:
        a(f"buffer_store_dword v4, off, {SWS}, {e} sc1 ;@uncounted")
    a(f"s_mov_b64 exec, -1\n{L}:")

def ln_stats(a, NR, raw, ones, SA, RD, P, ST):
    for k in range(5):
        for r in range(NR):
            x = vr(raw(r, k))
            a(f"v_mfma_f32_16x16x32_bf16 {vr(SA+8*r)}, {vr(ones)}, {x}, {vr(SA+8*r) if k else 0}")
            a(f"v_mfma_f32_16x16x32_bf16 {vr(SA+8*r+4)}, {x}, {x}, {vr(SA+8*r+4) if k else 0}")
    a(f"""s_mul_i32 s89, {sW}, {NR*128}
    s_add_u32 s89, s89, {ST}
    v_lshlrev_b32 v5, 3, {vN}
    v_add_u32 v6, {ST}, v5
    v_add_u32 v5, s89, v5""")
    for r in range(NR):
        b = SA + 8*r
        a(f"""v_cndmask_b32 v{b+1}, v{b+4}, v{b+5}, s[76:77]
        v_cndmask_b32 v{b+1}, v{b+1}, v{b+6}, s[78:79]
        v_cndmask_b32 v{b+1}, v{b+1}, v{b+7}, s[80:81]""")
    a("s_mov_b64 exec, s[82:83]")
    for r in range(NR): a(f"ds_write_b64 v5, {vr(SA+8*r,2)} offset:{r*128}")
    a("s_mov_b64 exec, -1\ns_waitcnt lgkmcnt(0)\ns_barrier")
    for r in range(NR):
        for w in range(4): a(f"ds_read_b64 {vr(RD+8*r+2*w,2)}, v6 offset:{(w*NR + r)*128}")
    for r in range(NR):
        if r % 2 == 0: a(f"s_waitcnt lgkmcnt({max(0, min(15, 4*(NR - r - 2)))})")
        b = RD + 8*r
        a(f"""v_pk_add_f32 {vr(b,2)}, {vr(b,2)}, {vr(b+2,2)}
        v_pk_add_f32 {vr(b+4,2)}, {vr(b+4,2)}, {vr(b+6,2)}
        v_pk_add_f32 {vr(b,2)}, {vr(b,2)}, {vr(b+4,2)}""")
    R = range(NR)
    m = lambda r: f"v{RD+8*r}"; q = lambda r: f"v{RD+8*r+1}"
    for r in R: a(f"v_mul_f32 {m(r)}, {fbits(1.0/576)}, {m(r)}")
    for r in R: a(f"v_mul_f32 {q(r)}, {fbits(1.0/576)}, {q(r)}")
    for r in R: a(f"v_fma_f32 {q(r)}, -{m(r)}, {m(r)}, {q(r)}")
    for r in R: a(f"v_max_f32 {q(r)}, 0, {q(r)}")
    def rnd(f):
        for r in R: a(f"v_cvt_pk_bf16_f32 {f(r)}, {f(r)}, {f(r)}")
        for r in R: a(f"v_and_b32 {f(r)}, {sMSK}, {f(r)}")
    rnd(m); rnd(q)
    for r in R: a(f"v_add_f32 {q(r)}, {fbits(1e-5)}, {q(r)}")
    rnd(q)
    for r in R: a(f"v_sqrt_f32 {q(r)}, {q(r)}")
    rnd(q)
    for r in R: a(f"v_rcp_f32 v{P+2*r}, {q(r)}")
    for r in R: a(f"v_mul_f32 v{P+2*r+1}, -{m(r)}, v{P+2*r}")

def unpack(a, dst, src):
    for d in range(4):
        a(f"v_lshlrev_b32 v{dst+2*d}, 16, v{src+d}\nv_and_b32 v{dst+2*d+1}, {sMSK}, v{src+d}")
def norm(a, u, P):
    for d in range(4):
        a(f"v_pk_fma_f32 {vr(u+2*d,2)}, {vr(u+2*d,2)}, {vr(P,2)}, {vr(P,2)} op_sel:[0,0,1] op_sel_hi:[1,0,1]")
def modfma(a, u, b):
    for d in range(4):
        a(f"v_pk_fma_f32 {vr(u+2*d,2)}, {vr(u+2*d,2)}, {vr(b+2*d,2)}, {vr(b+8+2*d,2)}")
def pack(a, dst, u):
    for d in range(4): a(f"v_cvt_pk_bf16_f32 v{dst+d}, v{u+2*d}, v{u+2*d+1}")
def mread(a, k):
    b = 24 + 16*(k & 1)
    a(f"""ds_read_b128 {vr(b)}, v23 offset:{2304 + k*512}
    ds_read_b128 {vr(b+4)}, v23 offset:{2304 + k*512 + 16}
    ds_read_b128 {vr(b+8)}, v23 offset:{k*512}
    ds_read_b128 {vr(b+12)}, v23 offset:{k*512 + 16}""")

def ln_apply(a, NR, raw, P, has5, name):
    mread(a, 0)
    cnt = 0
    for k in range(5):
        if k == 4: a(f"{has5}\ns_cbranch_scc0 L_{name}_e")
        if k < 4: mread(a, k+1)
        for r in range(NR):
            u = 56 + 8*(cnt & 1); t = 72 + 4*(cnt & 1); cnt += 1
            unpack(a, u, raw(r, k))
            if P is not None: norm(a, u, P + 2*r)
            if r == 0: a(f"s_waitcnt lgkmcnt({4 if k == 0 else NR + 4 if k < 4 else NR})")
            modfma(a, u, 24 + 16*(k & 1)); pack(a, t, u)
            ad, off = ("v18", r*HRT) if r < 3 else ("v19", (r-3)*HRT)
            a(f"ds_write_b128 {ad}, {vr(t)} offset:{off + 4096*k}")
    a(f"s_waitcnt lgkmcnt(0)\nL_{name}_e:\n;@assume_drained_lg\ns_waitcnt lgkmcnt(0)")

R1 = lambda r, k: 124 + 4*(5*r + k)
R2 = lambda r, k: 144 + 4*(5*r + k)

def setup1(a):
    tabs = []
    for w in range(4):
        e = []
        for T in TILES[w] + [99]*(4-len(TILES[w])):
            e += [chunk_off16(T, 0), chunk_off16(T, 1)]
        tabs.append((e[0] | e[1] << 8 | e[2] << 16 | e[3] << 24, e[4] | e[5] << 8 | e[6] << 16 | e[7] << 24))
    a(f"""s_sub_u32 s88, 3, {sW}
    s_lshl_b32 s4, {sI}, 6
    s_movk_i32 s7, 1152
    s_lshl_b32 s5, s88, 6
    v_add_u32 v18, s4, {vN}
    v_mul_lo_u32 v18, v18, s7
    v_lshl_add_u32 v18, {vQ}, 4, v18
    v_add_u32 v18, s5, v18
    s_sub_i32 s4, s4, 16
    v_add_u32 v19, s4, {vN}
    v_max_i32 v19, 0, v19
    v_mul_lo_u32 v19, v19, s7
    v_lshl_add_u32 v19, {vQ}, 4, v19
    v_add_u32 v19, s5, v19
    s_cmp_ge_u32 {sW}, 2
    s_cselect_b32 s5, 0, 0x7ff00000
    v_add_u32 v20, s5, v18
    v_add_u32 v22, s5, v19
    v_lshlrev_b32 v21, 4, {vL}""")

def loads_mod(a):
    a(f"""s_cmp_lt_u32 {sB}, 54
    s_cbranch_scc0 L_nomod1
    s_mul_i32 s4, {sW}, 144
    v_lshrrev_b32 v4, 3, {vL}
    v_add_u32 v16, s4, v4
    v_lshlrev_b32 v17, 1, v16
    s_movk_i32 s5, 6912
    v_mul_lo_u32 v16, v16, s5
    v_and_b32 v4, 7, {vL}
    v_lshl_add_u32 v16, v4, 4, v16
    s_lshl_b32 s5, {sB}, 7
    v_add_u32 v16, s5, v16""")
    for t in range(18):
        a(f"s_mov_b32 s4, {55296*t}\nbuffer_load_dwordx4 {vr(48+4*t)}, v16, {SMOD}, s4 offen")
    for t in range(18):
        a(f"buffer_load_ushort v{24+t}, v17, {SC}, 0 offen offset:{16*t}")
    a("L_nomod1:")

def loads_x(a):
    for k in range(5):
        for r in range(5):
            v = ("v19" if r == 0 else "v18") if k < 4 else ("v22" if r == 0 else "v20")
            so = "0" if r <= 1 else f"s{3 + r}"
            if k == 0 and r >= 2: a(f"s_mov_b32 s{3+r}, {(r-1)*HRT}")
            a(f"buffer_load_dwordx4 {vr(R1(r,k))}, {v}, {SX}, {so} offen offset:{256*k}")

def setup1b(a):
    tabs = []
    for w in range(4):
        e = []
        for T in TILES[w] + [99]*(4-len(TILES[w])):
            e += [chunk_off16(T, 0), chunk_off16(T, 1)]
        tabs.append((e[0] | e[1] << 8 | e[2] << 16 | e[3] << 24, e[4] | e[5] << 8 | e[6] << 16 | e[7] << 24))
    a(f"s_mov_b32 s4, {tabs[0][0]}\ns_mov_b32 s5, {tabs[0][1]}")
    for w in range(1, 4):
        a(f"s_cmp_eq_u32 {sW}, {w}\ns_cselect_b32 s4, {tabs[w][0]}, s4\ns_cselect_b32 s5, {tabs[w][1]}, s5")
    a(f"""s_mul_i32 s6, {sJ}, 144
    s_movk_i32 s7, 3456
    v_lshrrev_b32 v10, 3, {vL}
    v_mul_lo_u32 v10, v10, s7
    v_add_u32 v10, s6, v10
    v_mov_b32 v11, s4
    v_mov_b32 v12, s5
    v_mov_b32 v13, {OOB}""")
    for odd in range(2):
        dma_chunk(a, f"v{14+odd}", odd, "v4", "v5")
        a(f"""v_cmp_gt_u32 vcc, 4, v{14+odd}
        v_cndmask_b32 v4, v12, v11, vcc
        v_and_b32 v5, 3, v{14+odd}
        v_lshlrev_b32 v5, 3, v5
        v_lshrrev_b32 v4, v5, v4
        v_and_b32 v4, 0xff, v4
        v_lshl_add_u32 v5, v4, 4, v10
        v_cmp_eq_u32 vcc, 0xff, v4
        v_cndmask_b32 v{8+odd}, v5, v13, vcc""")
    a(f"s_lshl_b32 s84, {sW}, 15\ns_add_u32 s84, s84, {STG}")

def wo_dma(a):
    a(f"""s_cmp_ge_u32 {sB}, 112
    s_cselect_b32 s85, {sW}, 0
    s_cmp_eq_u32 s85, 1
    s_cbranch_scc0 L_nowo1
    s_sub_u32 s4, {sB}, 112
    s_mul_i32 s5, s4, 57
    s_lshr_b32 s5, s5, 10
    s_mul_i32 s6, s5, 18
    s_sub_u32 s6, s4, s6
    s_mul_i32 s7, s6, {32*1152}
    s_mul_i32 s8, s5, 144
    s_add_u32 s7, s7, s8
    s_mul_i32 s5, s5, 90
    s_add_u32 s5, s5, s6
    s_lshl_b32 s5, s5, 10
    s_add_u32 s91, s5, {WO_SW}
    s_movk_i32 s8, 1152
    v_lshrrev_b32 v4, 3, {vL}
    v_mul_lo_u32 v4, v4, s8
    v_lshl_add_u32 v5, v15, 4, v4
    v_lshl_add_u32 v4, v14, 4, v4
    v_mul_lo_u32 v6, {vL}, s8
    v_add_u32 v6, 128, v6
    v_cmp_gt_u32 vcc, 32, {vL}
    v_cndmask_b32 v6, v13, v6, vcc
    s_mov_b32 m0, {WOSTG + 4096}
    s_nop 0
    buffer_load_dwordx4 v6, {SWO}, s7 offen lds""")
    for ii in range(4):
        a(f"s_mov_b32 m0, {WOSTG + ii*1024}\ns_nop 0\nbuffer_load_dwordx4 v{4 + (ii&1)}, {SWO}, s7 offen lds")
        if ii < 3: a(f"s_add_u32 s7, s7, {8*1152}")
    a("L_nowo1:")

def tr_setup(a):
    a(f"v_lshrrev_b32 v6, 2, {vN}\nv_lshl_add_u32 v7, {vQ}, 3, v6")
    tr_addr(a, "v10", "v7", "v4", "v5")
    a("v_add_u32 v7, 4, v7"); tr_addr(a, "v11", "v7", "v4", "v5")
    for tau in range(1, 4):
        a(f"v_xor_b32 v{10+2*tau}, {32*tau}, v10\nv_xor_b32 v{11+2*tau}, {32*tau}, v11")
    for r in range(10, 18): a(f"v_add_u32 v{r}, s84, v{r}")
    a(f"""s_lshl_b32 s4, s88, 10
    v_add_u32 v18, s4, v21
    v_add_u32 v19, {3*HRT}, v18
    v_add_u32 v22, {3*HRT}, v21
    s_lshl_b32 s4, s88, 7
    s_add_u32 s4, s4, {MV}
    v_lshlrev_b32 v23, 5, {vQ}
    v_add_u32 v23, s4, v23""")
    P1.ln_masks(a)

def mod_compute(a):
    MZ = 4096
    a(f"""s_cmp_lt_u32 {sB}, 54
    s_cbranch_scc0 L_nomod2
    s_waitcnt vmcnt(57)
    v_mov_b32 v42, {fbits(-LOG2E)}""")
    for t in range(18): a(f"v_lshlrev_b32 v{24+t}, 16, v{24+t}")
    for t0 in range(0, 18, 6):
        T = range(t0, t0+6); tmp = lambda t: f"v{224 + t - t0}"
        for t in T: a(f"v_mul_f32 {tmp(t)}, v42, v{24+t}")
        for t in T: a(f"v_exp_f32 {tmp(t)}, {tmp(t)}")
        for t in T: a(f"v_add_f32 {tmp(t)}, 1.0, {tmp(t)}")
        for t in T: a(f"v_rcp_f32 {tmp(t)}, {tmp(t)}")
        for t in T: a(f"v_mul_f32 {tmp(t)}, {tmp(t)}, v{24+t}")
        for t in T: a(f"v_cvt_pk_bf16_f32 {tmp(t)}, {tmp(t)}, {tmp(t)}")
        for t in T: a(f"v_and_b32 v{24+t}, {sMSK}, {tmp(t)}")
    for t in range(18):
        pp = vr(24 + (t & ~1), 2)
        sel = "op_sel:[0,1,0] op_sel_hi:[1,1,1]" if t & 1 else "op_sel:[0,0,0] op_sel_hi:[1,0,1]"
        sel2 = "op_sel:[0,0] op_sel_hi:[1,0]"
        unpack(a, 240, 48 + 4*t)
        for d in range(4):
            if t == 0: a(f"v_pk_mul_f32 {vr(224+2*d,2)}, {vr(240+2*d,2)}, {pp} {sel2}")
            else: a(f"v_pk_fma_f32 {vr(224+2*d,2)}, {vr(240+2*d,2)}, {pp}, {vr(224+2*d,2)} {sel}")
    for e in range(8):
        a(f"v_add_f32_dpp v{224+e}, v{224+e}, v{224+e} row_ror:8 row_mask:0xf bank_mask:0xf")
    for op in ("v_permlane16_swap_b32", "v_permlane32_swap_b32"):
        for e in range(8): a(f"v_mov_b32 v{232+e}, v{224+e}")
        for e in range(8): a(f"{op} v{224+e}, v{232+e}")
        for e in range(8): a(f"v_add_f32 v{224+e}, v{224+e}, v{232+e}")
    a(f"""v_and_b32 v4, 7, {vL}
    v_lshlrev_b32 v4, 5, v4
    s_lshl_b32 s4, {sW}, 8
    s_add_u32 s4, s4, {MZ}
    v_add_u32 v4, s4, v4
    ds_write_b128 v4, v[224:227]
    ds_write_b128 v4, v[228:231] offset:16
    s_waitcnt lgkmcnt(0)
    s_barrier
    s_cmp_eq_u32 {sW}, 0
    s_cbranch_scc0 L_nomod2
    v_lshlrev_b32 v4, 2, {vL}
    v_add_u32 v5, {MZ}, v4
    ds_read_b32 v24, v5
    ds_read_b32 v25, v5 offset:256
    ds_read_b32 v26, v5 offset:512
    ds_read_b32 v27, v5 offset:768
    s_mul_i32 s4, {sB}, 57
    s_lshr_b32 s4, s4, 9
    s_cmp_eq_u32 s4, 1
    s_cselect_b32 s5, 1, 0
    s_cmp_eq_u32 s4, 4
    s_cselect_b32 s5, 1, s5
    s_cmp_eq_u32 s5, 1
    s_cselect_b64 vcc, -1, 0
    s_waitcnt lgkmcnt(0)
    v_add_f32 v24, v24, v25
    v_add_f32 v26, v26, v27
    v_add_f32 v24, v24, v26
    v_cvt_pk_bf16_f32 v24, v24, v24
    v_and_b32 v24, {sMSK}, v24
    v_add_f32 v25, 1.0, v24
    v_cvt_pk_bf16_f32 v25, v25, v25
    v_and_b32 v25, {sMSK}, v25
    v_cndmask_b32 v24, v24, v25, vcc
    s_cmp_lt_u32 {sB}, 18
    s_cbranch_scc0 L_modplain
    v_mov_b32 v25, {sTAG}
    v_lshlrev_b32 v4, 3, {vL}
    s_lshl_b32 s4, {sB}, 9
    s_add_u32 s4, s4, {MODT}
    buffer_store_dwordx2 v[24:25], v4, {SWS}, s4 offen sc1 ;@uncounted
    s_branch L_nomod2
    L_modplain:
    s_lshl_b32 s4, {sB}, 8
    s_add_u32 s4, s4, {MOD}
    buffer_store_dword v24, v4, {SWS}, s4 offen sc1 ;@uncounted
    L_nomod2:""")

def wo_tr(a):
    a(f"""s_cmp_eq_u32 s85, 1
    s_cbranch_scc0 L_nowo2
    s_waitcnt vmcnt(32)
    v_lshrrev_b32 v6, 2, {vN}
    v_lshl_add_u32 v7, {vQ}, 3, v6""")
    from gen_common import swz_g
    for hf in range(2):
        if hf: a("v_add_u32 v7, 4, v7")
        swz_g(a, "v4", "v7", "v5")
        a(f"""v_lshlrev_b32 v4, 1, v4
        v_and_b32 v5, 3, {vN}
        v_xor_b32 v4, v4, v5
        v_lshlrev_b32 v4, 4, v4
        v_lshl_or_b32 v4, v7, 7, v4
        v_add_u32 v{24+hf}, {WOSTG}, v4
        v_xor_b32 v{26+hf}, 64, v{24+hf}
        v_and_b32 v5, 1, v5
        v_lshlrev_b32 v5, 3, v5
        v_lshl_or_b32 v5, v7, 4, v5
        v_add_u32 v{28+hf}, {WOSTG + 4096}, v5""")
    for t in range(4):
        x, y = (24, 25) if t < 2 else (26, 27)
        a(f"ds_read_b64_tr_b16 {vr(32+4*t,2)}, v{x} offset:{8*(t&1)}\nds_read_b64_tr_b16 {vr(34+4*t,2)}, v{y} offset:{8*(t&1)}")
    a(f"ds_read_b64_tr_b16 {vr(48,2)}, v28\nds_read_b64_tr_b16 {vr(50,2)}, v29\ns_waitcnt lgkmcnt(0)")
    for t in range(5):
        a(f"buffer_store_dwordx4 {vr(32+4*t)}, v21, {SWS}, s91 offen sc1 ;@uncounted")
        if t < 4: a("s_add_u32 s91, s91, 18432")
    a("s_nop 1\nL_nowo2:")

def ln1_pre(a):
    for r in range(4): a(f"v_mov_b32 v{120+r}, 0x3f803f80")
    a("s_waitcnt vmcnt(32)")
    ln_stats(a, 5, R1, 120, 24, 64, 104, 0)
    cnt = 0
    for k in range(5):
        for r in range(5):
            u = 24 + 8*(cnt & 1); cnt += 1
            unpack(a, u, R1(r, k)); norm(a, u, 104 + 2*r); pack(a, R1(r, k), u)

def early_flags(a):
    a(f"""s_cmp_eq_u32 s85, 1
    s_cbranch_scc0 L_nofw
    s_lshl_b32 s4, {sB}, 2
    s_add_u32 s4, s4, {F_W - 112*4}
    v_mov_b32 v4, {sTAG}
    s_mov_b64 exec, 1
    buffer_store_dword v4, off, {SWS}, s4 sc1 ;@uncounted
    s_mov_b64 exec, -1
    L_nofw:
    s_cmp_eq_u32 {sW}, 0
    s_cselect_b32 s4, {sB}, 0
    s_cmp_ge_u32 s4, 18
    s_cselect_b32 s4, s4, 99
    s_cmp_lt_u32 s4, 54
    s_cbranch_scc0 L_nofm
    s_lshl_b32 s4, s4, 2
    s_add_u32 s4, s4, {F_M - 18*4}
    v_mov_b32 v4, {sTAG}
    s_mov_b64 exec, 1
    buffer_store_dword v4, off, {SWS}, s4 sc1 ;@uncounted
    s_mov_b64 exec, -1
    L_nofm:""")

def ffn_decode(a):
    a(f"""s_and_b32 s22, {sB}, 7
    s_lshr_b32 s23, {sB}, 3
    s_lshl_b32 s23, s23, 2
    s_add_u32 s23, s23, {sW}""")
    a(f"""s_mul_i32 s24, s23, 241
    s_lshr_b32 s24, s24, 13
    s_mul_i32 s25, s24, 34
    s_sub_u32 s25, s23, s25
    s_add_u32 s25, s25, 128""")
    for grp, rem in ((0, "s23"), (1, "s25")):
        a(f"""s_mul_i32 s26, {rem}, 57
        s_lshr_b32 s26, s26, 9
        s_mul_i32 s27, s26, 9
        s_sub_u32 s27, {rem}, s27
        s_mul_i32 s4, s26, {32*9216}
        s_mul_i32 s5, s22, 1152
        s_add_u32 s4, s4, s5
        s_lshl_b32 s7, s27, 7
        s_add_u32 s4, s4, s7
        s_mul_i32 s5, s22, {576*1152}
        s_mul_i32 s6, s26, {32*1152}
        s_add_u32 s5, s5, s6
        s_add_u32 s5, s5, s7
        s_mul_i32 s6, s22, 36
        s_lshl_b32 s7, s27, 2
        s_add_u32 s6, s6, s7
        s_mul_i32 s6, s6, 18
        s_add_u32 s6, s6, s26
        s_lshl_b32 s7, s6, 11
        s_add_u32 s7, s7, {WGU_SW}
        s_lshl_b32 s6, s6, 10
        s_add_u32 s6, s6, {WD_SW}""")
        if grp == 0:
            a("s_mov_b32 s10, s4\ns_mov_b32 s11, s7\ns_mov_b32 s12, s5\ns_mov_b32 s13, s6")
        else:
            a(f"""s_lshl_b32 s8, s24, 10
            s_add_u32 s7, s7, s8
            s_cmp_eq_u32 s24, 2
            s_cselect_b32 s14, s5, s4
            s_cselect_b32 s15, s6, s7
            s_mov_b32 s16, 36864
            s_cselect_b32 s16, 18432, s16
            s_movk_i32 s17, 9216
            s_cselect_b32 s17, 1152, s17
            s_cselect_b32 s72, s48, s40
            s_cselect_b32 s73, s49, s41
            s_cmp_eq_u32 s24, 1
            s_cselect_b32 s72, s44, s72
            s_cselect_b32 s73, s45, s73
            s_mov_b32 s74, {D*F*2}
            s_cmp_ge_u32 s24, 3
            s_cselect_b32 s74, 0, s74
            s_cselect_b32 s15, 0x7ff00000, s15
            s_mov_b32 s75, 0x20000
            s_mov_b32 s18, s24""")
    a(f"s_lshl_b32 s19, {sW}, 14\ns_add_u32 s19, s19, {ZB}")

def ffn_dma_fillers():
    f = []
    class C:
        def __call__(self, s):
            for l in s.split("\n"):
                if l.strip(): f.append(l.strip())
    c = C()
    dma_chunk(c, "v150", 0, "v4", "v5"); dma_chunk(c, "v151", 1, "v4", "v5")
    c(f"""v_lshlrev_b32 v150, 4, v150
    v_lshlrev_b32 v151, 4, v151
    v_lshrrev_b32 v6, 3, {vL}
    v_mul_u32_u24 v4, 9216, v6
    v_add_u32 v144, v4, v150
    v_add_u32 v145, v4, v151
    v_mul_u32_u24 v4, 1152, v6
    v_add_u32 v146, v4, v150
    v_add_u32 v147, v4, v151
    v_mul_u32_u24 v4, s17, v6
    v_add_u32 v148, v4, v150
    v_add_u32 v149, v4, v151""")
    for it in range(4):
        srd = [SWG, SWU, SWD, "s[72:75]"][it]
        src = ["s10", "s10", "s12", "s14"][it]
        vb = [144, 144, 146, 148][it]
        for ii in range(4):
            g = [f"s_add_u32 m0, s19, {it*4096 + ii*1024}"]
            if it < 3: g.append(f"s_add_u32 s20, {src}, {ii*8*[9216, 9216, 1152][it]}")
            elif ii == 0: g.append(f"s_mov_b32 s20, {src}\ns_lshl_b32 s21, s17, 3")
            else: g.append("s_add_u32 s20, s20, s21")
            g.append(f"buffer_load_dwordx4 v{vb + (ii&1)}, {srd}, s20 offen lds")
            f.append("\n".join(g))
    return f

def rec_fillers(w):
    f = []; jobs = []
    class C:
        def __call__(self, s):
            for l in s.split("\n"):
                if l.strip(): f.append(l.strip())
    c = C()
    spec = {0: [(0, 0, 'K', None), (1, 1, 'K', None), (2, 9, 'Q', None), (3, 10, 'Q', None)],
            1: [(0, 2, 'K', None), (1, 3, 'K', None), (2, 11, 'Q', None), (3, 12, 'Q', None)],
            2: [(1, 5, 'V', None), (2, 6, 'V', None), (0, 4, 'K', 'lo'), (0, 4, 'V', 'hi')],
            3: [(0, 7, 'V', None), (1, 8, 'V', None), (2, 13, 'Q', 'lo')]}[w]
    for n, (tau, T, kind, ex) in enumerate(spec):
        for p in range(2): P1.rec_addr(c, f"v{152+2*n+p}", T, p, kind)
        jobs.append((tau, kind, 152 + 2*n, ex))
    return f, jobs

ACC1 = lambda tau, rt: 24 + 4*(5*tau + rt)
BB1 = lambda s, rt: 104 + 20*(s & 1) + 4*rt

def qkv_gemm(a, w):
    units = [(t, rt) for rt in range(5) for t in range(4) if t < 2 or rt > 0] if w < 2 else [(t, rt) for rt in range(5) for t in range(3)]
    rf, jobs = rec_fillers(w)
    fill = ffn_dma_fillers() + rf + [f"""s_and_b32 s4, {sB}, 63
        s_lshr_b32 s4, s4, 3
        s_mul_i32 s4, s4, 72
        s_add_u32 s4, s4, {F_W - 36*4}""", f"v_lshlrev_b32 v160, 2, {vL}", f"v_add_u32 v4, {F_M}, v160", "v_add_u32 v160, s4, v160",
        f"v_cmp_gt_u32 vcc, 36, {vL}", "v_cndmask_b32 v160, v160, v4, vcc"]
    def rd(s, rt):
        ad, off = ("v21", rt*HRT) if rt < 3 else ("v22", (rt-3)*HRT)
        return f"ds_read_b128 {vr(BB1(s, rt))}, {ad} offset:{off + s*1024}"
    for rt in range(5): a(rd(0, rt))
    for s in range(18):
        a("s_waitcnt lgkmcnt(0)")
        nxt = [rd(s+1, rt) for rt in range(5)] if s < 17 else []
        for n, (tau, rt) in enumerate(units):
            acc = vr(ACC1(tau, rt))
            a(f"v_mfma_f32_16x16x32_bf16 {acc}, {wfrag(tau, s)}, {vr(BB1(s, rt))}, {acc if s else 0}")
            if nxt and n % 2 == 0: a(nxt.pop(0))
            elif fill: a(fill.pop(0))
        assert not nxt
    assert not fill, len(fill)
    return jobs

def rec_write(a, jobs):
    for tau, kind, reg, ex in jobs:
        if ex == 'lo': a("s_mov_b32 exec_lo, -1\ns_mov_b32 exec_hi, 0")
        if ex == 'hi': a("s_mov_b32 exec_lo, 0\ns_mov_b32 exec_hi, -1")
        n = 0
        for rt in range(5):
            if kind == 'Q' and rt == 0: continue
            acc = ACC1(tau, rt)
            for p in range(2):
                if kind == 'V':
                    a(f"ds_write_b64 v{reg+p}, {vr(acc+2*p,2)} offset:{rt*1280}")
                else:
                    t = 4 + (n % 3); n += 1
                    a(f"v_cvt_pk_bf16_f32 v{t}, v{acc+2*p}, v{acc+2*p+1}")
                    a(f"ds_write_b32 v{reg+p}, v{t} offset:{(rt - (kind == 'Q'))*768}")
    a("s_mov_b64 exec, -1")

def z_tr(a):
    a(f"v_mov_b32 v162, v160\nv_lshrrev_b32 v6, 2, {vN}\nv_lshl_add_u32 v163, {vQ}, 3, v6")
    tr_addr(a, "v8", "v163", "v4", "v5")
    a("v_add_u32 v163, 4, v163"); tr_addr(a, "v9", "v163", "v4", "v5")
    a(f"v_lshl_add_u32 v163, {vQ}, 2, v6"); tr_addr(a, "v10", "v163", "v4", "v5")
    a("v_add_u32 v163, 16, v163"); tr_addr(a, "v11", "v163", "v4", "v5")
    for r in range(8, 12): a(f"v_add_u32 v{r}, s19, v{r}")
    a("""s_cmp_eq_u32 s18, 2
    s_cselect_b64 vcc, -1, 0
    v_cndmask_b32 v12, v8, v10, vcc
    v_cndmask_b32 v13, v9, v11, vcc""")
    for tau in range(1, 4):
        for k in range(6): a(f"v_xor_b32 v{144 + 6*(tau-1) + k}, {32*tau}, v{8+k}")
    vmem_poll(a, "pw", "v162", 54, wave=None, first_issued=True)
    for it in range(4):
        k = [0, 0, 2, 4][it]
        for tau in range(4):
            x = 8 + k if tau == 0 else 144 + 6*(tau-1) + k
            b = 16*it + 4*tau
            a(f"ds_read_b64_tr_b16 {ar(b,2)}, v{x} offset:{it*4096}\nds_read_b64_tr_b16 {ar(b+2,2)}, v{x+1} offset:{it*4096}")

def z_store(a, vm, its):
    for it in its:
        dst = ["s11", "s11", "s13", "s15"][it]
        for tau in range(4):
            if it < 3: a(f"s_add_u32 s20, {dst}, {tau*[36864, 36864, 18432][it] + (1024 if it == 1 else 0)}")
            elif tau == 0: a(f"s_mov_b32 s20, {dst}")
            else: a("s_add_u32 s20, s20, s16")
            vm.issue(f"buffer_store_dwordx4 {ar(16*it + 4*tau)}, v21, {SWS}, s20 offen sc1", 'sw')

def poll_mod(a):
    a(f"""s_lshl_b32 s4, {sW}, 10
    s_add_u32 s5, s4, {MODT}
    s_add_u32 s6, s5, 4096
    s_cmp_eq_u32 {sW}, 0
    s_cselect_b32 s7, 8192, s4
    s_lshr_b32 s8, s7, 1
    s_add_u32 s7, s7, {MODT}
    s_lshr_b32 s4, s4, 1
    v_lshlrev_b32 v5, 3, {vL}
    v_add_u32 v5, {MV}, v5
    v_add_u32 v6, s8, v5
    v_add_u32 v5, s4, v5
    v_add_u32 v7, 2048, v5
    s_mov_b32 s89, 0
    L_pm:
    buffer_load_dwordx4 v[24:27], v21, {SWS}, s5 offen sc1
    buffer_load_dwordx4 v[28:31], v21, {SWS}, s6 offen sc1
    buffer_load_dwordx4 v[32:35], v21, {SWS}, s7 offen sc1
    s_add_u32 s89, s89, 1
    s_cmp_gt_u32 s89, {POLL_MAX}
    s_cbranch_scc1 L_pm_done
    s_waitcnt vmcnt(0)
    v_xor_b32 v25, {sTAG}, v25
    v_xor_b32 v27, {sTAG}, v27
    v_xor_b32 v29, {sTAG}, v29
    v_xor_b32 v31, {sTAG}, v31
    v_xor_b32 v33, {sTAG}, v33
    v_xor_b32 v35, {sTAG}, v35
    v_or3_b32 v25, v25, v27, v29
    v_or3_b32 v31, v31, v33, v35
    v_or_b32 v25, v25, v31
    v_cmp_ne_u32 vcc, 0, v25
    s_cbranch_vccnz L_pm
    L_pm_done:
    s_waitcnt vmcnt(0)
    ds_write2_b32 v5, v24, v26 offset1:1
    ds_write2_b32 v7, v28, v30 offset1:1
    ds_write2_b32 v6, v32, v34 offset1:1""")

def interleave(a, emit, fillers, every):
    t = Asm(); emit(t)
    n = 0; cond = False
    for l in t.ins:
        a(l)
        if l.startswith('s_cbranch'): cond = True
        if l.endswith(':'): cond = False
        if l.startswith(('v_', 'ds_')) and not cond:
            n += 1
            if n % every == 0 and fillers: a(fillers.pop(0))
    for f in fillers: a(f)

def wo_dma_fillers():
    f = [f"""s_mul_i32 s8, {sJ}, 90
    s_add_u32 s8, s8, {sW}
    s_lshl_b32 s8, s8, 10
    s_add_u32 s8, s8, {WO_SW}
    s_lshl_b32 s9, {sW}, 10
    s_add_u32 s9, s9, {P2.WOB}"""]
    for k in range(23):
        f.append(f"s_add_u32 m0, s9, {k*4096}\ns_add_u32 s20, s8, {k*4096}\nbuffer_load_dwordx4 v21, {SWS}, s20 offen sc1 lds")
    return f

def tail_prefetch(a, vm):
    a(f"""v_lshrrev_b32 v4, 1, {vQ}
    v_lshlrev_b32 v4, 8, v4
    v_lshl_add_u32 v4, {vN}, 4, v4
    v_and_b32 v5, 1, {vQ}
    v_lshl_add_u32 v4, v5, 3, v4
    v_mul_u32_u24 v5, 1152, {vN}
    v_lshl_add_u32 v5, {vQ}, 3, v5
    v_lshlrev_b32 v6, 4, {vQ}
    s_lshl_b32 s50, {sI}, 2
    s_mul_i32 s51, s50, 72
    s_lshl_b32 s52, {sJ}, 3
    s_lshl_b32 s53, {sW}, 1
    s_add_u32 s52, s52, s53
    s_add_u32 s52, s52, s51
    s_lshl_b32 s52, s52, 8
    s_add_u32 s52, s52, {X1}
    s_lshl_b32 s53, {sJ}, 2
    s_add_u32 s53, s53, {sW}
    s_lshl_b32 s54, s53, 6
    s_add_u32 s54, s54, {MOD + 5*2304}
    s_mul_i32 s55, {sI}, {64*1152}
    s_lshl_b32 s53, s53, 5
    s_add_u32 s55, s55, s53
    s_and_b32 s56, {sJ}, 1
    s_lshl_b32 s56, s56, 1
    s_and_b32 s57, {sW}, 1
    s_add_u32 s56, s56, s57
    s_lshr_b32 s57, {sJ}, 1
    s_add_u32 s58, s50, s57
    s_mul_i32 s59, s58, {16*1152}
    s_lshl_b32 s53, s56, 5
    s_add_u32 s59, s59, s53
    s_add_u32 s59, s59, 1024
    s_mul_i32 s58, s58, 72
    s_lshl_b32 s53, s56, 1
    s_add_u32 s58, s58, s53
    s_add_u32 s58, s58, 64
    s_lshl_b32 s58, s58, 8
    s_add_u32 s58, s58, {X1}
    s_lshl_b32 s53, s56, 6
    s_add_u32 s53, s53, {MOD + 5*2304 + 512*4}
    s_cmp_lt_u32 {sW}, 2
    s_cselect_b32 s51, 0, 0x7ff00000
    v_add_u32 v7, s51, v5
    v_add_u32 v17, s51, v21""")
    for r in range(4):
        vm.issue(f"buffer_load_dwordx2 {vr(64+2*r,2)}, v4, {SWS}, s52 offen sc1", 'tx')
        if r < 3: a(f"s_add_u32 s52, s52, {72*256}")
    vm.issue(f"buffer_load_dwordx4 v[72:75], v6, {SWS}, s54 offen sc1", 'tx')
    vm.issue(f"buffer_load_dwordx2 v[76:77], v4, {SWS}, s58 offen sc1", 'tx')
    vm.issue(f"buffer_load_dwordx4 v[80:83], v6, {SWS}, s53 offen sc1", 'tx')

def tail(a, vm, stamps):
    acc0 = 24
    vm.drain()
    a("s_barrier")
    a(f"""s_lshl_b32 s22, {sI}, 5
    s_add_u32 s22, s22, {F_P}
    s_lshl_b32 s23, {sJ}, 2
    s_add_u32 s23, s23, s22""")
    flag_store(a, vm, ["s23"])
    stamp(a, 26, stamps)
    a(f"v_lshlrev_b32 v8, 2, {vL}\nv_add_u32 v8, s22, v8\nv_mov_b32 v12, v7")
    vmem_poll(a, "pp", "v8", 8)
    a("v_mov_b32 v7, v12")
    a("s_barrier")
    stamp(a, 27, stamps)
    a(f"""s_mul_i32 s4, {sI}, 9
    s_add_u32 s5, s4, {sJ}
    s_lshl_b32 s5, s5, 5
    s_add_u32 s5, s5, {sW}
    s_lshl_b32 s5, s5, 11
    s_add_u32 s5, s5, {PART}""")
    for p in range(1, 8):
        a(f"s_add_u32 s6, {sJ}, {p}\ns_and_b32 s6, s6, 7\ns_lshl_b32 s6, s6, 13\ns_add_u32 s6, s6, s5")
        vm.issue(f"buffer_load_dwordx4 {vr(96+8*p)}, v21, {SWS}, s6 offen sc1", f'p{p}')
        vm.issue(f"buffer_load_dwordx4 {vr(100+8*p)}, v21, {SWS}, s6 offen offset:1024 sc1", f'p{p}')
    a(f"""s_add_u32 s5, s4, 8
    s_lshl_b32 s5, s5, 5
    s_add_u32 s5, s5, s56
    s_lshl_b32 s5, s5, 11
    s_add_u32 s5, s5, {PART}
    s_lshr_b32 s8, s57, 1
    s_lshl_b32 s8, s8, 10
    s_add_u32 s5, s5, s8
    s_and_b32 s8, s57, 1
    s_lshl_b32 s8, s8, 3
    s_add_u32 s5, s5, s8""")
    for p in range(8):
        vm.issue(f"buffer_load_dwordx2 {vr(160+2*p,2)}, v17, {SWS}, s5 offen sc1", 'p8')
        if p < 7: a("s_add_u32 s5, s5, 8192")
    def acc_add(dst, sreg, first=False):
        if first:
            a(f"""v_lshlrev_b32 v{dst}, 16, v{sreg}
            v_and_b32 v{dst+1}, {sMSK}, v{sreg}
            v_lshlrev_b32 v{dst+2}, 16, v{sreg+1}
            v_and_b32 v{dst+3}, {sMSK}, v{sreg+1}""")
        else:
            a(f"""v_lshlrev_b32 v8, 16, v{sreg}
            v_and_b32 v9, {sMSK}, v{sreg}
            v_lshlrev_b32 v10, 16, v{sreg+1}
            v_and_b32 v11, {sMSK}, v{sreg+1}
            v_pk_add_f32 {vr(dst,2)}, {vr(dst,2)}, v[8:9]
            v_pk_add_f32 {vr(dst+2,2)}, {vr(dst+2,2)}, v[10:11]""")
    def finish(acc, xr, gb, vaddr, soff):
        a(f"""v_lshlrev_b32 v8, 16, v{xr}
        v_and_b32 v9, {sMSK}, v{xr}
        v_lshlrev_b32 v10, 16, v{xr+1}
        v_and_b32 v11, {sMSK}, v{xr+1}
        v_pk_fma_f32 v[8:9], {vr(acc,2)}, {vr(gb,2)}, v[8:9]
        v_pk_fma_f32 v[10:11], {vr(acc+2,2)}, {vr(gb+2,2)}, v[10:11]
        v_cvt_pk_bf16_f32 v{acc}, v8, v9
        v_cvt_pk_bf16_f32 v{acc+1}, v10, v11""")
        vm.issue(f"buffer_store_dwordx2 {vr(acc,2)}, {vaddr}, {SOUT}, {soff} offen")
    for p in range(1, 8):
        vm.wait(f'p{p}')
        for r in range(4): acc_add(acc0 + 4*r, 96 + 8*p + 2*r)
    for r in range(4):
        finish(acc0 + 4*r, 64 + 2*r, 72, "v5", "s55")
        if r < 3: a(f"s_add_u32 s55, s55, {16*1152}")
    vm.wait('p8')
    for p in range(8): acc_add(84, 160 + 2*p, p == 0)
    finish(84, 76, 80, "v7", "s59")

def p3_setup(a):
    T1, T2, TT, PT = P3.sT1, P3.sT2, P3.TT, P3.PT
    a(f"""s_mul_i32 s26, {sI}, 57
    s_lshr_b32 s26, s26, 9
    s_mul_i32 s26, s26, 9
    s_sub_u32 s26, {sI}, s26
    s_mul_i32 s27, {sJ}, 36
    s_add_u32 s27, s27, {sW}""")
    for t in range(9):
        a(f"""s_add_u32 s88, s26, {t}
        s_cmp_ge_u32 s88, 9
        s_cselect_b32 s89, 9, 0
        s_sub_u32 s88, s88, s89
        s_lshl_b32 s{TT[t]}, s88, 11
        s_lshl_b32 s88, s88, 2
        s_add_u32 s88, s88, s27
        s_mul_i32 s88, s88, 36864
        s_add_u32 s{T1+t}, s88, {WGU_SW}""")
    a(f"s_mul_i32 s26, {sI}, 72\ns_add_u32 s26, s26, {sJ}")
    for t in range(9):
        if t == 0: a("s_mov_b32 s88, 8")
        else: a(f"s_add_u32 s88, {sJ}, {t}\ns_and_b32 s88, s88, 7")
        a(f"""s_lshl_b32 s89, s88, 2
        s_add_u32 s89, s89, s27
        s_mul_i32 s89, s89, 18432
        s_add_u32 s{T2+t}, s89, {WD_SW}
        s_lshl_b32 s88, s88, 3
        s_add_u32 s88, s88, s26
        s_lshl_b32 s88, s88, 2
        s_add_u32 s88, s88, {sW}
        s_lshl_b32 s88, s88, 11
        s_add_u32 s{PT[t]}, s88, {PART}""")
    for g in range(9): a(f"v_add_u32 v{8+g}, {4096*g}, v21")
    a(f"""s_cmp_lt_u32 {sW}, 2
    s_cselect_b32 s88, 0, 0x7ff00000
    v_add_u32 v17, s88, v12
    s_lshl_b32 s88, {sW}, 10
    v_add_u32 v18, s88, v21
    v_add_u32 v19, {3*HRT}, v18
    v_add_u32 v22, {3*HRT}, v21
    s_lshl_b32 s88, {sW}, 7
    s_add_u32 s88, s88, {MV}
    v_lshlrev_b32 v23, 5, {vQ}
    v_add_u32 v23, s88, v23""")

def x1_loads(a, vm):
    a(f"""s_lshl_b32 s88, {sI}, 2
    s_mul_i32 s88, s88, {HRT}
    s_lshl_b32 s89, {sW}, 10
    s_add_u32 s88, s88, s89
    s_add_u32 s88, s88, {X1}""")
    for r in range(4):
        for k in range(5):
            vm.issue(f"buffer_load_dwordx4 {vr(R2(r,k))}, v{8+k if k < 4 else 17}, {SWS}, s88 offen sc1", 'x1')
        if r < 3: a(f"s_add_u32 s88, s88, {HRT}")

NAMES = {}
def build(stamps=False):
    a = Asm(); vm = Vm(a)
    def st(i, name):
        NAMES[i] = name; stamp(a, i, stamps)
    prologue(a, "L_end")
    st(0, "start")
    a(f"s_add_u32 s8, s26, {EPOCH}\ns_addc_u32 s9, s27, 0\ns_load_dword {sTAG}, s[8:9], 0")
    map1(a)
    setup1(a)
    loads_mod(a)
    loads_x(a)
    setup1b(a)
    wo_dma(a)
    for s in range(8): P1.w_dma(a, s)
    tr_setup(a)
    a(f"s_waitcnt lgkmcnt(0)\ns_mul_i32 {sTAG}, {sTAG}, 0x9E3779B1\ns_add_u32 {sTAG}, {sTAG}, 0x7F4A7C15")
    ffn_decode(a)
    a(";@assume_drained")
    st(1, "issued")
    mod_compute(a)
    st(2, "mod pub")
    wo_tr(a)
    ln1_pre(a)
    st(3, "ln1 pre")
    a(";@assume_drained")
    a(f"s_cmp_lt_u32 {sW}, 2\ns_cbranch_scc0 L_stgB\n;@fork stg")
    P1.w_stage_rest(a, 4)
    a("s_branch L_stgE\nL_stgB:")
    P1.w_stage_rest(a, 3)
    a(";@join stg\nL_stgE:\ns_waitcnt vmcnt(0) lgkmcnt(0)")
    early_flags(a)
    st(4, "W staged")
    poll_mod(a)
    a("s_waitcnt lgkmcnt(0)\ns_barrier")
    st(5, "mod in")
    ln_apply(a, 5, R1, None, f"s_cmp_ge_u32 {sW}, 2", "m1")
    a("s_barrier")
    st(6, "h1 done")
    a(";@fork g")
    for w in range(4):
        if w: a(f";@restore g\nL_g{w}:")
        if w < 3: a(f"s_cmp_eq_u32 {sW}, {w}\ns_cbranch_scc0 L_g{w+1}")
        jobs = qkv_gemm(a, w)
        st(7, "qkv gemm")
        a(f"buffer_load_dword v7, v160, {SWS}, 0 offen sc1 ;@uncounted")
        a("s_barrier")
        rec_write(a, jobs)
        if w < 3: a("s_branch L_gE")
    a("L_gE:\n;@assume_drained")
    z_tr(a)
    a("s_waitcnt lgkmcnt(0)\ns_barrier")
    st(8, "rec done")
    a(f"s_mov_b32 s92, {sI}\ns_mov_b32 s93, {sJ}")
    map_M(a)
    a(f"s_mov_b32 s94, {sI}\ns_mov_b32 s95, {sJ}")
    fill = wo_dma_fillers()
    a(fill.pop(0))
    a(f"s_mov_b32 {sI}, s92\ns_mov_b32 {sJ}, s93")
    interleave(a, P1.attention, fill, 11)
    a("s_waitcnt lgkmcnt(0)\ns_barrier")
    st(9, "attn done")
    P1.o_store(a, SC1)
    a(f"""s_lshl_b32 s22, {sI}, 5
    s_lshl_b32 s23, {sJ}, 2
    s_add_u32 s22, s22, s23
    s_add_u32 s22, s22, {F_O}
    s_mov_b32 {sI}, s94
    s_mov_b32 {sJ}, s95
    s_waitcnt vmcnt(0)
    s_barrier""")
    flag_store(a, vm, ["s22"])
    st(10, "o pub")
    P2.p2_side_loads(a, vm, SC1)
    a(f"""s_lshl_b32 s88, {sW}, 10
    s_add_u32 m0, s88, {MV}
    s_add_u32 s88, s88, {MOD + 6912}""")
    vm.issue(f"buffer_load_dwordx4 v21, {SWS}, s88 offen sc1 lds", 'mv')
    a(f"s_mov_b32 m0, {MV + 4096}\ns_mov_b32 s88, {MOD + 6912 + 4096}")
    vm.issue(f"buffer_load_dwordx4 v21, {SWS}, s88 offen sc1 lds", 'mv')
    z_store(a, vm, [0, 1])
    a(f"s_lshl_b32 s22, {sI}, 5\ns_add_u32 s22, s22, {F_O}")
    smem_poll(a, "po", [("s22", 8, 8)])
    a("s_barrier")
    st(11, "o flags")
    P2.p2_o_loads(a, vm, SC1)
    z_store(a, vm, [2, 3])
    p2_gemm(a, vm)
    st(12, "wo gemm")
    P2.p2_epilogue(a, vm, SC1)
    a(f"""s_lshl_b32 s22, {sI}, 5
    s_lshl_b32 s23, {sJ}, 2
    s_add_u32 s22, s22, s23
    s_add_u32 s22, s22, {F_X}
    s_and_b32 s23, {sB}, 7
    s_lshl_b32 s23, s23, 7
    s_lshr_b32 s24, {sB}, 3
    s_lshl_b32 s24, s24, 2
    s_add_u32 s23, s23, s24
    s_add_u32 s23, s23, {F_S}""")
    map_F(a)
    vm.drain()
    a("s_barrier")
    flag_store(a, vm, ["s22", "s23"])
    st(13, "x1 pub")
    a(f"""s_lshl_b32 s22, {sI}, 5
    s_add_u32 s22, s22, {F_X}
    s_lshl_b32 s23, {sJ}, 7
    s_add_u32 s23, s23, {F_S}
    s_add_u32 s24, s23, 64""")
    a(f"""v_lshlrev_b32 v4, 2, {vL}
    v_add_u32 v5, s22, v4
    s_sub_u32 s23, s23, 32
    v_add_u32 v4, s23, v4
    v_cmp_gt_u32 vcc, 8, {vL}
    v_cndmask_b32 v4, v4, v5, vcc""")
    p3_setup(a)
    vmem_poll(a, "px", "v4", 40)
    a("s_barrier")
    st(14, "x1 flags")
    x1_loads(a, vm)
    for x in range(12): P3.stream_load(a, vm, x)
    for r in range(4): a(f"v_mov_b32 v{92+r}, 0x3f803f80")
    vm.wait('x1')
    st(15, "x1 landed")
    ln_stats(a, 4, R2, 92, 24, 56, 88, P3.HH)
    st(16, "ln2 stats")
    ln_apply(a, 4, R2, 88, f"s_cmp_lt_u32 {sW}, 2", "m2")
    st(17, "ln2 main")
    for x in range(12, P3.RING): P3.stream_load(a, vm, x)
    a(f"""s_and_b32 s88, {sW}, 1
    s_lshl_b32 s88, s88, 3
    s_lshr_b32 s89, {sW}, 1
    s_lshl_b32 s89, s89, 10
    s_add_u32 s88, s88, s89
    s_add_u32 s88, s88, {P3.HH}
    v_add_u32 v19, s88, v21
    s_barrier""")
    st(18, "ln2 bar")
    P3.gemm1(a, vm, False)
    a("s_waitcnt lgkmcnt(0)\ns_barrier")
    st(19, "gemm1")
    P3.gemm2(a, vm, SC1, keep_last=True, pre_last=lambda: tail_prefetch(a, vm))
    st(20, "gemm2")
    tail(a, vm, stamps)
    NAMES[26] = "part pub"; NAMES[27] = "part flags"
    a(f"""s_cmp_eq_u32 {sB}, 0
    s_cselect_b32 s4, {sW}, 1
    s_cmp_eq_u32 s4, 0
    s_cbranch_scc0 L_noep
    v_mov_b32 v4, {sTAG}
    s_mov_b32 s4, {EPOCH}
    s_mov_b64 exec, 1
    buffer_store_dword v4, off, {SWS}, s4 sc1
    s_mov_b64 exec, -1
    L_noep:""")
    if stamps: vm.drain()
    st(21, "end")
    stamp_flush(a, 0, 28, stamps)
    a("L_end:\ns_endpgm")
    return file_text("; adaLN block (sliding dilated attention + gated FFN), one persistent launch\n",
                     [dict(name=KNAME, body=a.finish(), vgpr=256, agpr=256, sgpr=102, grid=256, block=256, lds=163840)])

def p2_gemm(a, vm):
    a(f"v_add_u32 v22, {P2.WOB}, v21\nv_add_u32 v23, {P2.WOB + 3*18432}, v21")
    def rd(s, t):
        ad, off = ("v22", t*18432) if t < 3 else ("v23", (t-3)*18432)
        return f"ds_read_b128 {vr(152 + 20*(s%3) + 4*t)}, {ad} offset:{off + s*1024}"
    for s in range(2):
        for t in range(5): a(rd(s, t))
    for s in range(18):
        a(f"s_waitcnt lgkmcnt({5 if s < 17 else 0})")
        vm.wait(f'o{s}')
        for t in range(5):
            acc = vr(56 + 4*t)
            a(f"v_mfma_f32_16x16x32_bf16 {acc}, {vr(152 + 20*(s%3) + 4*t)}, {vr(80+4*s)}, {acc if s else 0}")
            if s + 2 < 18: a(rd(s+2, t))

if __name__ == "__main__":
    open(sys.argv[1], "w").write(build(len(sys.argv) > 2))
```

```python
from asm2 import *
S, D, F = 2048, 576, 4608
WO_SW  = 0
WGU_SW = 0x100000
WD_SW  = 0xC00000
MOD    = 0x1200000
O_X    = 0x1300000
X1     = 0x1600000
PART   = 0x1900000
FLAGS  = 0x2C00000
STAMPS = 0x3000000
WS_BYTES = 268435456
LOG2E = 1.4426950408889634

import struct
def fbits(x):
    return "0x%08x" % struct.unpack("<I", struct.pack("<f", x))[0]

SX, SQKV, SWO, SWG, SWU, SWD, SC, SMOD, SOUT, SWS = [f"s[{28+4*i}:{31+4*i}]" for i in range(10)]
sW = "s68"
sI = "s69"
sJ = "s70"
sB = "s2"
vL, vN, vQ = "v1", "v2", "v3"

def vr(b, n=4): return f"v[{b}:{b+n-1}]" if n > 1 else f"v{b}"
def ar(b, n=4): return f"a[{b}:{b+n-1}]" if n > 1 else f"a{b}"

def prologue(a, end_label, grid=256, t0=False):
    if t0: a("s_memrealtime s[98:99]")
    a(f"""
    s_cmp_ge_u32 s2, {grid}
    s_cbranch_scc1 {end_label}
    s_load_dwordx16 s[4:19], s[0:1], 0
    s_load_dwordx8 s[20:27], s[0:1], 64
    v_lshrrev_b32 v4, 6, v0
    v_and_b32 {vL}, 63, v0
    v_readfirstlane_b32 {sW}, v4
    v_and_b32 {vN}, 15, {vL}
    v_lshrrev_b32 {vQ}, 4, {vL}
    s_waitcnt lgkmcnt(0)
    """)
    srcs = [(4, S*D*2), (6, D*3*D*2), (8, D*D*2), (12, D*F*2), (14, D*F*2), (16, F*D*2), (18, D*2), (20, D*6*D*2), (22, S*D*2), (26, WS_BYTES)]
    for i, (p, n) in enumerate(srcs):
        b = 28 + 4*i
        a(f"s_mov_b32 s{b}, s{p}\ns_mov_b32 s{b+1}, s{p+1}\ns_mov_b32 s{b+2}, {n}\ns_mov_b32 s{b+3}, 0x20000")

def map_F(a):
    a(f"s_and_b32 {sJ}, {sB}, 7\ns_lshr_b32 {sI}, {sB}, 3")

def map_M(a):
    a(f"""s_and_b32 {sI}, {sB}, 7
    s_lshl_b32 {sI}, {sI}, 2
    s_lshr_b32 s4, {sB}, 6
    s_add_u32 {sI}, {sI}, s4
    s_lshr_b32 {sJ}, {sB}, 3
    s_and_b32 {sJ}, {sJ}, 7""")

def swz_g(a, dst, row, t0):
    a(f"""v_lshrrev_b32 {t0}, 1, {row}
    v_xor_b32 {dst}, {t0}, {row}
    v_lshrrev_b32 {dst}, 2, {dst}
    v_and_b32 {dst}, 1, {dst}
    v_and_b32 {t0}, 1, {t0}
    v_lshl_or_b32 {dst}, {dst}, 1, {t0}""")

def stamp(a, idx, enable):
    if not enable: return
    a(f"""s_memrealtime s[96:97]
    s_waitcnt lgkmcnt(0)
    v_writelane_b32 v0, s96, {idx}""")

def stamp_flush(a, lo, hi, enable, extra=()):
    if not enable: return
    a(f"""s_waitcnt vmcnt(0)
    s_lshl_b32 s98, s2, 2
    s_add_u32 s98, s98, {sW}
    s_lshl_b32 s98, s98, 8
    s_add_u32 s98, s98, {STAMPS}
    v_lshlrev_b32 v4, 2, {vL}
    s_mov_b32 exec_lo, {((((1 << hi) - 1) & ~((1 << lo) - 1)) | sum(1 << e for e in extra)) & 0xffffffff}
    s_mov_b32 exec_hi, {((((1 << hi) - 1) & ~((1 << lo) - 1)) | sum(1 << e for e in extra)) >> 32}
    buffer_store_dword v0, v4, {SWS}, s98 offen
    s_mov_b64 exec, -1""")

class Vm:
    def __init__(self, a):
        self.a = a; self.q = []
    def issue(self, text, tag=None):
        self.a(text); self.q.append(tag)
    def wait(self, *tags):
        idx = max((i for i, t in enumerate(self.q) if t in tags), default=-1)
        if idx < 0: return
        n = len(self.q) - 1 - idx
        self.a(f"s_waitcnt vmcnt({n})")
        self.q = self.q[idx+1:]
    def drain(self):
        self.a("s_waitcnt vmcnt(0)"); self.q = []
```

```python
import sys
from gen_common import *
from gen_k0 import tr_addr, dma_chunk
import gen_p1 as P1
import gen_p2 as P2
import gen_p3 as P3
from gen_p1 import HRT, STG, MV, TILES, wfrag, chunk_off16, sMSK, KB, VB, QB, OB

MODT  = MOD + 0x8000
EPOCH = FLAGS + 0x8000
F_O, F_X, F_S, F_P, F_W, F_M = [FLAGS + 0x1000*k for k in range(6)]
sTAG = "s3"
SC1 = "sc1"
WOSTG = 151552
ZB = 92160
POLL_MAX = 1 << 18
OOB = 0x7ffffff0

def map1(a):
    a(f"""s_and_b32 s4, {sB}, 7
    s_lshr_b32 s5, {sB}, 3
    s_lshr_b32 {sI}, s4, 1
    s_lshl_b32 {sI}, {sI}, 3
    s_lshr_b32 s6, s5, 2
    s_add_u32 {sI}, {sI}, s6
    s_and_b32 {sJ}, s4, 1
    s_lshl_b32 {sJ}, {sJ}, 2
    s_and_b32 s6, s5, 3
    s_add_u32 {sJ}, {sJ}, s6""")

def smem_poll(a, name, chunks, wave=1):
    a(f"s_cmp_eq_u32 {sW}, {wave}\ns_cbranch_scc0 L_{name}_skip\ns_mov_b32 s89, 0")
    for ci, (soff, nd, nvalid) in enumerate(chunks):
        a(f"""s_add_u32 s86, s64, {soff}
        s_addc_u32 s87, s65, 0
        L_{name}_{ci}:
        s_load_dwordx{nd} s[40:{40+nd-1}], s[86:87], 0 glc
        s_add_u32 s89, s89, 1
        s_cmp_gt_u32 s89, {POLL_MAX}
        s_cbranch_scc1 L_{name}_to
        s_waitcnt lgkmcnt(0)""")
        for k in range(nvalid): a(f"s_xor_b32 s{40+k}, s{40+k}, {sTAG}")
        n = nvalid; step = 1
        while step < n:
            for k in range(0, n - step, 2*step): a(f"s_or_b32 s{40+k}, s{40+k}, s{40+k+step}")
            step *= 2
        if nvalid == 1: a("s_cmp_lg_u32 s40, 0")
        a(f"s_cbranch_scc1 L_{name}_{ci}")
    a(f"L_{name}_to:\ns_waitcnt lgkmcnt(0)\nL_{name}_skip:")

def vmem_poll(a, name, vaddr, nlanes, wave=1, first_issued=False):
    if wave is not None: a(f"s_cmp_eq_u32 {sW}, {wave}\ns_cbranch_scc0 L_{name}_skip")
    m = (1 << nlanes) - 1
    a(f"s_mov_b32 s89, 0\ns_mov_b32 exec_lo, {m & 0xffffffff}\ns_mov_b32 exec_hi, {m >> 32}")
    if first_issued: a(f"s_branch L_{name}_chk")
    a(f"""L_{name}:
    buffer_load_dword v7, {vaddr}, {SWS}, 0 offen sc1 ;@uncounted
    s_add_u32 s89, s89, 1
    s_cmp_gt_u32 s89, {POLL_MAX}
    s_cbranch_scc1 L_{name}_to
    L_{name}_chk:
    s_waitcnt vmcnt(0)
    v_cmp_ne_u32 vcc, {sTAG}, v7
    s_cbranch_vccnz L_{name}
    L_{name}_to:
    s_waitcnt vmcnt(0)
    s_mov_b64 exec, -1
    L_{name}_skip:""")

def flag_store(a, vm, addr_exprs, wave=0):
    L = a.label("L_fl")
    a(f"s_cmp_eq_u32 {sW}, {wave}\ns_cbranch_scc0 {L}\nv_mov_b32 v4, {sTAG}\ns_mov_b64 exec, 1")
    for e in addr_exprs:
        a(f"buffer_store_dword v4, off, {SWS}, {e} sc1 ;@uncounted")
    a(f"s_mov_b64 exec, -1\n{L}:")

def ln_stats(a, NR, raw, ones, SA, RD, P, ST):
    for k in range(5):
        for r in range(NR):
            x = vr(raw(r, k))
            a(f"v_mfma_f32_16x16x32_bf16 {vr(SA+8*r)}, {vr(ones)}, {x}, {vr(SA+8*r) if k else 0}")
            a(f"v_mfma_f32_16x16x32_bf16 {vr(SA+8*r+4)}, {x}, {x}, {vr(SA+8*r+4) if k else 0}")
    a(f"""s_mul_i32 s89, {sW}, {NR*128}
    s_add_u32 s89, s89, {ST}
    v_lshlrev_b32 v5, 3, {vN}
    v_add_u32 v6, {ST}, v5
    v_add_u32 v5, s89, v5""")
    for r in range(NR):
        b = SA + 8*r
        a(f"""v_cndmask_b32 v{b+1}, v{b+4}, v{b+5}, s[76:77]
        v_cndmask_b32 v{b+1}, v{b+1}, v{b+6}, s[78:79]
        v_cndmask_b32 v{b+1}, v{b+1}, v{b+7}, s[80:81]""")
    a("s_mov_b64 exec, s[82:83]")
    for r in range(NR): a(f"ds_write_b64 v5, {vr(SA+8*r,2)} offset:{r*128}")
    a("s_mov_b64 exec, -1\ns_waitcnt lgkmcnt(0)\ns_barrier")
    for r in range(NR):
        for w in range(4): a(f"ds_read_b64 {vr(RD+8*r+2*w,2)}, v6 offset:{(w*NR + r)*128}")
    for r in range(NR):
        if r % 2 == 0: a(f"s_waitcnt lgkmcnt({max(0, min(15, 4*(NR - r - 2)))})")
        b = RD + 8*r
        a(f"""v_pk_add_f32 {vr(b,2)}, {vr(b,2)}, {vr(b+2,2)}
        v_pk_add_f32 {vr(b+4,2)}, {vr(b+4,2)}, {vr(b+6,2)}
        v_pk_add_f32 {vr(b,2)}, {vr(b,2)}, {vr(b+4,2)}""")
    R = range(NR)
    m = lambda r: f"v{RD+8*r}"; q = lambda r: f"v{RD+8*r+1}"
    for r in R: a(f"v_mul_f32 {m(r)}, {fbits(1.0/576)}, {m(r)}")
    for r in R: a(f"v_mul_f32 {q(r)}, {fbits(1.0/576)}, {q(r)}")
    for r in R: a(f"v_fma_f32 {q(r)}, -{m(r)}, {m(r)}, {q(r)}")
    for r in R: a(f"v_max_f32 {q(r)}, 0, {q(r)}")
    def rnd(f):
        for r in R: a(f"v_cvt_pk_bf16_f32 {f(r)}, {f(r)}, {f(r)}")
        for r in R: a(f"v_and_b32 {f(r)}, {sMSK}, {f(r)}")
    rnd(m); rnd(q)
    for r in R: a(f"v_add_f32 {q(r)}, {fbits(1e-5)}, {q(r)}")
    rnd(q)
    for r in R: a(f"v_sqrt_f32 {q(r)}, {q(r)}")
    rnd(q)
    for r in R: a(f"v_rcp_f32 v{P+2*r}, {q(r)}")
    for r in R: a(f"v_mul_f32 v{P+2*r+1}, -{m(r)}, v{P+2*r}")

def unpack(a, dst, src):
    for d in range(4):
        a(f"v_lshlrev_b32 v{dst+2*d}, 16, v{src+d}\nv_and_b32 v{dst+2*d+1}, {sMSK}, v{src+d}")
def norm(a, u, P):
    for d in range(4):
        a(f"v_pk_fma_f32 {vr(u+2*d,2)}, {vr(u+2*d,2)}, {vr(P,2)}, {vr(P,2)} op_sel:[0,0,1] op_sel_hi:[1,0,1]")
def modfma(a, u, b):
    for d in range(4):
        a(f"v_pk_fma_f32 {vr(u+2*d,2)}, {vr(u+2*d,2)}, {vr(b+2*d,2)}, {vr(b+8+2*d,2)}")
def pack(a, dst, u):
    for d in range(4): a(f"v_cvt_pk_bf16_f32 v{dst+d}, v{u+2*d}, v{u+2*d+1}")
def mread(a, k):
    b = 24 + 16*(k & 1)
    a(f"""ds_read_b128 {vr(b)}, v23 offset:{2304 + k*512}
    ds_read_b128 {vr(b+4)}, v23 offset:{2304 + k*512 + 16}
    ds_read_b128 {vr(b+8)}, v23 offset:{k*512}
    ds_read_b128 {vr(b+12)}, v23 offset:{k*512 + 16}""")

def ln_apply(a, NR, raw, P, has5, name):
    mread(a, 0)
    cnt = 0
    for k in range(5):
        if k == 4: a(f"{has5}\ns_cbranch_scc0 L_{name}_e")
        if k < 4: mread(a, k+1)
        for r in range(NR):
            u = 56 + 8*(cnt & 1); t = 72 + 4*(cnt & 1); cnt += 1
            unpack(a, u, raw(r, k))
            if P is not None: norm(a, u, P + 2*r)
            if r == 0: a(f"s_waitcnt lgkmcnt({4 if k == 0 else NR + 4 if k < 4 else NR})")
            modfma(a, u, 24 + 16*(k & 1)); pack(a, t, u)
            ad, off = ("v18", r*HRT) if r < 3 else ("v19", (r-3)*HRT)
            a(f"ds_write_b128 {ad}, {vr(t)} offset:{off + 4096*k}")
    a(f"s_waitcnt lgkmcnt(0)\nL_{name}_e:\n;@assume_drained_lg\ns_waitcnt lgkmcnt(0)")

R1 = lambda r, k: 124 + 4*(5*r + k)
R2 = lambda r, k: 144 + 4*(5*r + k)

def setup1(a):
    tabs = []
    for w in range(4):
        e = []
        for T in TILES[w] + [99]*(4-len(TILES[w])):
            e += [chunk_off16(T, 0), chunk_off16(T, 1)]
        tabs.append((e[0] | e[1] << 8 | e[2] << 16 | e[3] << 24, e[4] | e[5] << 8 | e[6] << 16 | e[7] << 24))
    a(f"""s_sub_u32 s88, 3, {sW}
    s_lshl_b32 s4, {sI}, 6
    s_movk_i32 s7, 1152
    s_lshl_b32 s5, s88, 6
    v_add_u32 v18, s4, {vN}
    v_mul_lo_u32 v18, v18, s7
    v_lshl_add_u32 v18, {vQ}, 4, v18
    v_add_u32 v18, s5, v18
    s_sub_i32 s4, s4, 16
    v_add_u32 v19, s4, {vN}
    v_max_i32 v19, 0, v19
    v_mul_lo_u32 v19, v19, s7
    v_lshl_add_u32 v19, {vQ}, 4, v19
    v_add_u32 v19, s5, v19
    s_cmp_ge_u32 {sW}, 2
    s_cselect_b32 s5, 0, 0x7ff00000
    v_add_u32 v20, s5, v18
    v_add_u32 v22, s5, v19
    v_lshlrev_b32 v21, 4, {vL}""")

def loads_mod(a):
    a(f"""s_cmp_lt_u32 {sB}, 54
    s_cbranch_scc0 L_nomod1
    s_mul_i32 s4, {sW}, 144
    v_lshrrev_b32 v4, 3, {vL}
    v_add_u32 v16, s4, v4
    v_lshlrev_b32 v17, 1, v16
    s_movk_i32 s5, 6912
    v_mul_lo_u32 v16, v16, s5
    v_and_b32 v4, 7, {vL}
    v_lshl_add_u32 v16, v4, 4, v16
    s_lshl_b32 s5, {sB}, 7
    v_add_u32 v16, s5, v16""")
    for t in range(18):
        a(f"s_mov_b32 s4, {55296*t}\nbuffer_load_dwordx4 {vr(48+4*t)}, v16, {SMOD}, s4 offen")
    for t in range(18):
        a(f"buffer_load_ushort v{24+t}, v17, {SC}, 0 offen offset:{16*t}")
    a("L_nomod1:")

def loads_x(a):
    for k in range(5):
        for r in range(5):
            v = ("v19" if r == 0 else "v18") if k < 4 else ("v22" if r == 0 else "v20")
            so = "0" if r <= 1 else f"s{3 + r}"
            if k == 0 and r >= 2: a(f"s_mov_b32 s{3+r}, {(r-1)*HRT}")
            a(f"buffer_load_dwordx4 {vr(R1(r,k))}, {v}, {SX}, {so} offen offset:{256*k}")

def setup1b(a):
    tabs = []
    for w in range(4):
        e = []
        for T in TILES[w] + [99]*(4-len(TILES[w])):
            e += [chunk_off16(T, 0), chunk_off16(T, 1)]
        tabs.append((e[0] | e[1] << 8 | e[2] << 16 | e[3] << 24, e[4] | e[5] << 8 | e[6] << 16 | e[7] << 24))
    a(f"s_mov_b32 s4, {tabs[0][0]}\ns_mov_b32 s5, {tabs[0][1]}")
    for w in range(1, 4):
        a(f"s_cmp_eq_u32 {sW}, {w}\ns_cselect_b32 s4, {tabs[w][0]}, s4\ns_cselect_b32 s5, {tabs[w][1]}, s5")
    a(f"""s_mul_i32 s6, {sJ}, 144
    s_movk_i32 s7, 3456
    v_lshrrev_b32 v10, 3, {vL}
    v_mul_lo_u32 v10, v10, s7
    v_add_u32 v10, s6, v10
    v_mov_b32 v11, s4
    v_mov_b32 v12, s5
    v_mov_b32 v13, {OOB}""")
    for odd in range(2):
        dma_chunk(a, f"v{14+odd}", odd, "v4", "v5")
        a(f"""v_cmp_gt_u32 vcc, 4, v{14+odd}
        v_cndmask_b32 v4, v12, v11, vcc
        v_and_b32 v5, 3, v{14+odd}
        v_lshlrev_b32 v5, 3, v5
        v_lshrrev_b32 v4, v5, v4
        v_and_b32 v4, 0xff, v4
        v_lshl_add_u32 v5, v4, 4, v10
        v_cmp_eq_u32 vcc, 0xff, v4
        v_cndmask_b32 v{8+odd}, v5, v13, vcc""")
    a(f"s_lshl_b32 s84, {sW}, 15\ns_add_u32 s84, s84, {STG}")

def wo_dma(a):
    a(f"""s_cmp_ge_u32 {sB}, 112
    s_cselect_b32 s85, {sW}, 0
    s_cmp_eq_u32 s85, 1
    s_cbranch_scc0 L_nowo1
    s_sub_u32 s4, {sB}, 112
    s_mul_i32 s5, s4, 57
    s_lshr_b32 s5, s5, 10
    s_mul_i32 s6, s5, 18
    s_sub_u32 s6, s4, s6
    s_mul_i32 s7, s6, {32*1152}
    s_mul_i32 s8, s5, 144
    s_add_u32 s7, s7, s8
    s_mul_i32 s5, s5, 90
    s_add_u32 s5, s5, s6
    s_lshl_b32 s5, s5, 10
    s_add_u32 s91, s5, {WO_SW}
    s_movk_i32 s8, 1152
    v_lshrrev_b32 v4, 3, {vL}
    v_mul_lo_u32 v4, v4, s8
    v_lshl_add_u32 v5, v15, 4, v4
    v_lshl_add_u32 v4, v14, 4, v4
    v_mul_lo_u32 v6, {vL}, s8
    v_add_u32 v6, 128, v6
    v_cmp_gt_u32 vcc, 32, {vL}
    v_cndmask_b32 v6, v13, v6, vcc
    s_mov_b32 m0, {WOSTG + 4096}
    s_nop 0
    buffer_load_dwordx4 v6, {SWO}, s7 offen lds""")
    for ii in range(4):
        a(f"s_mov_b32 m0, {WOSTG + ii*1024}\ns_nop 0\nbuffer_load_dwordx4 v{4 + (ii&1)}, {SWO}, s7 offen lds")
        if ii < 3: a(f"s_add_u32 s7, s7, {8*1152}")
    a("L_nowo1:")

def tr_setup(a):
    a(f"v_lshrrev_b32 v6, 2, {vN}\nv_lshl_add_u32 v7, {vQ}, 3, v6")
    tr_addr(a, "v10", "v7", "v4", "v5")
    a("v_add_u32 v7, 4, v7"); tr_addr(a, "v11", "v7", "v4", "v5")
    for tau in range(1, 4):
        a(f"v_xor_b32 v{10+2*tau}, {32*tau}, v10\nv_xor_b32 v{11+2*tau}, {32*tau}, v11")
    for r in range(10, 18): a(f"v_add_u32 v{r}, s84, v{r}")
    a(f"""s_lshl_b32 s4, s88, 10
    v_add_u32 v18, s4, v21
    v_add_u32 v19, {3*HRT}, v18
    v_add_u32 v22, {3*HRT}, v21
    s_lshl_b32 s4, s88, 7
    s_add_u32 s4, s4, {MV}
    v_lshlrev_b32 v23, 5, {vQ}
    v_add_u32 v23, s4, v23""")
    P1.ln_masks(a)

def mod_compute(a):
    MZ = 4096
    a(f"""s_cmp_lt_u32 {sB}, 54
    s_cbranch_scc0 L_nomod2
    s_waitcnt vmcnt(57)
    v_mov_b32 v42, {fbits(-LOG2E)}""")
    for t in range(18): a(f"v_lshlrev_b32 v{24+t}, 16, v{24+t}")
    for t0 in range(0, 18, 6):
        T = range(t0, t0+6); tmp = lambda t: f"v{224 + t - t0}"
        for t in T: a(f"v_mul_f32 {tmp(t)}, v42, v{24+t}")
        for t in T: a(f"v_exp_f32 {tmp(t)}, {tmp(t)}")
        for t in T: a(f"v_add_f32 {tmp(t)}, 1.0, {tmp(t)}")
        for t in T: a(f"v_rcp_f32 {tmp(t)}, {tmp(t)}")
        for t in T: a(f"v_mul_f32 {tmp(t)}, {tmp(t)}, v{24+t}")
        for t in T: a(f"v_cvt_pk_bf16_f32 {tmp(t)}, {tmp(t)}, {tmp(t)}")
        for t in T: a(f"v_and_b32 v{24+t}, {sMSK}, {tmp(t)}")
    for t in range(18):
        pp = vr(24 + (t & ~1), 2)
        sel = "op_sel:[0,1,0] op_sel_hi:[1,1,1]" if t & 1 else "op_sel:[0,0,0] op_sel_hi:[1,0,1]"
        sel2 = "op_sel:[0,0] op_sel_hi:[1,0]"
        unpack(a, 240, 48 + 4*t)
        for d in range(4):
            if t == 0: a(f"v_pk_mul_f32 {vr(224+2*d,2)}, {vr(240+2*d,2)}, {pp} {sel2}")
            else: a(f"v_pk_fma_f32 {vr(224+2*d,2)}, {vr(240+2*d,2)}, {pp}, {vr(224+2*d,2)} {sel}")
    for e in range(8):
        a(f"v_add_f32_dpp v{224+e}, v{224+e}, v{224+e} row_ror:8 row_mask:0xf bank_mask:0xf")
    for op in ("v_permlane16_swap_b32", "v_permlane32_swap_b32"):
        for e in range(8): a(f"v_mov_b32 v{232+e}, v{224+e}")
        for e in range(8): a(f"{op} v{224+e}, v{232+e}")
        for e in range(8): a(f"v_add_f32 v{224+e}, v{224+e}, v{232+e}")
    a(f"""v_and_b32 v4, 7, {vL}
    v_lshlrev_b32 v4, 5, v4
    s_lshl_b32 s4, {sW}, 8
    s_add_u32 s4, s4, {MZ}
    v_add_u32 v4, s4, v4
    ds_write_b128 v4, v[224:227]
    ds_write_b128 v4, v[228:231] offset:16
    s_waitcnt lgkmcnt(0)
    s_barrier
    s_cmp_eq_u32 {sW}, 0
    s_cbranch_scc0 L_nomod2
    v_lshlrev_b32 v4, 2, {vL}
    v_add_u32 v5, {MZ}, v4
    ds_read_b32 v24, v5
    ds_read_b32 v25, v5 offset:256
    ds_read_b32 v26, v5 offset:512
    ds_read_b32 v27, v5 offset:768
    s_mul_i32 s4, {sB}, 57
    s_lshr_b32 s4, s4, 9
    s_cmp_eq_u32 s4, 1
    s_cselect_b32 s5, 1, 0
    s_cmp_eq_u32 s4, 4
    s_cselect_b32 s5, 1, s5
    s_cmp_eq_u32 s5, 1
    s_cselect_b64 vcc, -1, 0
    s_waitcnt lgkmcnt(0)
    v_add_f32 v24, v24, v25
    v_add_f32 v26, v26, v27
    v_add_f32 v24, v24, v26
    v_cvt_pk_bf16_f32 v24, v24, v24
    v_and_b32 v24, {sMSK}, v24
    v_add_f32 v25, 1.0, v24
    v_cvt_pk_bf16_f32 v25, v25, v25
    v_and_b32 v25, {sMSK}, v25
    v_cndmask_b32 v24, v24, v25, vcc
    s_cmp_lt_u32 {sB}, 18
    s_cbranch_scc0 L_modplain
    v_mov_b32 v25, {sTAG}
    v_lshlrev_b32 v4, 3, {vL}
    s_lshl_b32 s4, {sB}, 9
    s_add_u32 s4, s4, {MODT}
    buffer_store_dwordx2 v[24:25], v4, {SWS}, s4 offen sc1 ;@uncounted
    s_branch L_nomod2
    L_modplain:
    s_lshl_b32 s4, {sB}, 8
    s_add_u32 s4, s4, {MOD}
    buffer_store_dword v24, v4, {SWS}, s4 offen sc1 ;@uncounted
    L_nomod2:""")

def wo_tr(a):
    a(f"""s_cmp_eq_u32 s85, 1
    s_cbranch_scc0 L_nowo2
    s_waitcnt vmcnt(32)
    v_lshrrev_b32 v6, 2, {vN}
    v_lshl_add_u32 v7, {vQ}, 3, v6""")
    from gen_common import swz_g
    for hf in range(2):
        if hf: a("v_add_u32 v7, 4, v7")
        swz_g(a, "v4", "v7", "v5")
        a(f"""v_lshlrev_b32 v4, 1, v4
        v_and_b32 v5, 3, {vN}
        v_xor_b32 v4, v4, v5
        v_lshlrev_b32 v4, 4, v4
        v_lshl_or_b32 v4, v7, 7, v4
        v_add_u32 v{24+hf}, {WOSTG}, v4
        v_xor_b32 v{26+hf}, 64, v{24+hf}
        v_and_b32 v5, 1, v5
        v_lshlrev_b32 v5, 3, v5
        v_lshl_or_b32 v5, v7, 4, v5
        v_add_u32 v{28+hf}, {WOSTG + 4096}, v5""")
    for t in range(4):
        x, y = (24, 25) if t < 2 else (26, 27)
        a(f"ds_read_b64_tr_b16 {vr(32+4*t,2)}, v{x} offset:{8*(t&1)}\nds_read_b64_tr_b16 {vr(34+4*t,2)}, v{y} offset:{8*(t&1)}")
    a(f"ds_read_b64_tr_b16 {vr(48,2)}, v28\nds_read_b64_tr_b16 {vr(50,2)}, v29\ns_waitcnt lgkmcnt(0)")
    for t in range(5):
        a(f"buffer_store_dwordx4 {vr(32+4*t)}, v21, {SWS}, s91 offen sc1 ;@uncounted")
        if t < 4: a("s_add_u32 s91, s91, 18432")
    a("s_nop 1\nL_nowo2:")

def ln1_pre(a):
    for r in range(4): a(f"v_mov_b32 v{120+r}, 0x3f803f80")
    a("s_waitcnt vmcnt(32)")
    ln_stats(a, 5, R1, 120, 24, 64, 104, 0)
    cnt = 0
    for k in range(5):
        for r in range(5):
            u = 24 + 8*(cnt & 1); cnt += 1
            unpack(a, u, R1(r, k)); norm(a, u, 104 + 2*r); pack(a, R1(r, k), u)

def early_flags(a):
    a(f"""s_cmp_eq_u32 s85, 1
    s_cbranch_scc0 L_nofw
    s_lshl_b32 s4, {sB}, 2
    s_add_u32 s4, s4, {F_W - 112*4}
    v_mov_b32 v4, {sTAG}
    s_mov_b64 exec, 1
    buffer_store_dword v4, off, {SWS}, s4 sc1 ;@uncounted
    s_mov_b64 exec, -1
    L_nofw:
    s_cmp_eq_u32 {sW}, 0
    s_cselect_b32 s4, {sB}, 0
    s_cmp_ge_u32 s4, 18
    s_cselect_b32 s4, s4, 99
    s_cmp_lt_u32 s4, 54
    s_cbranch_scc0 L_nofm
    s_lshl_b32 s4, s4, 2
    s_add_u32 s4, s4, {F_M - 18*4}
    v_mov_b32 v4, {sTAG}
    s_mov_b64 exec, 1
    buffer_store_dword v4, off, {SWS}, s4 sc1 ;@uncounted
    s_mov_b64 exec, -1
    L_nofm:""")

def ffn_decode(a):
    a(f"""s_and_b32 s22, {sB}, 7
    s_lshr_b32 s23, {sB}, 3
    s_lshl_b32 s23, s23, 2
    s_add_u32 s23, s23, {sW}""")
    a(f"""s_mul_i32 s24, s23, 241
    s_lshr_b32 s24, s24, 13
    s_mul_i32 s25, s24, 34
    s_sub_u32 s25, s23, s25
    s_add_u32 s25, s25, 128""")
    for grp, rem in ((0, "s23"), (1, "s25")):
        a(f"""s_mul_i32 s26, {rem}, 57
        s_lshr_b32 s26, s26, 9
        s_mul_i32 s27, s26, 9
        s_sub_u32 s27, {rem}, s27
        s_mul_i32 s4, s26, {32*9216}
        s_mul_i32 s5, s22, 1152
        s_add_u32 s4, s4, s5
        s_lshl_b32 s7, s27, 7
        s_add_u32 s4, s4, s7
        s_mul_i32 s5, s22, {576*1152}
        s_mul_i32 s6, s26, {32*1152}
        s_add_u32 s5, s5, s6
        s_add_u32 s5, s5, s7
        s_mul_i32 s6, s22, 36
        s_lshl_b32 s7, s27, 2
        s_add_u32 s6, s6, s7
        s_mul_i32 s6, s6, 18
        s_add_u32 s6, s6, s26
        s_lshl_b32 s7, s6, 11
        s_add_u32 s7, s7, {WGU_SW}
        s_lshl_b32 s6, s6, 10
        s_add_u32 s6, s6, {WD_SW}""")
        if grp == 0:
            a("s_mov_b32 s10, s4\ns_mov_b32 s11, s7\ns_mov_b32 s12, s5\ns_mov_b32 s13, s6")
        else:
            a(f"""s_lshl_b32 s8, s24, 10
            s_add_u32 s7, s7, s8
            s_cmp_eq_u32 s24, 2
            s_cselect_b32 s14, s5, s4
            s_cselect_b32 s15, s6, s7
            s_mov_b32 s16, 36864
            s_cselect_b32 s16, 18432, s16
            s_movk_i32 s17, 9216
            s_cselect_b32 s17, 1152, s17
            s_cselect_b32 s72, s48, s40
            s_cselect_b32 s73, s49, s41
            s_cmp_eq_u32 s24, 1
            s_cselect_b32 s72, s44, s72
            s_cselect_b32 s73, s45, s73
            s_mov_b32 s74, {D*F*2}
            s_cmp_ge_u32 s24, 3
            s_cselect_b32 s74, 0, s74
            s_cselect_b32 s15, 0x7ff00000, s15
            s_mov_b32 s75, 0x20000
            s_mov_b32 s18, s24""")
    a(f"s_lshl_b32 s19, {sW}, 14\ns_add_u32 s19, s19, {ZB}")

def ffn_dma_fillers():
    f = []
    class C:
        def __call__(self, s):
            for l in s.split("\n"):
                if l.strip(): f.append(l.strip())
    c = C()
    dma_chunk(c, "v150", 0, "v4", "v5"); dma_chunk(c, "v151", 1, "v4", "v5")
    c(f"""v_lshlrev_b32 v150, 4, v150
    v_lshlrev_b32 v151, 4, v151
    v_lshrrev_b32 v6, 3, {vL}
    v_mul_u32_u24 v4, 9216, v6
    v_add_u32 v144, v4, v150
    v_add_u32 v145, v4, v151
    v_mul_u32_u24 v4, 1152, v6
    v_add_u32 v146, v4, v150
    v_add_u32 v147, v4, v151
    v_mul_u32_u24 v4, s17, v6
    v_add_u32 v148, v4, v150
    v_add_u32 v149, v4, v151""")
    for it in range(4):
        srd = [SWG, SWU, SWD, "s[72:75]"][it]
        src = ["s10", "s10", "s12", "s14"][it]
        vb = [144, 144, 146, 148][it]
        for ii in range(4):
            g = [f"s_add_u32 m0, s19, {it*4096 + ii*1024}"]
            if it < 3: g.append(f"s_add_u32 s20, {src}, {ii*8*[9216, 9216, 1152][it]}")
            elif ii == 0: g.append(f"s_mov_b32 s20, {src}\ns_lshl_b32 s21, s17, 3")
            else: g.append("s_add_u32 s20, s20, s21")
            g.append(f"buffer_load_dwordx4 v{vb + (ii&1)}, {srd}, s20 offen lds")
            f.append("\n".join(g))
    return f

def rec_fillers(w):
    f = []; jobs = []
    class C:
        def __call__(self, s):
            for l in s.split("\n"):
                if l.strip(): f.append(l.strip())
    c = C()
    spec = {0: [(0, 0, 'K', None), (1, 1, 'K', None), (2, 9, 'Q', None), (3, 10, 'Q', None)],
            1: [(0, 2, 'K', None), (1, 3, 'K', None), (2, 11, 'Q', None), (3, 12, 'Q', None)],
            2: [(1, 5, 'V', None), (2, 6, 'V', None), (0, 4, 'K', 'lo'), (0, 4, 'V', 'hi')],
            3: [(0, 7, 'V', None), (1, 8, 'V', None), (2, 13, 'Q', 'lo')]}[w]
    for n, (tau, T, kind, ex) in enumerate(spec):
        for p in range(2): P1.rec_addr(c, f"v{152+2*n+p}", T, p, kind)
        jobs.append((tau, kind, 152 + 2*n, ex))
    return f, jobs

ACC1 = lambda tau, rt: 24 + 4*(5*tau + rt)
BB1 = lambda s, rt: 104 + 20*(s & 1) + 4*rt

def qkv_gemm(a, w):
    units = [(t, rt) for rt in range(5) for t in range(4) if t < 2 or rt > 0] if w < 2 else [(t, rt) for rt in range(5) for t in range(3)]
    rf, jobs = rec_fillers(w)
    fill = ffn_dma_fillers() + rf + [f"""s_and_b32 s4, {sB}, 63
        s_lshr_b32 s4, s4, 3
        s_mul_i32 s4, s4, 72
        s_add_u32 s4, s4, {F_W - 36*4}""", f"v_lshlrev_b32 v160, 2, {vL}", f"v_add_u32 v4, {F_M}, v160", "v_add_u32 v160, s4, v160",
        f"v_cmp_gt_u32 vcc, 36, {vL}", "v_cndmask_b32 v160, v160, v4, vcc"]
    def rd(s, rt):
        ad, off = ("v21", rt*HRT) if rt < 3 else ("v22", (rt-3)*HRT)
        return f"ds_read_b128 {vr(BB1(s, rt))}, {ad} offset:{off + s*1024}"
    for rt in range(5): a(rd(0, rt))
    for s in range(18):
        a("s_waitcnt lgkmcnt(0)")
        nxt = [rd(s+1, rt) for rt in range(5)] if s < 17 else []
        for n, (tau, rt) in enumerate(units):
            acc = vr(ACC1(tau, rt))
            a(f"v_mfma_f32_16x16x32_bf16 {acc}, {wfrag(tau, s)}, {vr(BB1(s, rt))}, {acc if s else 0}")
            if nxt and n % 2 == 0: a(nxt.pop(0))
            elif fill: a(fill.pop(0))
        assert not nxt
    assert not fill, len(fill)
    return jobs

def rec_write(a, jobs):
    for tau, kind, reg, ex in jobs:
        if ex == 'lo': a("s_mov_b32 exec_lo, -1\ns_mov_b32 exec_hi, 0")
        if ex == 'hi': a("s_mov_b32 exec_lo, 0\ns_mov_b32 exec_hi, -1")
        n = 0
        for rt in range(5):
            if kind == 'Q' and rt == 0: continue
            acc = ACC1(tau, rt)
            for p in range(2):
                if kind == 'V':
                    a(f"ds_write_b64 v{reg+p}, {vr(acc+2*p,2)} offset:{rt*1280}")
                else:
                    t = 4 + (n % 3); n += 1
                    a(f"v_cvt_pk_bf16_f32 v{t}, v{acc+2*p}, v{acc+2*p+1}")
                    a(f"ds_write_b32 v{reg+p}, v{t} offset:{(rt - (kind == 'Q'))*768}")
    a("s_mov_b64 exec, -1")

def z_tr(a):
    a(f"v_mov_b32 v162, v160\nv_lshrrev_b32 v6, 2, {vN}\nv_lshl_add_u32 v163, {vQ}, 3, v6")
    tr_addr(a, "v8", "v163", "v4", "v5")
    a("v_add_u32 v163, 4, v163"); tr_addr(a, "v9", "v163", "v4", "v5")
    a(f"v_lshl_add_u32 v163, {vQ}, 2, v6"); tr_addr(a, "v10", "v163", "v4", "v5")
    a("v_add_u32 v163, 16, v163"); tr_addr(a, "v11", "v163", "v4", "v5")
    for r in range(8, 12): a(f"v_add_u32 v{r}, s19, v{r}")
    a("""s_cmp_eq_u32 s18, 2
    s_cselect_b64 vcc, -1, 0
    v_cndmask_b32 v12, v8, v10, vcc
    v_cndmask_b32 v13, v9, v11, vcc""")
    for tau in range(1, 4):
        for k in range(6): a(f"v_xor_b32 v{144 + 6*(tau-1) + k}, {32*tau}, v{8+k}")
    vmem_poll(a, "pw", "v162", 54, wave=None, first_issued=True)
    for it in range(4):
        k = [0, 0, 2, 4][it]
        for tau in range(4):
            x = 8 + k if tau == 0 else 144 + 6*(tau-1) + k
            b = 16*it + 4*tau
            a(f"ds_read_b64_tr_b16 {ar(b,2)}, v{x} offset:{it*4096}\nds_read_b64_tr_b16 {ar(b+2,2)}, v{x+1} offset:{it*4096}")

def z_store(a, vm, its):
    for it in its:
        dst = ["s11", "s11", "s13", "s15"][it]
        for tau in range(4):
            if it < 3: a(f"s_add_u32 s20, {dst}, {tau*[36864, 36864, 18432][it] + (1024 if it == 1 else 0)}")
            elif tau == 0: a(f"s_mov_b32 s20, {dst}")
            else: a("s_add_u32 s20, s20, s16")
            vm.issue(f"buffer_store_dwordx4 {ar(16*it + 4*tau)}, v21, {SWS}, s20 offen sc1", 'sw')

def poll_mod(a):
    a(f"""s_lshl_b32 s4, {sW}, 10
    s_add_u32 s5, s4, {MODT}
    s_add_u32 s6, s5, 4096
    s_cmp_eq_u32 {sW}, 0
    s_cselect_b32 s7, 8192, s4
    s_lshr_b32 s8, s7, 1
    s_add_u32 s7, s7, {MODT}
    s_lshr_b32 s4, s4, 1
    v_lshlrev_b32 v5, 3, {vL}
    v_add_u32 v5, {MV}, v5
    v_add_u32 v6, s8, v5
    v_add_u32 v5, s4, v5
    v_add_u32 v7, 2048, v5
    s_mov_b32 s89, 0
    L_pm:
    buffer_load_dwordx4 v[24:27], v21, {SWS}, s5 offen sc1
    buffer_load_dwordx4 v[28:31], v21, {SWS}, s6 offen sc1
    buffer_load_dwordx4 v[32:35], v21, {SWS}, s7 offen sc1
    s_add_u32 s89, s89, 1
    s_cmp_gt_u32 s89, {POLL_MAX}
    s_cbranch_scc1 L_pm_done
    s_waitcnt vmcnt(0)
    v_xor_b32 v25, {sTAG}, v25
    v_xor_b32 v27, {sTAG}, v27
    v_xor_b32 v29, {sTAG}, v29
    v_xor_b32 v31, {sTAG}, v31
    v_xor_b32 v33, {sTAG}, v33
    v_xor_b32 v35, {sTAG}, v35
    v_or3_b32 v25, v25, v27, v29
    v_or3_b32 v31, v31, v33, v35
    v_or_b32 v25, v25, v31
    v_cmp_ne_u32 vcc, 0, v25
    s_cbranch_vccnz L_pm
    L_pm_done:
    s_waitcnt vmcnt(0)
    ds_write2_b32 v5, v24, v26 offset1:1
    ds_write2_b32 v7, v28, v30 offset1:1
    ds_write2_b32 v6, v32, v34 offset1:1""")

def interleave(a, emit, fillers, every):
    t = Asm(); emit(t)
    n = 0; cond = False
    for l in t.ins:
        a(l)
        if l.startswith('s_cbranch'): cond = True
        if l.endswith(':'): cond = False
        if l.startswith(('v_', 'ds_')) and not cond:
            n += 1
            if n % every == 0 and fillers: a(fillers.pop(0))
    for f in fillers: a(f)

def wo_dma_fillers():
    f = [f"""s_mul_i32 s8, {sJ}, 90
    s_add_u32 s8, s8, {sW}
    s_lshl_b32 s8, s8, 10
    s_add_u32 s8, s8, {WO_SW}
    s_lshl_b32 s9, {sW}, 10
    s_add_u32 s9, s9, {P2.WOB}"""]
    for k in range(23):
        f.append(f"s_add_u32 m0, s9, {k*4096}\ns_add_u32 s20, s8, {k*4096}\nbuffer_load_dwordx4 v21, {SWS}, s20 offen sc1 lds")
    return f

def tail_prefetch(a, vm):
    a(f"""v_lshrrev_b32 v4, 1, {vQ}
    v_lshlrev_b32 v4, 8, v4
    v_lshl_add_u32 v4, {vN}, 4, v4
    v_and_b32 v5, 1, {vQ}
    v_lshl_add_u32 v4, v5, 3, v4
    v_mul_u32_u24 v5, 1152, {vN}
    v_lshl_add_u32 v5, {vQ}, 3, v5
    v_lshlrev_b32 v6, 4, {vQ}
    s_lshl_b32 s50, {sI}, 2
    s_mul_i32 s51, s50, 72
    s_lshl_b32 s52, {sJ}, 3
    s_lshl_b32 s53, {sW}, 1
    s_add_u32 s52, s52, s53
    s_add_u32 s52, s52, s51
    s_lshl_b32 s52, s52, 8
    s_add_u32 s52, s52, {X1}
    s_lshl_b32 s53, {sJ}, 2
    s_add_u32 s53, s53, {sW}
    s_lshl_b32 s54, s53, 6
    s_add_u32 s54, s54, {MOD + 5*2304}
    s_mul_i32 s55, {sI}, {64*1152}
    s_lshl_b32 s53, s53, 5
    s_add_u32 s55, s55, s53
    s_and_b32 s56, {sJ}, 1
    s_lshl_b32 s56, s56, 1
    s_and_b32 s57, {sW}, 1
    s_add_u32 s56, s56, s57
    s_lshr_b32 s57, {sJ}, 1
    s_add_u32 s58, s50, s57
    s_mul_i32 s59, s58, {16*1152}
    s_lshl_b32 s53, s56, 5
    s_add_u32 s59, s59, s53
    s_add_u32 s59, s59, 1024
    s_mul_i32 s58, s58, 72
    s_lshl_b32 s53, s56, 1
    s_add_u32 s58, s58, s53
    s_add_u32 s58, s58, 64
    s_lshl_b32 s58, s58, 8
    s_add_u32 s58, s58, {X1}
    s_lshl_b32 s53, s56, 6
    s_add_u32 s53, s53, {MOD + 5*2304 + 512*4}
    s_cmp_lt_u32 {sW}, 2
    s_cselect_b32 s51, 0, 0x7ff00000
    v_add_u32 v7, s51, v5
    v_add_u32 v17, s51, v21""")
    for r in range(4):
        vm.issue(f"buffer_load_dwordx2 {vr(64+2*r,2)}, v4, {SWS}, s52 offen sc1", 'tx')
        if r < 3: a(f"s_add_u32 s52, s52, {72*256}")
    vm.issue(f"buffer_load_dwordx4 v[72:75], v6, {SWS}, s54 offen sc1", 'tx')
    vm.issue(f"buffer_load_dwordx2 v[76:77], v4, {SWS}, s58 offen sc1", 'tx')
    vm.issue(f"buffer_load_dwordx4 v[80:83], v6, {SWS}, s53 offen sc1", 'tx')

def tail(a, vm, stamps):
    acc0 = 24
    vm.drain()
    a("s_barrier")
    a(f"""s_lshl_b32 s22, {sI}, 5
    s_add_u32 s22, s22, {F_P}
    s_lshl_b32 s23, {sJ}, 2
    s_add_u32 s23, s23, s22""")
    flag_store(a, vm, ["s23"])
    stamp(a, 26, stamps)
    a(f"v_lshlrev_b32 v8, 2, {vL}\nv_add_u32 v8, s22, v8\nv_mov_b32 v12, v7")
    vmem_poll(a, "pp", "v8", 8)
    a("v_mov_b32 v7, v12")
    a("s_barrier")
    stamp(a, 27, stamps)
    a(f"""s_mul_i32 s4, {sI}, 9
    s_add_u32 s5, s4, {sJ}
    s_lshl_b32 s5, s5, 5
    s_add_u32 s5, s5, {sW}
    s_lshl_b32 s5, s5, 11
    s_add_u32 s5, s5, {PART}""")
    for p in range(1, 8):
        a(f"s_add_u32 s6, {sJ}, {p}\ns_and_b32 s6, s6, 7\ns_lshl_b32 s6, s6, 13\ns_add_u32 s6, s6, s5")
        vm.issue(f"buffer_load_dwordx4 {vr(96+8*p)}, v21, {SWS}, s6 offen sc1", f'p{p}')
        vm.issue(f"buffer_load_dwordx4 {vr(100+8*p)}, v21, {SWS}, s6 offen offset:1024 sc1", f'p{p}')
    a(f"""s_add_u32 s5, s4, 8
    s_lshl_b32 s5, s5, 5
    s_add_u32 s5, s5, s56
    s_lshl_b32 s5, s5, 11
    s_add_u32 s5, s5, {PART}
    s_lshr_b32 s8, s57, 1
    s_lshl_b32 s8, s8, 10
    s_add_u32 s5, s5, s8
    s_and_b32 s8, s57, 1
    s_lshl_b32 s8, s8, 3
    s_add_u32 s5, s5, s8""")
    for p in range(8):
        vm.issue(f"buffer_load_dwordx2 {vr(160+2*p,2)}, v17, {SWS}, s5 offen sc1", 'p8')
        if p < 7: a("s_add_u32 s5, s5, 8192")
    def acc_add(dst, sreg, first=False):
        if first:
            a(f"""v_lshlrev_b32 v{dst}, 16, v{sreg}
            v_and_b32 v{dst+1}, {sMSK}, v{sreg}
            v_lshlrev_b32 v{dst+2}, 16, v{sreg+1}
            v_and_b32 v{dst+3}, {sMSK}, v{sreg+1}""")
        else:
            a(f"""v_lshlrev_b32 v8, 16, v{sreg}
            v_and_b32 v9, {sMSK}, v{sreg}
            v_lshlrev_b32 v10, 16, v{sreg+1}
            v_and_b32 v11, {sMSK}, v{sreg+1}
            v_pk_add_f32 {vr(dst,2)}, {vr(dst,2)}, v[8:9]
            v_pk_add_f32 {vr(dst+2,2)}, {vr(dst+2,2)}, v[10:11]""")
    def finish(acc, xr, gb, vaddr, soff):
        a(f"""v_lshlrev_b32 v8, 16, v{xr}
        v_and_b32 v9, {sMSK}, v{xr}
        v_lshlrev_b32 v10, 16, v{xr+1}
        v_and_b32 v11, {sMSK}, v{xr+1}
        v_pk_fma_f32 v[8:9], {vr(acc,2)}, {vr(gb,2)}, v[8:9]
        v_pk_fma_f32 v[10:11], {vr(acc+2,2)}, {vr(gb+2,2)}, v[10:11]
        v_cvt_pk_bf16_f32 v{acc}, v8, v9
        v_cvt_pk_bf16_f32 v{acc+1}, v10, v11""")
        vm.issue(f"buffer_store_dwordx2 {vr(acc,2)}, {vaddr}, {SOUT}, {soff} offen")
    for p in range(1, 8):
        vm.wait(f'p{p}')
        for r in range(4): acc_add(acc0 + 4*r, 96 + 8*p + 2*r)
    for r in range(4):
        finish(acc0 + 4*r, 64 + 2*r, 72, "v5", "s55")
        if r < 3: a(f"s_add_u32 s55, s55, {16*1152}")
    vm.wait('p8')
    for p in range(8): acc_add(84, 160 + 2*p, p == 0)
    finish(84, 76, 80, "v7", "s59")

def p3_setup(a):
    T1, T2, TT, PT = P3.sT1, P3.sT2, P3.TT, P3.PT
    a(f"""s_mul_i32 s26, {sI}, 57
    s_lshr_b32 s26, s26, 9
    s_mul_i32 s26, s26, 9
    s_sub_u32 s26, {sI}, s26
    s_mul_i32 s27, {sJ}, 36
    s_add_u32 s27, s27, {sW}""")
    for t in range(9):
        a(f"""s_add_u32 s88, s26, {t}
        s_cmp_ge_u32 s88, 9
        s_cselect_b32 s89, 9, 0
        s_sub_u32 s88, s88, s89
        s_lshl_b32 s{TT[t]}, s88, 11
        s_lshl_b32 s88, s88, 2
        s_add_u32 s88, s88, s27
        s_mul_i32 s88, s88, 36864
        s_add_u32 s{T1+t}, s88, {WGU_SW}""")
    a(f"s_mul_i32 s26, {sI}, 72\ns_add_u32 s26, s26, {sJ}")
    for t in range(9):
        if t == 0: a("s_mov_b32 s88, 8")
        else: a(f"s_add_u32 s88, {sJ}, {t}\ns_and_b32 s88, s88, 7")
        a(f"""s_lshl_b32 s89, s88, 2
        s_add_u32 s89, s89, s27
        s_mul_i32 s89, s89, 18432
        s_add_u32 s{T2+t}, s89, {WD_SW}
        s_lshl_b32 s88, s88, 3
        s_add_u32 s88, s88, s26
        s_lshl_b32 s88, s88, 2
        s_add_u32 s88, s88, {sW}
        s_lshl_b32 s88, s88, 11
        s_add_u32 s{PT[t]}, s88, {PART}""")
    for g in range(9): a(f"v_add_u32 v{8+g}, {4096*g}, v21")
    a(f"""s_cmp_lt_u32 {sW}, 2
    s_cselect_b32 s88, 0, 0x7ff00000
    v_add_u32 v17, s88, v12
    s_lshl_b32 s88, {sW}, 10
    v_add_u32 v18, s88, v21
    v_add_u32 v19, {3*HRT}, v18
    v_add_u32 v22, {3*HRT}, v21
    s_lshl_b32 s88, {sW}, 7
    s_add_u32 s88, s88, {MV}
    v_lshlrev_b32 v23, 5, {vQ}
    v_add_u32 v23, s88, v23""")

def x1_loads(a, vm):
    a(f"""s_lshl_b32 s88, {sI}, 2
    s_mul_i32 s88, s88, {HRT}
    s_lshl_b32 s89, {sW}, 10
    s_add_u32 s88, s88, s89
    s_add_u32 s88, s88, {X1}""")
    for r in range(4):
        for k in range(5):
            vm.issue(f"buffer_load_dwordx4 {vr(R2(r,k))}, v{8+k if k < 4 else 17}, {SWS}, s88 offen sc1", 'x1')
        if r < 3: a(f"s_add_u32 s88, s88, {HRT}")

NAMES = {}
def build(stamps=False, dbg=None):
    a = Asm(); vm = Vm(a)
    def st(i, name):
        NAMES[i] = name; stamp(a, i, stamps)
    prologue(a, "L_end", t0=stamps)
    if stamps:
        a("v_writelane_b32 v0, s98, 0"); NAMES[0] = "wave start"
    st(28, "srd built")
    a(f"s_add_u32 s8, s26, {EPOCH}\ns_addc_u32 s9, s27, 0\ns_load_dword {sTAG}, s[8:9], 0")
    map1(a)
    setup1(a)
    st(29, "setup1")
    loads_mod(a)
    st(30, "mod ld iss")
    loads_x(a)
    st(31, "x ld iss")
    setup1b(a)
    wo_dma(a)
    st(32, "setup1b")
    for s in range(8): P1.w_dma(a, s)
    st(33, "W dma iss")
    tr_setup(a)
    a(f"s_waitcnt lgkmcnt(0)\ns_mul_i32 {sTAG}, {sTAG}, 0x9E3779B1\ns_add_u32 {sTAG}, {sTAG}, 0x7F4A7C15")
    ffn_decode(a)
    a(";@assume_drained")
    st(1, "issued")
    mod_compute(a)
    st(2, "mod pub")
    wo_tr(a)
    ln1_pre(a)
    st(3, "ln1 pre")
    a(";@assume_drained")
    a(f"s_cmp_lt_u32 {sW}, 2\ns_cbranch_scc0 L_stgB\n;@fork stg")
    P1.w_stage_rest(a, 4)
    a("s_branch L_stgE\nL_stgB:")
    P1.w_stage_rest(a, 3)
    a(";@join stg\nL_stgE:\ns_waitcnt vmcnt(0) lgkmcnt(0)")
    early_flags(a)
    st(4, "W staged")
    poll_mod(a)
    a("s_waitcnt lgkmcnt(0)\ns_barrier")
    st(5, "mod in")
    ln_apply(a, 5, R1, None, f"s_cmp_ge_u32 {sW}, 2", "m1")
    a("s_barrier")
    st(6, "h1 done")
    a(";@fork g")
    for w in range(4):
        if w: a(f";@restore g\nL_g{w}:")
        if w < 3: a(f"s_cmp_eq_u32 {sW}, {w}\ns_cbranch_scc0 L_g{w+1}")
        jobs = qkv_gemm(a, w)
        st(7, "qkv gemm")
        a(f"buffer_load_dword v7, v160, {SWS}, 0 offen sc1 ;@uncounted")
        a("s_barrier")
        rec_write(a, jobs)
        if w < 3: a("s_branch L_gE")
    a("L_gE:\n;@assume_drained")
    z_tr(a)
    a("s_waitcnt lgkmcnt(0)\ns_barrier")
    st(8, "rec done")
    a(f"s_mov_b32 s92, {sI}\ns_mov_b32 s93, {sJ}")
    map_M(a)
    a(f"s_mov_b32 s94, {sI}\ns_mov_b32 s95, {sJ}")
    fill = wo_dma_fillers()
    a(fill.pop(0))
    a(f"s_mov_b32 {sI}, s92\ns_mov_b32 {sJ}, s93")
    interleave(a, P1.attention, fill, 11)
    a("s_waitcnt lgkmcnt(0)\ns_barrier")
    st(9, "attn done")
    P1.o_store(a, SC1)
    a(f"""s_lshl_b32 s22, {sI}, 5
    s_lshl_b32 s23, {sJ}, 2
    s_add_u32 s22, s22, s23
    s_add_u32 s22, s22, {F_O}
    s_mov_b32 {sI}, s94
    s_mov_b32 {sJ}, s95
    s_waitcnt vmcnt(0)
    s_barrier""")
    flag_store(a, vm, ["s22"])
    st(10, "o pub")
    P2.p2_side_loads(a, vm, SC1)
    a(f"""s_lshl_b32 s88, {sW}, 10
    s_add_u32 m0, s88, {MV}
    s_add_u32 s88, s88, {MOD + 6912}""")
    vm.issue(f"buffer_load_dwordx4 v21, {SWS}, s88 offen sc1 lds", 'mv')
    a(f"s_mov_b32 m0, {MV + 4096}\ns_mov_b32 s88, {MOD + 6912 + 4096}")
    vm.issue(f"buffer_load_dwordx4 v21, {SWS}, s88 offen sc1 lds", 'mv')
    z_store(a, vm, [0, 1])
    a(f"s_lshl_b32 s22, {sI}, 5\ns_add_u32 s22, s22, {F_O}")
    smem_poll(a, "po", [("s22", 8, 8)])
    a("s_barrier")
    st(11, "o flags")
    P2.p2_o_loads(a, vm, SC1)
    z_store(a, vm, [2, 3])
    p2_gemm(a, vm)
    st(12, "wo gemm")
    P2.p2_epilogue(a, vm, SC1)
    a(f"""s_lshl_b32 s22, {sI}, 5
    s_lshl_b32 s23, {sJ}, 2
    s_add_u32 s22, s22, s23
    s_add_u32 s22, s22, {F_X}
    s_and_b32 s23, {sB}, 7
    s_lshl_b32 s23, s23, 7
    s_lshr_b32 s24, {sB}, 3
    s_lshl_b32 s24, s24, 2
    s_add_u32 s23, s23, s24
    s_add_u32 s23, s23, {F_S}""")
    map_F(a)
    vm.drain()
    a("s_barrier")
    flag_store(a, vm, ["s22", "s23"])
    st(13, "x1 pub")
    a(f"""s_lshl_b32 s22, {sI}, 5
    s_add_u32 s22, s22, {F_X}
    s_lshl_b32 s23, {sJ}, 7
    s_add_u32 s23, s23, {F_S}
    s_add_u32 s24, s23, 64""")
    a(f"""v_lshlrev_b32 v4, 2, {vL}
    v_add_u32 v5, s22, v4
    s_sub_u32 s23, s23, 32
    v_add_u32 v4, s23, v4
    v_cmp_gt_u32 vcc, 8, {vL}
    v_cndmask_b32 v4, v4, v5, vcc""")
    p3_setup(a)
    vmem_poll(a, "px", "v4", 40)
    a("s_barrier")
    st(14, "x1 flags")
    x1_loads(a, vm)
    for x in range(12): P3.stream_load(a, vm, x)
    for r in range(4): a(f"v_mov_b32 v{92+r}, 0x3f803f80")
    vm.wait('x1')
    st(15, "x1 landed")
    ln_stats(a, 4, R2, 92, 24, 56, 88, P3.HH)
    st(16, "ln2 stats")
    ln_apply(a, 4, R2, 88, f"s_cmp_lt_u32 {sW}, 2", "m2")
    st(17, "ln2 main")
    for x in range(12, P3.RING): P3.stream_load(a, vm, x)
    a(f"""s_and_b32 s88, {sW}, 1
    s_lshl_b32 s88, s88, 3
    s_lshr_b32 s89, {sW}, 1
    s_lshl_b32 s89, s89, 10
    s_add_u32 s88, s88, s89
    s_add_u32 s88, s88, {P3.HH}
    v_add_u32 v19, s88, v21
    s_barrier""")
    st(18, "ln2 bar")
    P3.gemm1(a, vm, False)
    a("s_waitcnt lgkmcnt(0)\ns_barrier")
    st(19, "gemm1")
    P3.gemm2(a, vm, SC1, keep_last=True, pre_last=lambda: tail_prefetch(a, vm))
    st(20, "gemm2")
    tail(a, vm, stamps)
    NAMES[26] = "part pub"; NAMES[27] = "part flags"
    a(f"""s_cmp_eq_u32 {sB}, 0
    s_cselect_b32 s4, {sW}, 1
    s_cmp_eq_u32 s4, 0
    s_cbranch_scc0 L_noep
    v_mov_b32 v4, {sTAG}
    s_mov_b32 s4, {EPOCH}
    s_mov_b64 exec, 1
    buffer_store_dword v4, off, {SWS}, s4 sc1
    s_mov_b64 exec, -1
    L_noep:""")
    if stamps: vm.drain()
    st(21, "end")
    stamp_flush(a, 0, 40, stamps)
    if dbg:
        a(f"""s_cmp_eq_u32 {sB}, {dbg[0]}
        s_cselect_b32 s4, {sW}, 1
        s_cmp_eq_u32 s4, 0
        s_cbranch_scc0 L_nodbg
        s_load_dwordx2 s[72:73], s[0:1], 80
        s_mov_b32 s74, 256
        s_mov_b32 s75, 0x20000
        v_readlane_b32 s4, v0, 0
        s_waitcnt lgkmcnt(0)""")
        for n, k in enumerate(dbg[1]):
            a(f"v_readlane_b32 s5, v0, {k}\ns_sub_u32 s5, s5, s4\nv_mov_b32 v4, s5\ns_mov_b32 s6, {4*n}\ns_mov_b64 exec, 1\nbuffer_store_dword v4, off, s[72:75], s6\ns_mov_b64 exec, -1")
        a("L_nodbg:")
    a("L_end:\ns_endpgm")
    return file_text("; adaLN block (sliding dilated attention + gated FFN), one persistent launch\n",
                     [dict(name=KNAME, body=a.finish(), vgpr=256, agpr=256, sgpr=102, grid=256, block=256, lds=163840)])

def p2_gemm(a, vm):
    a(f"v_add_u32 v22, {P2.WOB}, v21\nv_add_u32 v23, {P2.WOB + 3*18432}, v21")
    def rd(s, t):
        ad, off = ("v22", t*18432) if t < 3 else ("v23", (t-3)*18432)
        return f"ds_read_b128 {vr(152 + 20*(s%3) + 4*t)}, {ad} offset:{off + s*1024}"
    for s in range(2):
        for t in range(5): a(rd(s, t))
    for s in range(18):
        a(f"s_waitcnt lgkmcnt({5 if s < 17 else 0})")
        vm.wait(f'o{s}')
        for t in range(5):
            acc = vr(56 + 4*t)
            a(f"v_mfma_f32_16x16x32_bf16 {acc}, {vr(152 + 20*(s%3) + 4*t)}, {vr(80+4*s)}, {acc if s else 0}")
            if s + 2 < 18: a(rd(s+2, t))

if __name__ == "__main__":
    if len(sys.argv) > 2:
        open(sys.argv[1], "w").write(build(True, (int(sys.argv[2]), [int(x) for x in sys.argv[3].split(",")])))
    else:
        open(sys.argv[1], "w").write(build())
```

```python
import re, copy
KNAME = "adaLN_cond__sliding_local_dilated__glu_gated_glu__prompt_kernel"

REG_RE = re.compile(r'^(-?)(?:abs\()?([vas])(?:\[(\d+):(\d+)\]|(\d+))\)?$')

def regs_of(tok):
    tok = tok.strip()
    neg = tok.lstrip('-').strip('|')
    if neg in ('vcc', 'vcc_lo', 'vcc_hi'): return [('s', 'vcc')]
    if neg in ('exec', 'exec_lo', 'exec_hi'): return [('s', 'exec')]
    if neg == 'm0': return [('s', 'm0')]
    m = REG_RE.match(tok)
    if not m: return []
    k = m.group(2)
    if m.group(3) is not None:
        return [(k, i) for i in range(int(m.group(3)), int(m.group(4)) + 1)]
    return [(k, int(m.group(5)))]

TRANS = ('v_exp_f32', 'v_log_f32', 'v_rcp_f32', 'v_rsq_f32', 'v_sqrt_f32', 'v_sin_f32', 'v_cos_f32', 'v_rcp_iflag_f32')

class Ins:
    __slots__ = ('text', 'op', 'dst', 'src', 'kind', 'ops', 'mods', 'nstates', 'srcC', 'srcAB', 'passes', 'sdata', 'vmem_addr_s', 'dpp', 'lds_dma')
    def __init__(self, text):
        self.text = text
        t = text.split(';')[0].strip()
        self.dst = []; self.src = []; self.kind = 'other'; self.nstates = 1
        self.srcC = []; self.srcAB = []; self.passes = 0; self.sdata = []; self.dpp = False; self.lds_dma = False
        self.ops = []; self.mods = ''
        if not t:
            self.op = ''; self.kind = 'pseudo'; self.nstates = 0; return
        if t.endswith(':'):
            self.op = t; self.kind = 'label'; self.nstates = 0; return
        if t.startswith('.'):
            self.op = t; self.kind = 'directive'; self.nstates = 0; return
        sp = t.split(None, 1)
        op = sp[0]; rest = sp[1] if len(sp) > 1 else ''
        base = re.sub(r'_(e32|e64|dpp|sdwa)$', '', op)
        self.op = base
        parts = []; depth = 0; cur = ''
        for ch in rest:
            if ch in '[(': depth += 1
            if ch in '])': depth -= 1
            if ch == ',' and depth == 0:
                parts.append(cur.strip()); cur = ''
            else: cur += ch
        if cur.strip(): parts.append(cur.strip())
        if parts:
            last = parts[-1].split(None, 1)
            parts[-1] = last[0]
            self.mods = last[1] if len(last) > 1 else ''
        self.ops = parts
        R = [regs_of(p) for p in parts]
        flat = lambda L: [r for x in L for r in x]
        self.dpp = op.endswith('_dpp') or 'row_' in self.mods or 'quad_perm' in self.mods
        if base.startswith('v_mfma'):
            self.kind = 'mfma'
            self.dst = R[0]; self.srcAB = R[1] + R[2]; self.srcC = R[3]; self.src = self.srcAB + self.srcC
            self.passes = 8 if '32x32x16' in base else 4 if '16x16x32' in base else None
            assert self.passes, text
        elif base.startswith('v_'):
            self.kind = 'trans' if base in TRANS else 'valu'
            if base.startswith('v_cmp'):
                self.dst = R[0]; self.src = flat(R[1:])
                assert not base.startswith('v_cmpx')
            elif base in ('v_permlane16_swap_b32', 'v_permlane32_swap_b32', 'v_swap_b32'):
                self.dst = R[0] + R[1]; self.src = R[0] + R[1]
            elif base in ('v_add_co_u32', 'v_sub_co_u32', 'v_subrev_co_u32', 'v_addc_co_u32', 'v_subb_co_u32', 'v_mad_u64_u32'):
                self.dst = R[0] + R[1]; self.src = flat(R[2:])
            elif base in ('v_fmac_f32', 'v_dot2c_f32_bf16', 'v_pk_fmac_f16', 'v_fmac_f32_dpp'):
                self.dst = R[0]; self.src = flat(R)
            elif base == 'v_nop':
                pass
            else:
                self.dst = R[0]; self.src = flat(R[1:])
                if self.dpp: self.src = flat(R)
            if base == 'v_cndmask_b32' and len(parts) == 3: self.src.append(('s', 'vcc'))
        elif base.startswith('ds_'):
            self.kind = 'ds'
            if base.startswith('ds_read') or base.startswith('ds_bpermute') or base.startswith('ds_permute') or base.startswith('ds_swizzle'):
                self.dst = R[0]; self.src = flat(R[1:])
            else:
                self.src = flat(R); self.sdata = flat(R[1:])
        elif base.startswith('buffer_') or base.startswith('global_'):
            self.kind = 'vmem'
            words = (self.mods + ' ').split()
            if base in ('buffer_wbl2', 'buffer_inv'):
                pass
            elif 'lds' in words or '_lds_' in base:
                self.lds_dma = True; self.src = flat(R) + [('s', 'm0')]
            elif '_load' in base:
                self.dst = R[0]; self.src = flat(R[1:])
                if 'd16' in base: self.src = flat(R)
            elif '_store' in base:
                self.src = flat(R)
                self.sdata = R[0] if base.startswith('buffer_') else R[1]
            elif 'atomic' in base:
                if base.startswith('buffer_'):
                    self.src = flat(R); self.sdata = R[0]
                    if 'sc0' in words: self.dst = R[0]
                else:
                    if 'sc0' in words: self.dst = R[0]; self.src = flat(R[1:])
                    else: self.src = flat(R)
            else:
                raise ValueError(text)
        elif base.startswith('s_load') or base.startswith('s_buffer_load') or base in ('s_memtime', 's_memrealtime'):
            self.kind = 'smem'; self.dst = R[0]; self.src = flat(R[1:])
        elif base == 's_nop':
            self.kind = 'nop'; self.nstates = int(parts[0], 0) + 1
        elif base == 's_waitcnt':
            self.kind = 'wait'
        elif base.startswith('s_cbranch') or base == 's_branch':
            self.kind = 'branch'
            if 'vcc' in base: self.src = [('s', 'vcc')]
            if 'exec' in base: self.src = [('s', 'exec')]
        elif base in ('s_barrier', 's_endpgm', 's_sleep', 's_setprio'):
            self.kind = 'misc'
        elif base.startswith('s_cmp') or base.startswith('s_bitcmp'):
            self.kind = 'salu'; self.src = flat(R)
        elif base.startswith('s_'):
            self.kind = 'salu'
            self.dst = list(R[0]) if R else []; self.src = flat(R[1:])
            if 'saveexec' in base: self.dst = self.dst + [('s', 'exec')]; self.src.append(('s', 'exec'))
            if base in ('s_addk_i32', 's_mulk_i32', 's_cmov_b32'): self.src += R[0]
        else:
            raise ValueError("unknown instruction: " + text)

def ov(a, b):
    return not set(a).isdisjoint(b)

def need(p, c):
    n = 0
    pv = p.kind in ('valu', 'trans')
    cv = c.kind in ('valu', 'trans')
    if pv:
        vd = [r for r in p.dst if r[0] in 'va']
        sd = [r for r in p.dst if r[0] == 's']
        if vd:
            if c.kind == 'mfma' and ov(vd, c.src): n = max(n, 2)
            if c.op in ('v_readlane_b32', 'v_readfirstlane_b32') and ov(vd, c.src): n = max(n, 1)
            if cv and c.dpp and ov(vd, c.src): n = max(n, 2)
            if c.op.startswith('v_permlane') and ov(vd, c.src): n = max(n, 2)
            if p.kind == 'trans' and c.kind == 'valu' and ov(vd, c.src): n = max(n, 1)
            if p.kind == 'trans' and c.kind in ('ds', 'vmem') and ov(vd, c.src): n = max(n, 1)
            if 'op_sel' in p.mods and not p.op.startswith('v_pk') and cv and ov(vd, c.src + c.dst): n = max(n, 1)
        if sd:
            if cv and ov(sd, c.src):
                n = max(n, 4 if c.op in ('v_readlane_b32', 'v_writelane_b32') else 2)
            if c.kind == 'vmem' and ov(sd, c.src): n = max(n, 5)
            if c.kind in ('salu', 'smem', 'branch') and ov(sd, c.src): n = max(n, 3)
    if p.op.startswith('v_dot'):
        if c.op != p.op:
            if ov(p.dst, c.src + c.dst): n = max(n, 3)
        else:
            ab = regs_of(c.ops[1]) + regs_of(c.ops[2])
            if ov(p.dst, ab): n = max(n, 3)
    if p.kind == 'mfma':
        P = p.passes
        if c.kind == 'mfma':
            if ov(p.dst, c.srcAB): n = max(n, {4: 8, 8: 12}[P])
            if ov(p.dst, c.srcC) and not (p.dst == c.srcC and P == c.passes): n = max(n, {4: 6, 8: 10}[P])
            if ov(p.dst, c.dst) and not ov(p.dst, c.srcC): n = max(n, {4: 8, 8: 12}[P])
        elif cv:
            if ov(p.dst, c.src + c.dst): n = max(n, {4: 8, 8: 12}[P])
            if ov(p.srcC, c.dst): n = max(n, {4: 3, 8: 7}[P])
        elif c.kind in ('ds', 'vmem'):
            if ov(p.dst, c.src + c.dst): n = max(n, {4: 8, 8: 12}[P])
    if p.kind == 'salu' and ('s', 'm0') in p.dst and c.lds_dma: n = max(n, 1)
    if p.kind == 'salu' and ('s', 'exec') in p.dst and (c.dpp or c.kind == 'mfma' or c.op.startswith('v_permlane')): n = max(n, 1)
    if p.kind in ('vmem', 'ds') and len(p.sdata) >= 3 and ov(p.sdata, c.dst):
        n = max(n, 2)
    return n

class State:
    def __init__(self):
        self.recent = []
        self.vm = []
        self.lg = []
    def clone(self):
        s = State(); s.recent = list(self.recent); s.vm = list(self.vm); s.lg = list(self.lg); return s

class Asm:
    def __init__(self, check=True):
        self.ins = []
        self.uid = 0
        self.check = check
    def __call__(self, s):
        for l in s.split("\n"):
            l = l.strip()
            if l: self.ins.append(l)
    def label(self, base):
        self.uid += 1
        return f"{base}_{self.uid}"
    def finish(self):
        out = []; st = State(); saved = {}; nnop = 0
        errs = []
        for li, l in enumerate(self.ins):
            if l.startswith(';@'):
                w = l[2:].split()
                if w[0] == 'fork': saved[w[1]] = st.clone()
                elif w[0] == 'restore':
                    saved[w[1] + '_end'] = st.clone(); st = saved[w[1]].clone()
                elif w[0] == 'join':
                    o = saved[w[1] + '_end']
                    if len(o.vm) != len(st.vm) or len(o.lg) != len(st.lg):
                        errs.append(f"join {w[1]}: counters differ vm {len(o.vm)} vs {len(st.vm)} lg {len(o.lg)} vs {len(st.lg)}")
                    n = min(len(o.vm), len(st.vm))
                    st.vm = [(a[0], a[1] + b[1]) for a, b in zip(o.vm[len(o.vm)-n:], st.vm[len(st.vm)-n:])]
                    n = min(len(o.lg), len(st.lg))
                    st.lg = [(a[0], a[1] + b[1]) for a, b in zip(o.lg[len(o.lg)-n:], st.lg[len(st.lg)-n:])]
                    st.recent = st.recent + o.recent
                elif w[0] == 'drained':
                    if st.vm or st.lg: errs.append(f"{l}: outstanding vm {len(st.vm)} lg {len(st.lg)}")
                elif w[0] == 'assume_drained':
                    st.vm = []; st.lg = []
                elif w[0] == 'assume_drained_lg':
                    st.lg = []
                elif w[0] in ('mark', 'touch'):
                    out.append(l)
                continue
            c = Ins(l)
            if c.kind in ('pseudo', 'label', 'directive'):
                out.append(l); continue
            req = 0
            for p, d in st.recent:
                k = need(p, c) - d
                if k > req: req = k
            if req > 0:
                nnop += 1
                out.append(f"s_nop {req-1}")
                st.recent = [(p, d + req) for p, d in st.recent]
            touched = set(c.src) | set(c.dst)
            if self.check:
                for q, nm in ((st.vm, 'vm'), (st.lg, 'lg')):
                    for t, regs in q:
                        if regs and not touched.isdisjoint(regs):
                            if nm == 'vm' and c.kind == 'vmem' and touched.isdisjoint(set(regs) - set(c.dst)) and set(c.src).isdisjoint(regs):
                                continue
                            if nm == 'lg' and c.kind == 'ds' and not t.startswith('s_') and set(c.src).isdisjoint(regs):
                                continue
                            errs.append(f"line {li}: '{l}' touches registers of pending {nm} op '{t}'")
            if c.kind == 'vmem':
                if '@uncounted' not in l: st.vm.append((l, list(c.dst)))
            elif c.kind == 'ds': st.lg.append((l, list(c.dst)))
            elif c.kind == 'smem': st.lg.append((l, list(c.dst)))
            elif c.kind == 'wait':
                m = re.search(r'vmcnt\((\d+)\)', l)
                if m:
                    n = int(m.group(1)); assert n <= 63, l
                    while len(st.vm) > n: st.vm.pop(0)
                m = re.search(r'lgkmcnt\((\d+)\)', l)
                if m:
                    n = int(m.group(1)); assert n <= 15, l
                    if n > 0 and any(t.startswith('s_') for t, _ in st.lg):
                        errs.append(f"line {li}: counted lgkmcnt with SMEM outstanding")
                    while len(st.lg) > n: st.lg.pop(0)
            out.append(l)
            st.recent = [(p, d + c.nstates) for p, d in st.recent if d + c.nstates < 20]
            st.recent.append((c, 0))
        if errs:
            raise RuntimeError("checker:\n" + "\n".join(errs[:30]))
        self.nnop = nnop
        return "\n".join(("" if x.endswith(":") else "    ") + x for x in out) + "\n"

def insn_sizes(body):
    import subprocess, tempfile, os
    d = tempfile.mkdtemp()
    open(d + "/a.s", "w").write('.amdgcn_target "amdgcn-amd-amdhsa--gfx950"\n.text\nk:\n' + body)
    subprocess.run(["clang", "-x", "assembler", "-target", "amdgcn-amd-amdhsa", "-mcpu=gfx950", "-c", d + "/a.s", "-o", d + "/a.o"], check=True)
    out = subprocess.run(["llvm-objdump", "-d", "--mcpu=gfx950", d + "/a.o"], capture_output=True, text=True).stdout
    sizes = []
    for l in out.split("\n"):
        if "//" in l and ":" in l.split("//")[1]:
            sizes.append(4 * len(l.split("//")[1].split(":")[1].split("<")[0].split()))
    return sizes

PROMOTE = ('v_mov_b32', 'v_add_f32', 'v_mul_f32', 'v_sub_f32', 'v_max_f32', 'v_min_f32', 'v_exp_f32', 'v_rcp_f32', 'v_sqrt_f32', 'v_and_b32', 'v_or_b32', 'v_xor_b32',
           'v_lshlrev_b32', 'v_lshrrev_b32', 'v_add_u32', 'v_sub_u32', 'v_subrev_u32', 'v_mul_u32_u24', 'v_min_u32', 'v_max_i32', 'v_cndmask_b32', 'v_fmac_f32')
def align8(body, stub_phase=None, wave_reg="s68", nl=1):
    lines = body.split("\n")
    exp = []
    for l in lines:
        t = l.strip()
        if t.startswith(';@touch'):
            _, lo, hi = t.split()
            n = f"{lo}_{hi}"
            exp.append("    s_mov_b64 exec, 0")
            for w in range(3):
                exp.append(f"    s_cmp_eq_u32 {wave_reg}, {w}"); exp.append(f"    s_cbranch_scc1 L_tch_{n}_{w}")
            exp.append(f"    s_branch L_tch_{n}_3")
            exp.append(f"L_tchret_{n}:"); exp.append("    s_mov_b64 exec, -1")
            exp.append(f";@touchdef {lo} {hi}")
        else: exp.append(l)
    lines = exp
    probe = "\n".join(re.sub(r'L_tch_(\w+)_(\d)$', r'L_tchret_\1', l) for l in lines if not l.strip().startswith('.p2align 12'))
    sizes = insn_sizes(probe)
    out = []; off = 0; k = 0; last = None; nxt = stub_phase
    stubs = []; marks = {}; touches = []
    prev_scc = False; page = 0; line = 0
    for l in lines:
        t = l.split(';')[0].strip()
        if l.strip().startswith(';@mark'): marks[l.split()[1]] = len(stubs)
        if l.strip().startswith(';@touchdef'): touches.append(l.split()[1:3])
        if t.startswith('.p2align 12'):
            out.append(l); off = 0; last = None; nxt = 4096 if stub_phase is not None else None; line = 0
            while k < len(sizes) and sizes[k] < 0: k += 1
            continue
        if not t or t.endswith(':') or t.startswith('.'):
            out.append(l)
            if t.endswith(':'): last = None
            continue
        sz = sizes[k]; k += 1
        if nxt is not None and off >= nxt and not prev_scc:
            stubs.append(page); out.append(f"L_stub_{len(stubs)-1}:"); out.append("@STUB"); off += 4; last = None
            line = (off - 4096*(page + 1)) // 64 + 1
            if line >= nl: page += 1; nxt = 4096*(page + 1); line = 0
            else: nxt = 4096*(page + 1) + 64*line
        if sz == 8 and off % 8 == 4 and t.startswith(('v_', 'ds_', 'buffer_')):
            op = out[last].split(';')[0].split()[0] if last is not None else ''
            if op in PROMOTE and lastsz == 4:
                out[last] = out[last].replace(op, op + '_e64', 1)
            else:
                out.append("    s_nop 0")
            off += 4
        out.append(l); last = len(out) - 1; lastsz = sz; off += sz
    assert k == len(sizes), (k, len(sizes))
    target = {}; first = {}
    for lo, hi in touches:
        ids = list(range(marks[lo], marks[hi])); n = f"{lo}_{hi}"
        pages = sorted(set(stubs[x] for x in ids))
        for w in range(4):
            ch = [x for x in ids if pages.index(stubs[x]) % 4 == w]
            first[f"L_tch_{n}_{w}"] = f"L_stub_{ch[0]}" if ch else f"L_tchret_{n}"
            for a_, b_ in zip(ch, ch[1:] + [None]): target[a_] = f"L_stub_{b_}" if b_ is not None else f"L_tchret_{n}"
    res = []; si = 0
    for l in out:
        if l == "@STUB":
            res.append(f"    s_cbranch_execz {target[si]}" if si in target else "    s_nop 0"); si += 1
        elif l.strip().startswith(';@'): continue
        else:
            m = re.search(r'(L_tch_\w+)$', l)
            res.append(l.replace(m.group(1), first[m.group(1)]) if m else l)
    return "\n".join(res)

def file_text(header, kernels):
    out = header
    if len(kernels) == 1 and kernels[0]['name'] == KNAME:
        k = kernels[0]
        out += f"; @launch grid=({k['grid']},1,1) block=({k['block']},1,1) lds={k['lds']}\n"
    else:
        for k in kernels:
            out += f"; @launch kernel={k['name']} grid=({k['grid']},1,1) block=({k['block']},1,1) lds={k['lds']}\n"
    out += '.amdgcn_target "amdgcn-amd-amdhsa--gfx950"\n.text\n'
    seen = set(); descs = ""
    for k in kernels:
        if k['name'] in seen: continue
        seen.add(k['name'])
        name = k['name']
        acc = (k['vgpr'] + 3) // 4 * 4
        nfv = acc + k['agpr'] if k['agpr'] else k['vgpr']
        out += f".globl {name}\n.p2align 8\n.type {name},@function\n{name}:\n{k['body']}"
        descs += f""".section .rodata,"a"
.p2align 6
.amdhsa_kernel {name}
  .amdhsa_next_free_vgpr {nfv}
  .amdhsa_next_free_sgpr {k.get('sgpr', 102)}
  .amdhsa_accum_offset {acc}
  .amdhsa_group_segment_fixed_size 0
  .amdhsa_kernarg_size 96
  .amdhsa_user_sgpr_count 2
  .amdhsa_user_sgpr_kernarg_segment_ptr 1
  .amdhsa_system_sgpr_workgroup_id_x 1
  .amdhsa_float_denorm_mode_32 3
.end_amdhsa_kernel
"""
    return out + descs
```

```python
from asm2 import *
S, D, F = 2048, 576, 4608
WO_SW  = 0
WGU_SW = 0x100000
WD_SW  = 0xC00000
MOD    = 0x1200000
O_X    = 0x1300000
X1     = 0x1600000
PART   = 0x1900000
FLAGS  = 0x2C00000
STAMPS = 0x3000000
WS_BYTES = 268435456
LOG2E = 1.4426950408889634

import struct
def fbits(x):
    return "0x%08x" % struct.unpack("<I", struct.pack("<f", x))[0]

SX, SQKV, SWO, SWG, SWU, SWD, SC, SMOD, SOUT, SWS = [f"s[{28+4*i}:{31+4*i}]" for i in range(10)]
sW = "s68"
sI = "s69"
sJ = "s70"
sB = "s2"
vL, vN, vQ = "v1", "v2", "v3"

def vr(b, n=4): return f"v[{b}:{b+n-1}]" if n > 1 else f"v{b}"
def ar(b, n=4): return f"a[{b}:{b+n-1}]" if n > 1 else f"a{b}"

def prologue(a, end_label, grid=256, t0=False, page=False):
    if t0: a("s_memrealtime s[98:99]")
    a(f"""
    s_cmp_ge_u32 s2, {grid}
    s_cbranch_scc1 {end_label}
    s_load_dwordx16 s[4:19], s[0:1], 0
    s_load_dwordx8 s[20:27], s[0:1], 64
    v_lshrrev_b32 v4, 6, v0
    v_and_b32 {vL}, 63, v0
    v_readfirstlane_b32 {sW}, v4
    v_and_b32 {vN}, 15, {vL}
    v_lshrrev_b32 {vQ}, 4, {vL}
    """)
    if page: a("s_branch L_main\n.p2align 12\nL_main:")
    a("s_waitcnt lgkmcnt(0)")
    srcs = [(4, S*D*2), (6, D*3*D*2), (8, D*D*2), (12, D*F*2), (14, D*F*2), (16, F*D*2), (18, D*2), (20, D*6*D*2), (22, S*D*2), (26, WS_BYTES)]
    for i, (p, n) in enumerate(srcs):
        b = 28 + 4*i
        a(f"s_mov_b32 s{b}, s{p}\ns_mov_b32 s{b+1}, s{p+1}\ns_mov_b32 s{b+2}, {n}\ns_mov_b32 s{b+3}, 0x20000")

def map_F(a):
    a(f"s_and_b32 {sJ}, {sB}, 7\ns_lshr_b32 {sI}, {sB}, 3")

def map_M(a):
    a(f"""s_and_b32 {sI}, {sB}, 7
    s_lshl_b32 {sI}, {sI}, 2
    s_lshr_b32 s4, {sB}, 6
    s_add_u32 {sI}, {sI}, s4
    s_lshr_b32 {sJ}, {sB}, 3
    s_and_b32 {sJ}, {sJ}, 7""")

def swz_g(a, dst, row, t0):
    a(f"""v_lshrrev_b32 {t0}, 1, {row}
    v_xor_b32 {dst}, {t0}, {row}
    v_lshrrev_b32 {dst}, 2, {dst}
    v_and_b32 {dst}, 1, {dst}
    v_and_b32 {t0}, 1, {t0}
    v_lshl_or_b32 {dst}, {dst}, 1, {t0}""")

def stamp(a, idx, enable):
    if not enable: return
    a(f"""s_memrealtime s[96:97]
    s_waitcnt lgkmcnt(0)
    v_writelane_b32 v0, s96, {idx}""")

def cstamp(a, idx, enable):
    if not enable: return
    a(f"""s_memtime s[96:97]
    s_waitcnt lgkmcnt(0)
    v_writelane_b32 v0, s96, {idx}""")

def stamp_flush(a, lo, hi, enable, extra=()):
    if not enable: return
    a(f"""s_waitcnt vmcnt(0)
    s_lshl_b32 s98, s2, 2
    s_add_u32 s98, s98, {sW}
    s_lshl_b32 s98, s98, 8
    s_add_u32 s98, s98, {STAMPS}
    v_lshlrev_b32 v4, 2, {vL}
    s_mov_b32 exec_lo, {((((1 << hi) - 1) & ~((1 << lo) - 1)) | sum(1 << e for e in extra)) & 0xffffffff}
    s_mov_b32 exec_hi, {((((1 << hi) - 1) & ~((1 << lo) - 1)) | sum(1 << e for e in extra)) >> 32}
    buffer_store_dword v0, v4, {SWS}, s98 offen
    s_mov_b64 exec, -1""")

class Vm:
    def __init__(self, a):
        self.a = a; self.q = []
    def issue(self, text, tag=None):
        self.a(text); self.q.append(tag)
    def wait(self, *tags):
        idx = max((i for i, t in enumerate(self.q) if t in tags), default=-1)
        if idx < 0: return
        n = len(self.q) - 1 - idx
        self.a(f"s_waitcnt vmcnt({n})")
        self.q = self.q[idx+1:]
    def drain(self):
        self.a("s_waitcnt vmcnt(0)"); self.q = []
```

```python
import sys
from gen_common import *
from gen_k0 import tr_addr, dma_chunk
import gen_p1 as P1
import gen_p2 as P2
import gen_p3 as P3
from gen_p1 import HRT, STG, MV, TILES, wfrag, chunk_off16, sMSK, KB, VB, QB, OB

MODT  = MOD + 0x8000
EPOCH = FLAGS + 0x8000
F_O, F_X, F_S, F_P, F_W, F_M = [FLAGS + 0x1000*k for k in range(6)]
sTAG = "s3"
SC1 = "sc1"
WOSTG = 151552
ZB = 92160
POLL_MAX = 1 << 18
OOB = 0x7ffffff0

def map1(a):
    a(f"""s_and_b32 s4, {sB}, 7
    s_lshr_b32 s5, {sB}, 3
    s_lshr_b32 {sI}, s4, 1
    s_lshl_b32 {sI}, {sI}, 3
    s_lshr_b32 s6, s5, 2
    s_add_u32 {sI}, {sI}, s6
    s_and_b32 {sJ}, s4, 1
    s_lshl_b32 {sJ}, {sJ}, 2
    s_and_b32 s6, s5, 3
    s_add_u32 {sJ}, {sJ}, s6""")

def smem_poll(a, name, chunks, wave=1):
    a(f"s_cmp_eq_u32 {sW}, {wave}\ns_cbranch_scc0 L_{name}_skip\ns_mov_b32 s89, 0")
    for ci, (soff, nd, nvalid) in enumerate(chunks):
        a(f"""s_add_u32 s86, s64, {soff}
        s_addc_u32 s87, s65, 0
        L_{name}_{ci}:
        s_load_dwordx{nd} s[40:{40+nd-1}], s[86:87], 0 glc
        s_add_u32 s89, s89, 1
        s_cmp_gt_u32 s89, {POLL_MAX}
        s_cbranch_scc1 L_{name}_to
        s_waitcnt lgkmcnt(0)""")
        for k in range(nvalid): a(f"s_xor_b32 s{40+k}, s{40+k}, {sTAG}")
        n = nvalid; step = 1
        while step < n:
            for k in range(0, n - step, 2*step): a(f"s_or_b32 s{40+k}, s{40+k}, s{40+k+step}")
            step *= 2
        if nvalid == 1: a("s_cmp_lg_u32 s40, 0")
        a(f"s_cbranch_scc1 L_{name}_{ci}")
    a(f"L_{name}_to:\ns_waitcnt lgkmcnt(0)\nL_{name}_skip:")

def vmem_poll(a, name, vaddr, nlanes, wave=1, first_issued=False):
    if wave is not None: a(f"s_cmp_eq_u32 {sW}, {wave}\ns_cbranch_scc0 L_{name}_skip")
    m = (1 << nlanes) - 1
    a(f"s_mov_b32 s89, 0\ns_mov_b32 exec_lo, {m & 0xffffffff}\ns_mov_b32 exec_hi, {m >> 32}")
    if first_issued: a(f"s_branch L_{name}_chk")
    a(f"""L_{name}:
    buffer_load_dword v7, {vaddr}, {SWS}, 0 offen sc1 ;@uncounted
    s_add_u32 s89, s89, 1
    s_cmp_gt_u32 s89, {POLL_MAX}
    s_cbranch_scc1 L_{name}_to
    L_{name}_chk:
    s_waitcnt vmcnt(0)
    v_cmp_ne_u32 vcc, {sTAG}, v7
    s_cbranch_vccnz L_{name}
    L_{name}_to:
    s_waitcnt vmcnt(0)
    s_mov_b64 exec, -1
    L_{name}_skip:""")

def flag_store(a, vm, addr_exprs, wave=0):
    L = a.label("L_fl")
    a(f"s_cmp_eq_u32 {sW}, {wave}\ns_cbranch_scc0 {L}\nv_mov_b32 v4, {sTAG}\ns_mov_b64 exec, 1")
    for e in addr_exprs:
        a(f"buffer_store_dword v4, off, {SWS}, {e} sc1 ;@uncounted")
    a(f"s_mov_b64 exec, -1\n{L}:")

def ln_stats(a, NR, raw, ones, SA, RD, P, ST):
    for k in range(5):
        for r in range(NR):
            x = vr(raw(r, k))
            a(f"v_mfma_f32_16x16x32_bf16 {vr(SA+8*r)}, {vr(ones)}, {x}, {vr(SA+8*r) if k else 0}")
            a(f"v_mfma_f32_16x16x32_bf16 {vr(SA+8*r+4)}, {x}, {x}, {vr(SA+8*r+4) if k else 0}")
    a(f"""s_mul_i32 s89, {sW}, {NR*128}
    s_add_u32 s89, s89, {ST}
    v_lshlrev_b32 v5, 3, {vN}
    v_add_u32 v6, {ST}, v5
    v_add_u32 v5, s89, v5""")
    for r in range(NR):
        b = SA + 8*r
        a(f"""v_cndmask_b32 v{b+1}, v{b+4}, v{b+5}, s[76:77]
        v_cndmask_b32 v{b+1}, v{b+1}, v{b+6}, s[78:79]
        v_cndmask_b32 v{b+1}, v{b+1}, v{b+7}, s[80:81]""")
    a("s_mov_b64 exec, s[82:83]")
    for r in range(NR): a(f"ds_write_b64 v5, {vr(SA+8*r,2)} offset:{r*128}")
    a("s_mov_b64 exec, -1\ns_waitcnt lgkmcnt(0)\ns_barrier")
    for r in range(NR):
        for w in range(4): a(f"ds_read_b64 {vr(RD+8*r+2*w,2)}, v6 offset:{(w*NR + r)*128}")
    for r in range(NR):
        if r % 2 == 0: a(f"s_waitcnt lgkmcnt({max(0, min(15, 4*(NR - r - 2)))})")
        b = RD + 8*r
        a(f"""v_pk_add_f32 {vr(b,2)}, {vr(b,2)}, {vr(b+2,2)}
        v_pk_add_f32 {vr(b+4,2)}, {vr(b+4,2)}, {vr(b+6,2)}
        v_pk_add_f32 {vr(b,2)}, {vr(b,2)}, {vr(b+4,2)}""")
    R = range(NR)
    m = lambda r: f"v{RD+8*r}"; q = lambda r: f"v{RD+8*r+1}"
    for r in R: a(f"v_mul_f32 {m(r)}, {fbits(1.0/576)}, {m(r)}")
    for r in R: a(f"v_mul_f32 {q(r)}, {fbits(1.0/576)}, {q(r)}")
    for r in R: a(f"v_fma_f32 {q(r)}, -{m(r)}, {m(r)}, {q(r)}")
    for r in R: a(f"v_max_f32 {q(r)}, 0, {q(r)}")
    def rnd(f):
        for r in R: a(f"v_cvt_pk_bf16_f32 {f(r)}, {f(r)}, {f(r)}")
        for r in R: a(f"v_and_b32 {f(r)}, {sMSK}, {f(r)}")
    rnd(m); rnd(q)
    for r in R: a(f"v_add_f32 {q(r)}, {fbits(1e-5)}, {q(r)}")
    rnd(q)
    for r in R: a(f"v_sqrt_f32 {q(r)}, {q(r)}")
    rnd(q)
    for r in R: a(f"v_rcp_f32 v{P+2*r}, {q(r)}")
    for r in R: a(f"v_mul_f32 v{P+2*r+1}, -{m(r)}, v{P+2*r}")

def unpack(a, dst, src):
    for d in range(4):
        a(f"v_lshlrev_b32 v{dst+2*d}, 16, v{src+d}\nv_and_b32 v{dst+2*d+1}, {sMSK}, v{src+d}")
def norm(a, u, P):
    for d in range(4):
        a(f"v_pk_fma_f32 {vr(u+2*d,2)}, {vr(u+2*d,2)}, {vr(P,2)}, {vr(P,2)} op_sel:[0,0,1] op_sel_hi:[1,0,1]")
def modfma(a, u, b):
    for d in range(4):
        a(f"v_pk_fma_f32 {vr(u+2*d,2)}, {vr(u+2*d,2)}, {vr(b+2*d,2)}, {vr(b+8+2*d,2)}")
def pack(a, dst, u):
    for d in range(4): a(f"v_cvt_pk_bf16_f32 v{dst+d}, v{u+2*d}, v{u+2*d+1}")
def mread(a, k):
    b = 24 + 16*(k & 1)
    a(f"""ds_read_b128 {vr(b)}, v23 offset:{2304 + k*512}
    ds_read_b128 {vr(b+4)}, v23 offset:{2304 + k*512 + 16}
    ds_read_b128 {vr(b+8)}, v23 offset:{k*512}
    ds_read_b128 {vr(b+12)}, v23 offset:{k*512 + 16}""")

def ln_apply(a, NR, raw, P, has5, name):
    mread(a, 0)
    cnt = 0
    for k in range(5):
        if k == 4: a(f"{has5}\ns_cbranch_scc0 L_{name}_e")
        if k < 4: mread(a, k+1)
        for r in range(NR):
            u = 56 + 8*(cnt & 1); t = 72 + 4*(cnt & 1); cnt += 1
            unpack(a, u, raw(r, k))
            if P is not None: norm(a, u, P + 2*r)
            if r == 0: a(f"s_waitcnt lgkmcnt({4 if k == 0 else NR + 4 if k < 4 else NR})")
            modfma(a, u, 24 + 16*(k & 1)); pack(a, t, u)
            ad, off = ("v18", r*HRT) if r < 3 else ("v19", (r-3)*HRT)
            a(f"ds_write_b128 {ad}, {vr(t)} offset:{off + 4096*k}")
    a(f"s_waitcnt lgkmcnt(0)\nL_{name}_e:\n;@assume_drained_lg\ns_waitcnt lgkmcnt(0)")

R1 = lambda r, k: 124 + 4*(5*r + k)
R2 = lambda r, k: 144 + 4*(5*r + k)

def setup1(a):
    tabs = []
    for w in range(4):
        e = []
        for T in TILES[w] + [99]*(4-len(TILES[w])):
            e += [chunk_off16(T, 0), chunk_off16(T, 1)]
        tabs.append((e[0] | e[1] << 8 | e[2] << 16 | e[3] << 24, e[4] | e[5] << 8 | e[6] << 16 | e[7] << 24))
    a(f"""s_sub_u32 s88, 3, {sW}
    s_lshl_b32 s4, {sI}, 6
    s_movk_i32 s7, 1152
    s_lshl_b32 s5, s88, 6
    v_add_u32 v18, s4, {vN}
    v_mul_lo_u32 v18, v18, s7
    v_lshl_add_u32 v18, {vQ}, 4, v18
    v_add_u32 v18, s5, v18
    s_sub_i32 s4, s4, 16
    v_add_u32 v19, s4, {vN}
    v_max_i32 v19, 0, v19
    v_mul_lo_u32 v19, v19, s7
    v_lshl_add_u32 v19, {vQ}, 4, v19
    v_add_u32 v19, s5, v19
    s_cmp_ge_u32 {sW}, 2
    s_cselect_b32 s5, 0, 0x7ff00000
    v_add_u32 v20, s5, v18
    v_add_u32 v22, s5, v19
    v_lshlrev_b32 v21, 4, {vL}""")

def loads_mod(a):
    a(f"""s_cmp_lt_u32 {sB}, 54
    s_cbranch_scc0 L_nomod1
    s_mul_i32 s4, {sW}, 144
    v_lshrrev_b32 v4, 3, {vL}
    v_add_u32 v16, s4, v4
    v_lshlrev_b32 v17, 1, v16
    s_movk_i32 s5, 6912
    v_mul_lo_u32 v16, v16, s5
    v_and_b32 v4, 7, {vL}
    v_lshl_add_u32 v16, v4, 4, v16
    s_lshl_b32 s5, {sB}, 7
    v_add_u32 v16, s5, v16""")
    for t in range(18):
        a(f"s_mov_b32 s4, {55296*t}\nbuffer_load_dwordx4 {vr(48+4*t)}, v16, {SMOD}, s4 offen")
    for t in range(18):
        a(f"buffer_load_ushort v{24+t}, v17, {SC}, 0 offen offset:{16*t}")
    a("L_nomod1:")

def loads_x(a):
    for k in range(5):
        for r in range(5):
            v = ("v19" if r == 0 else "v18") if k < 4 else ("v22" if r == 0 else "v20")
            so = "0" if r <= 1 else f"s{3 + r}"
            if k == 0 and r >= 2: a(f"s_mov_b32 s{3+r}, {(r-1)*HRT}")
            a(f"buffer_load_dwordx4 {vr(R1(r,k))}, {v}, {SX}, {so} offen offset:{256*k}")

def setup1b(a):
    tabs = []
    for w in range(4):
        e = []
        for T in TILES[w] + [99]*(4-len(TILES[w])):
            e += [chunk_off16(T, 0), chunk_off16(T, 1)]
        tabs.append((e[0] | e[1] << 8 | e[2] << 16 | e[3] << 24, e[4] | e[5] << 8 | e[6] << 16 | e[7] << 24))
    a(f"s_mov_b32 s4, {tabs[0][0]}\ns_mov_b32 s5, {tabs[0][1]}")
    for w in range(1, 4):
        a(f"s_cmp_eq_u32 {sW}, {w}\ns_cselect_b32 s4, {tabs[w][0]}, s4\ns_cselect_b32 s5, {tabs[w][1]}, s5")
    a(f"""s_mul_i32 s6, {sJ}, 144
    s_movk_i32 s7, 3456
    v_lshrrev_b32 v10, 3, {vL}
    v_mul_lo_u32 v10, v10, s7
    v_add_u32 v10, s6, v10
    v_mov_b32 v11, s4
    v_mov_b32 v12, s5
    v_mov_b32 v13, {OOB}""")
    for odd in range(2):
        dma_chunk(a, f"v{14+odd}", odd, "v4", "v5")
        a(f"""v_cmp_gt_u32 vcc, 4, v{14+odd}
        v_cndmask_b32 v4, v12, v11, vcc
        v_and_b32 v5, 3, v{14+odd}
        v_lshlrev_b32 v5, 3, v5
        v_lshrrev_b32 v4, v5, v4
        v_and_b32 v4, 0xff, v4
        v_lshl_add_u32 v5, v4, 4, v10
        v_cmp_eq_u32 vcc, 0xff, v4
        v_cndmask_b32 v{8+odd}, v5, v13, vcc""")
    a(f"s_lshl_b32 s84, {sW}, 15\ns_add_u32 s84, s84, {STG}")

def wo_dma(a):
    a(f"""s_cmp_ge_u32 {sB}, 112
    s_cselect_b32 s85, {sW}, 0
    s_cmp_eq_u32 s85, 1
    s_cbranch_scc0 L_nowo1
    s_sub_u32 s4, {sB}, 112
    s_mul_i32 s5, s4, 57
    s_lshr_b32 s5, s5, 10
    s_mul_i32 s6, s5, 18
    s_sub_u32 s6, s4, s6
    s_mul_i32 s7, s6, {32*1152}
    s_mul_i32 s8, s5, 144
    s_add_u32 s7, s7, s8
    s_mul_i32 s5, s5, 90
    s_add_u32 s5, s5, s6
    s_lshl_b32 s5, s5, 10
    s_add_u32 s91, s5, {WO_SW}
    s_movk_i32 s8, 1152
    v_lshrrev_b32 v4, 3, {vL}
    v_mul_lo_u32 v4, v4, s8
    v_lshl_add_u32 v5, v15, 4, v4
    v_lshl_add_u32 v4, v14, 4, v4
    v_mul_lo_u32 v6, {vL}, s8
    v_add_u32 v6, 128, v6
    v_cmp_gt_u32 vcc, 32, {vL}
    v_cndmask_b32 v6, v13, v6, vcc
    s_mov_b32 m0, {WOSTG + 4096}
    s_nop 0
    buffer_load_dwordx4 v6, {SWO}, s7 offen lds""")
    for ii in range(4):
        a(f"s_mov_b32 m0, {WOSTG + ii*1024}\ns_nop 0\nbuffer_load_dwordx4 v{4 + (ii&1)}, {SWO}, s7 offen lds")
        if ii < 3: a(f"s_add_u32 s7, s7, {8*1152}")
    a("L_nowo1:")

def tr_setup(a):
    a(f"v_lshrrev_b32 v6, 2, {vN}\nv_lshl_add_u32 v7, {vQ}, 3, v6")
    tr_addr(a, "v10", "v7", "v4", "v5")
    a("v_add_u32 v7, 4, v7"); tr_addr(a, "v11", "v7", "v4", "v5")
    for tau in range(1, 4):
        a(f"v_xor_b32 v{10+2*tau}, {32*tau}, v10\nv_xor_b32 v{11+2*tau}, {32*tau}, v11")
    for r in range(10, 18): a(f"v_add_u32 v{r}, s84, v{r}")
    a(f"""s_lshl_b32 s4, s88, 10
    v_add_u32 v18, s4, v21
    v_add_u32 v19, {3*HRT}, v18
    v_add_u32 v22, {3*HRT}, v21
    s_lshl_b32 s4, s88, 7
    s_add_u32 s4, s4, {MV}
    v_lshlrev_b32 v23, 5, {vQ}
    v_add_u32 v23, s4, v23""")
    P1.ln_masks(a)

def mod_compute(a):
    MZ = 4096
    a(f"""s_cmp_lt_u32 {sB}, 54
    s_cbranch_scc0 L_nomod2
    s_waitcnt vmcnt(57)
    v_mov_b32 v42, {fbits(-LOG2E)}""")
    for t in range(18): a(f"v_lshlrev_b32 v{24+t}, 16, v{24+t}")
    for t0 in range(0, 18, 6):
        T = range(t0, t0+6); tmp = lambda t: f"v{224 + t - t0}"
        for t in T: a(f"v_mul_f32 {tmp(t)}, v42, v{24+t}")
        for t in T: a(f"v_exp_f32 {tmp(t)}, {tmp(t)}")
        for t in T: a(f"v_add_f32 {tmp(t)}, 1.0, {tmp(t)}")
        for t in T: a(f"v_rcp_f32 {tmp(t)}, {tmp(t)}")
        for t in T: a(f"v_mul_f32 {tmp(t)}, {tmp(t)}, v{24+t}")
        for t in T: a(f"v_cvt_pk_bf16_f32 {tmp(t)}, {tmp(t)}, {tmp(t)}")
        for t in T: a(f"v_and_b32 v{24+t}, {sMSK}, {tmp(t)}")
    for t in range(18):
        pp = vr(24 + (t & ~1), 2)
        sel = "op_sel:[0,1,0] op_sel_hi:[1,1,1]" if t & 1 else "op_sel:[0,0,0] op_sel_hi:[1,0,1]"
        sel2 = "op_sel:[0,0] op_sel_hi:[1,0]"
        unpack(a, 240, 48 + 4*t)
        for d in range(4):
            if t == 0: a(f"v_pk_mul_f32 {vr(224+2*d,2)}, {vr(240+2*d,2)}, {pp} {sel2}")
            else: a(f"v_pk_fma_f32 {vr(224+2*d,2)}, {vr(240+2*d,2)}, {pp}, {vr(224+2*d,2)} {sel}")
    for e in range(8):
        a(f"v_add_f32_dpp v{224+e}, v{224+e}, v{224+e} row_ror:8 row_mask:0xf bank_mask:0xf")
    for op in ("v_permlane16_swap_b32", "v_permlane32_swap_b32"):
        for e in range(8): a(f"v_mov_b32 v{232+e}, v{224+e}")
        for e in range(8): a(f"{op} v{224+e}, v{232+e}")
        for e in range(8): a(f"v_add_f32 v{224+e}, v{224+e}, v{232+e}")
    a(f"""v_and_b32 v4, 7, {vL}
    v_lshlrev_b32 v4, 5, v4
    s_lshl_b32 s4, {sW}, 8
    s_add_u32 s4, s4, {MZ}
    v_add_u32 v4, s4, v4
    ds_write_b128 v4, v[224:227]
    ds_write_b128 v4, v[228:231] offset:16
    s_waitcnt lgkmcnt(0)
    s_barrier
    s_cmp_eq_u32 {sW}, 0
    s_cbranch_scc0 L_nomod2
    v_lshlrev_b32 v4, 2, {vL}
    v_add_u32 v5, {MZ}, v4
    ds_read_b32 v24, v5
    ds_read_b32 v25, v5 offset:256
    ds_read_b32 v26, v5 offset:512
    ds_read_b32 v27, v5 offset:768
    s_mul_i32 s4, {sB}, 57
    s_lshr_b32 s4, s4, 9
    s_cmp_eq_u32 s4, 1
    s_cselect_b32 s5, 1, 0
    s_cmp_eq_u32 s4, 4
    s_cselect_b32 s5, 1, s5
    s_cmp_eq_u32 s5, 1
    s_cselect_b64 vcc, -1, 0
    s_waitcnt lgkmcnt(0)
    v_add_f32 v24, v24, v25
    v_add_f32 v26, v26, v27
    v_add_f32 v24, v24, v26
    v_cvt_pk_bf16_f32 v24, v24, v24
    v_and_b32 v24, {sMSK}, v24
    v_add_f32 v25, 1.0, v24
    v_cvt_pk_bf16_f32 v25, v25, v25
    v_and_b32 v25, {sMSK}, v25
    v_cndmask_b32 v24, v24, v25, vcc
    s_cmp_lt_u32 {sB}, 18
    s_cbranch_scc0 L_modplain
    v_mov_b32 v25, {sTAG}
    v_lshlrev_b32 v4, 3, {vL}
    s_lshl_b32 s4, {sB}, 9
    s_add_u32 s4, s4, {MODT}
    buffer_store_dwordx2 v[24:25], v4, {SWS}, s4 offen sc1 ;@uncounted
    s_branch L_nomod2
    L_modplain:
    s_lshl_b32 s4, {sB}, 8
    s_add_u32 s4, s4, {MOD}
    buffer_store_dword v24, v4, {SWS}, s4 offen sc1 ;@uncounted
    L_nomod2:""")

def wo_tr(a):
    a(f"""s_cmp_eq_u32 s85, 1
    s_cbranch_scc0 L_nowo2
    s_waitcnt vmcnt(32)
    v_lshrrev_b32 v6, 2, {vN}
    v_lshl_add_u32 v7, {vQ}, 3, v6""")
    from gen_common import swz_g
    for hf in range(2):
        if hf: a("v_add_u32 v7, 4, v7")
        swz_g(a, "v4", "v7", "v5")
        a(f"""v_lshlrev_b32 v4, 1, v4
        v_and_b32 v5, 3, {vN}
        v_xor_b32 v4, v4, v5
        v_lshlrev_b32 v4, 4, v4
        v_lshl_or_b32 v4, v7, 7, v4
        v_add_u32 v{24+hf}, {WOSTG}, v4
        v_xor_b32 v{26+hf}, 64, v{24+hf}
        v_and_b32 v5, 1, v5
        v_lshlrev_b32 v5, 3, v5
        v_lshl_or_b32 v5, v7, 4, v5
        v_add_u32 v{28+hf}, {WOSTG + 4096}, v5""")
    for t in range(4):
        x, y = (24, 25) if t < 2 else (26, 27)
        a(f"ds_read_b64_tr_b16 {vr(32+4*t,2)}, v{x} offset:{8*(t&1)}\nds_read_b64_tr_b16 {vr(34+4*t,2)}, v{y} offset:{8*(t&1)}")
    a(f"ds_read_b64_tr_b16 {vr(48,2)}, v28\nds_read_b64_tr_b16 {vr(50,2)}, v29\ns_waitcnt lgkmcnt(0)")
    for t in range(5):
        a(f"buffer_store_dwordx4 {vr(32+4*t)}, v21, {SWS}, s91 offen sc1 ;@uncounted")
        if t < 4: a("s_add_u32 s91, s91, 18432")
    a("s_nop 1\nL_nowo2:")

def ln1_pre(a):
    for r in range(4): a(f"v_mov_b32 v{120+r}, 0x3f803f80")
    a("s_waitcnt vmcnt(32)")
    ln_stats(a, 5, R1, 120, 24, 64, 104, 0)
    cnt = 0
    for k in range(5):
        for r in range(5):
            u = 24 + 8*(cnt & 1); cnt += 1
            unpack(a, u, R1(r, k)); norm(a, u, 104 + 2*r); pack(a, R1(r, k), u)

def early_flags(a):
    a(f"""s_cmp_eq_u32 s85, 1
    s_cbranch_scc0 L_nofw
    s_lshl_b32 s4, {sB}, 2
    s_add_u32 s4, s4, {F_W - 112*4}
    v_mov_b32 v4, {sTAG}
    s_mov_b64 exec, 1
    buffer_store_dword v4, off, {SWS}, s4 sc1 ;@uncounted
    s_mov_b64 exec, -1
    L_nofw:
    s_cmp_eq_u32 {sW}, 0
    s_cselect_b32 s4, {sB}, 0
    s_cmp_ge_u32 s4, 18
    s_cselect_b32 s4, s4, 99
    s_cmp_lt_u32 s4, 54
    s_cbranch_scc0 L_nofm
    s_lshl_b32 s4, s4, 2
    s_add_u32 s4, s4, {F_M - 18*4}
    v_mov_b32 v4, {sTAG}
    s_mov_b64 exec, 1
    buffer_store_dword v4, off, {SWS}, s4 sc1 ;@uncounted
    s_mov_b64 exec, -1
    L_nofm:""")

def ffn_decode(a):
    a(f"""s_and_b32 s22, {sB}, 7
    s_lshr_b32 s23, {sB}, 3
    s_lshl_b32 s23, s23, 2
    s_add_u32 s23, s23, {sW}""")
    a(f"""s_mul_i32 s24, s23, 241
    s_lshr_b32 s24, s24, 13
    s_mul_i32 s25, s24, 34
    s_sub_u32 s25, s23, s25
    s_add_u32 s25, s25, 128""")
    for grp, rem in ((0, "s23"), (1, "s25")):
        a(f"""s_mul_i32 s26, {rem}, 57
        s_lshr_b32 s26, s26, 9
        s_mul_i32 s27, s26, 9
        s_sub_u32 s27, {rem}, s27
        s_mul_i32 s4, s26, {32*9216}
        s_mul_i32 s5, s22, 1152
        s_add_u32 s4, s4, s5
        s_lshl_b32 s7, s27, 7
        s_add_u32 s4, s4, s7
        s_mul_i32 s5, s22, {576*1152}
        s_mul_i32 s6, s26, {32*1152}
        s_add_u32 s5, s5, s6
        s_add_u32 s5, s5, s7
        s_mul_i32 s6, s22, 36
        s_lshl_b32 s7, s27, 2
        s_add_u32 s6, s6, s7
        s_mul_i32 s6, s6, 18
        s_add_u32 s6, s6, s26
        s_lshl_b32 s7, s6, 11
        s_add_u32 s7, s7, {WGU_SW}
        s_lshl_b32 s6, s6, 10
        s_add_u32 s6, s6, {WD_SW}""")
        if grp == 0:
            a("s_mov_b32 s10, s4\ns_mov_b32 s11, s7\ns_mov_b32 s12, s5\ns_mov_b32 s13, s6")
        else:
            a(f"""s_lshl_b32 s8, s24, 10
            s_add_u32 s7, s7, s8
            s_cmp_eq_u32 s24, 2
            s_cselect_b32 s14, s5, s4
            s_cselect_b32 s15, s6, s7
            s_mov_b32 s16, 36864
            s_cselect_b32 s16, 18432, s16
            s_movk_i32 s17, 9216
            s_cselect_b32 s17, 1152, s17
            s_cselect_b32 s72, s48, s40
            s_cselect_b32 s73, s49, s41
            s_cmp_eq_u32 s24, 1
            s_cselect_b32 s72, s44, s72
            s_cselect_b32 s73, s45, s73
            s_mov_b32 s74, {D*F*2}
            s_cmp_ge_u32 s24, 3
            s_cselect_b32 s74, 0, s74
            s_cselect_b32 s15, 0x7ff00000, s15
            s_mov_b32 s75, 0x20000
            s_mov_b32 s18, s24""")
    a(f"s_lshl_b32 s19, {sW}, 14\ns_add_u32 s19, s19, {ZB}")

def ffn_dma_fillers():
    f = []
    class C:
        def __call__(self, s):
            for l in s.split("\n"):
                if l.strip(): f.append(l.strip())
    c = C()
    dma_chunk(c, "v150", 0, "v4", "v5"); dma_chunk(c, "v151", 1, "v4", "v5")
    c(f"""v_lshlrev_b32 v150, 4, v150
    v_lshlrev_b32 v151, 4, v151
    v_lshrrev_b32 v6, 3, {vL}
    v_mul_u32_u24 v4, 9216, v6
    v_add_u32 v144, v4, v150
    v_add_u32 v145, v4, v151
    v_mul_u32_u24 v4, 1152, v6
    v_add_u32 v146, v4, v150
    v_add_u32 v147, v4, v151
    v_mul_u32_u24 v4, s17, v6
    v_add_u32 v148, v4, v150
    v_add_u32 v149, v4, v151""")
    for it in range(4):
        srd = [SWG, SWU, SWD, "s[72:75]"][it]
        src = ["s10", "s10", "s12", "s14"][it]
        vb = [144, 144, 146, 148][it]
        for ii in range(4):
            g = [f"s_add_u32 m0, s19, {it*4096 + ii*1024}"]
            if it < 3: g.append(f"s_add_u32 s20, {src}, {ii*8*[9216, 9216, 1152][it]}")
            elif ii == 0: g.append(f"s_mov_b32 s20, {src}\ns_lshl_b32 s21, s17, 3")
            else: g.append("s_add_u32 s20, s20, s21")
            g.append(f"buffer_load_dwordx4 v{vb + (ii&1)}, {srd}, s20 offen lds")
            f.append("\n".join(g))
    return f

def rec_fillers(w):
    f = []; jobs = []
    class C:
        def __call__(self, s):
            for l in s.split("\n"):
                if l.strip(): f.append(l.strip())
    c = C()
    spec = {0: [(0, 0, 'K', None), (1, 1, 'K', None), (2, 9, 'Q', None), (3, 10, 'Q', None)],
            1: [(0, 2, 'K', None), (1, 3, 'K', None), (2, 11, 'Q', None), (3, 12, 'Q', None)],
            2: [(1, 5, 'V', None), (2, 6, 'V', None), (0, 4, 'K', 'lo'), (0, 4, 'V', 'hi')],
            3: [(0, 7, 'V', None), (1, 8, 'V', None), (2, 13, 'Q', 'lo')]}[w]
    for n, (tau, T, kind, ex) in enumerate(spec):
        for p in range(2): P1.rec_addr(c, f"v{152+2*n+p}", T, p, kind)
        jobs.append((tau, kind, 152 + 2*n, ex))
    return f, jobs

ACC1 = lambda tau, rt: 24 + 4*(5*tau + rt)
BB1 = lambda s, rt: 104 + 20*(s & 1) + 4*rt

def qkv_gemm(a, w):
    units = [(t, rt) for rt in range(5) for t in range(4) if t < 2 or rt > 0] if w < 2 else [(t, rt) for rt in range(5) for t in range(3)]
    rf, jobs = rec_fillers(w)
    fill = ffn_dma_fillers() + rf + [f"""s_and_b32 s4, {sB}, 63
        s_lshr_b32 s4, s4, 3
        s_mul_i32 s4, s4, 72
        s_add_u32 s4, s4, {F_W - 36*4}""", f"v_lshlrev_b32 v160, 2, {vL}", f"v_add_u32 v4, {F_M}, v160", "v_add_u32 v160, s4, v160",
        f"v_cmp_gt_u32 vcc, 36, {vL}", "v_cndmask_b32 v160, v160, v4, vcc"]
    def rd(s, rt):
        ad, off = ("v21", rt*HRT) if rt < 3 else ("v22", (rt-3)*HRT)
        return f"ds_read_b128 {vr(BB1(s, rt))}, {ad} offset:{off + s*1024}"
    for rt in range(5): a(rd(0, rt))
    for s in range(18):
        a("s_waitcnt lgkmcnt(0)")
        nxt = [rd(s+1, rt) for rt in range(5)] if s < 17 else []
        for n, (tau, rt) in enumerate(units):
            acc = vr(ACC1(tau, rt))
            a(f"v_mfma_f32_16x16x32_bf16 {acc}, {wfrag(tau, s)}, {vr(BB1(s, rt))}, {acc if s else 0}")
            if nxt and n % 2 == 0: a(nxt.pop(0))
            elif fill: a(fill.pop(0))
        assert not nxt
    assert not fill, len(fill)
    return jobs

def rec_write(a, jobs):
    for tau, kind, reg, ex in jobs:
        if ex == 'lo': a("s_mov_b32 exec_lo, -1\ns_mov_b32 exec_hi, 0")
        if ex == 'hi': a("s_mov_b32 exec_lo, 0\ns_mov_b32 exec_hi, -1")
        n = 0
        for rt in range(5):
            if kind == 'Q' and rt == 0: continue
            acc = ACC1(tau, rt)
            for p in range(2):
                if kind == 'V':
                    a(f"ds_write_b64 v{reg+p}, {vr(acc+2*p,2)} offset:{rt*1280}")
                else:
                    t = 4 + (n % 3); n += 1
                    a(f"v_cvt_pk_bf16_f32 v{t}, v{acc+2*p}, v{acc+2*p+1}")
                    a(f"ds_write_b32 v{reg+p}, v{t} offset:{(rt - (kind == 'Q'))*768}")
    a("s_mov_b64 exec, -1")

def z_tr(a):
    a(f"v_mov_b32 v162, v160\nv_lshrrev_b32 v6, 2, {vN}\nv_lshl_add_u32 v163, {vQ}, 3, v6")
    tr_addr(a, "v8", "v163", "v4", "v5")
    a("v_add_u32 v163, 4, v163"); tr_addr(a, "v9", "v163", "v4", "v5")
    a(f"v_lshl_add_u32 v163, {vQ}, 2, v6"); tr_addr(a, "v10", "v163", "v4", "v5")
    a("v_add_u32 v163, 16, v163"); tr_addr(a, "v11", "v163", "v4", "v5")
    for r in range(8, 12): a(f"v_add_u32 v{r}, s19, v{r}")
    a("""s_cmp_eq_u32 s18, 2
    s_cselect_b64 vcc, -1, 0
    v_cndmask_b32 v12, v8, v10, vcc
    v_cndmask_b32 v13, v9, v11, vcc""")
    for tau in range(1, 4):
        for k in range(6): a(f"v_xor_b32 v{144 + 6*(tau-1) + k}, {32*tau}, v{8+k}")
    vmem_poll(a, "pw", "v162", 54, wave=None, first_issued=True)
    for it in range(4):
        k = [0, 0, 2, 4][it]
        for tau in range(4):
            x = 8 + k if tau == 0 else 144 + 6*(tau-1) + k
            b = 16*it + 4*tau
            a(f"ds_read_b64_tr_b16 {ar(b,2)}, v{x} offset:{it*4096}\nds_read_b64_tr_b16 {ar(b+2,2)}, v{x+1} offset:{it*4096}")

def z_store(a, vm, its):
    for it in its:
        dst = ["s11", "s11", "s13", "s15"][it]
        for tau in range(4):
            if it < 3: a(f"s_add_u32 s20, {dst}, {tau*[36864, 36864, 18432][it] + (1024 if it == 1 else 0)}")
            elif tau == 0: a(f"s_mov_b32 s20, {dst}")
            else: a("s_add_u32 s20, s20, s16")
            vm.issue(f"buffer_store_dwordx4 {ar(16*it + 4*tau)}, v21, {SWS}, s20 offen sc1", 'sw')

def poll_mod(a):
    a(f"""s_lshl_b32 s4, {sW}, 10
    s_add_u32 s5, s4, {MODT}
    s_add_u32 s6, s5, 4096
    s_cmp_eq_u32 {sW}, 0
    s_cselect_b32 s7, 8192, s4
    s_lshr_b32 s8, s7, 1
    s_add_u32 s7, s7, {MODT}
    s_lshr_b32 s4, s4, 1
    v_lshlrev_b32 v5, 3, {vL}
    v_add_u32 v5, {MV}, v5
    v_add_u32 v6, s8, v5
    v_add_u32 v5, s4, v5
    v_add_u32 v7, 2048, v5
    s_mov_b32 s89, 0
    L_pm:
    buffer_load_dwordx4 v[24:27], v21, {SWS}, s5 offen sc1
    buffer_load_dwordx4 v[28:31], v21, {SWS}, s6 offen sc1
    buffer_load_dwordx4 v[32:35], v21, {SWS}, s7 offen sc1
    s_add_u32 s89, s89, 1
    s_cmp_gt_u32 s89, {POLL_MAX}
    s_cbranch_scc1 L_pm_done
    s_waitcnt vmcnt(0)
    v_xor_b32 v25, {sTAG}, v25
    v_xor_b32 v27, {sTAG}, v27
    v_xor_b32 v29, {sTAG}, v29
    v_xor_b32 v31, {sTAG}, v31
    v_xor_b32 v33, {sTAG}, v33
    v_xor_b32 v35, {sTAG}, v35
    v_or3_b32 v25, v25, v27, v29
    v_or3_b32 v31, v31, v33, v35
    v_or_b32 v25, v25, v31
    v_cmp_ne_u32 vcc, 0, v25
    s_cbranch_vccnz L_pm
    L_pm_done:
    s_waitcnt vmcnt(0)
    ds_write2_b32 v5, v24, v26 offset1:1
    ds_write2_b32 v7, v28, v30 offset1:1
    ds_write2_b32 v6, v32, v34 offset1:1""")

def interleave(a, emit, fillers, every):
    t = Asm(); emit(t)
    n = 0; cond = False
    for l in t.ins:
        a(l)
        if l.startswith('s_cbranch'): cond = True
        if l.endswith(':'): cond = False
        if l.startswith(('v_', 'ds_')) and not cond:
            n += 1
            if n % every == 0 and fillers: a(fillers.pop(0))
    for f in fillers: a(f)

def wo_dma_fillers():
    f = [f"""s_mul_i32 s8, {sJ}, 90
    s_add_u32 s8, s8, {sW}
    s_lshl_b32 s8, s8, 10
    s_add_u32 s8, s8, {WO_SW}
    s_lshl_b32 s9, {sW}, 10
    s_add_u32 s9, s9, {P2.WOB}"""]
    for k in range(23):
        f.append(f"s_add_u32 m0, s9, {k*4096}\ns_add_u32 s20, s8, {k*4096}\nbuffer_load_dwordx4 v21, {SWS}, s20 offen sc1 lds")
    return f

def tail_prefetch(a, vm):
    a(f"""v_lshrrev_b32 v4, 1, {vQ}
    v_lshlrev_b32 v4, 8, v4
    v_lshl_add_u32 v4, {vN}, 4, v4
    v_and_b32 v5, 1, {vQ}
    v_lshl_add_u32 v4, v5, 3, v4
    v_mul_u32_u24 v5, 1152, {vN}
    v_lshl_add_u32 v5, {vQ}, 3, v5
    v_lshlrev_b32 v6, 4, {vQ}
    s_lshl_b32 s50, {sI}, 2
    s_mul_i32 s51, s50, 72
    s_lshl_b32 s52, {sJ}, 3
    s_lshl_b32 s53, {sW}, 1
    s_add_u32 s52, s52, s53
    s_add_u32 s52, s52, s51
    s_lshl_b32 s52, s52, 8
    s_add_u32 s52, s52, {X1}
    s_lshl_b32 s53, {sJ}, 2
    s_add_u32 s53, s53, {sW}
    s_lshl_b32 s54, s53, 6
    s_add_u32 s54, s54, {MOD + 5*2304}
    s_mul_i32 s55, {sI}, {64*1152}
    s_lshl_b32 s53, s53, 5
    s_add_u32 s55, s55, s53
    s_and_b32 s56, {sJ}, 1
    s_lshl_b32 s56, s56, 1
    s_and_b32 s57, {sW}, 1
    s_add_u32 s56, s56, s57
    s_lshr_b32 s57, {sJ}, 1
    s_add_u32 s58, s50, s57
    s_mul_i32 s59, s58, {16*1152}
    s_lshl_b32 s53, s56, 5
    s_add_u32 s59, s59, s53
    s_add_u32 s59, s59, 1024
    s_mul_i32 s58, s58, 72
    s_lshl_b32 s53, s56, 1
    s_add_u32 s58, s58, s53
    s_add_u32 s58, s58, 64
    s_lshl_b32 s58, s58, 8
    s_add_u32 s58, s58, {X1}
    s_lshl_b32 s53, s56, 6
    s_add_u32 s53, s53, {MOD + 5*2304 + 512*4}
    s_cmp_lt_u32 {sW}, 2
    s_cselect_b32 s51, 0, 0x7ff00000
    v_add_u32 v7, s51, v5
    v_add_u32 v17, s51, v21""")
    for r in range(4):
        vm.issue(f"buffer_load_dwordx2 {vr(64+2*r,2)}, v4, {SWS}, s52 offen sc1", 'tx')
        if r < 3: a(f"s_add_u32 s52, s52, {72*256}")
    vm.issue(f"buffer_load_dwordx4 v[72:75], v6, {SWS}, s54 offen sc1", 'tx')
    vm.issue(f"buffer_load_dwordx2 v[76:77], v4, {SWS}, s58 offen sc1", 'tx')
    vm.issue(f"buffer_load_dwordx4 v[80:83], v6, {SWS}, s53 offen sc1", 'tx')

def tail(a, vm, stamps):
    acc0 = 24
    vm.drain()
    a("s_barrier")
    a(f"""s_lshl_b32 s22, {sI}, 5
    s_add_u32 s22, s22, {F_P}
    s_lshl_b32 s23, {sJ}, 2
    s_add_u32 s23, s23, s22""")
    flag_store(a, vm, ["s23"])
    stamp(a, 26, stamps)
    a(f"v_lshlrev_b32 v8, 2, {vL}\nv_add_u32 v8, s22, v8\nv_mov_b32 v12, v7")
    vmem_poll(a, "pp", "v8", 8)
    a("v_mov_b32 v7, v12")
    a("s_barrier")
    stamp(a, 27, stamps)
    a(f"""s_mul_i32 s4, {sI}, 9
    s_add_u32 s5, s4, {sJ}
    s_lshl_b32 s5, s5, 5
    s_add_u32 s5, s5, {sW}
    s_lshl_b32 s5, s5, 11
    s_add_u32 s5, s5, {PART}""")
    for p in range(1, 8):
        a(f"s_add_u32 s6, {sJ}, {p}\ns_and_b32 s6, s6, 7\ns_lshl_b32 s6, s6, 13\ns_add_u32 s6, s6, s5")
        vm.issue(f"buffer_load_dwordx4 {vr(96+8*p)}, v21, {SWS}, s6 offen sc1", f'p{p}')
        vm.issue(f"buffer_load_dwordx4 {vr(100+8*p)}, v21, {SWS}, s6 offen offset:1024 sc1", f'p{p}')
    a(f"""s_add_u32 s5, s4, 8
    s_lshl_b32 s5, s5, 5
    s_add_u32 s5, s5, s56
    s_lshl_b32 s5, s5, 11
    s_add_u32 s5, s5, {PART}
    s_lshr_b32 s8, s57, 1
    s_lshl_b32 s8, s8, 10
    s_add_u32 s5, s5, s8
    s_and_b32 s8, s57, 1
    s_lshl_b32 s8, s8, 3
    s_add_u32 s5, s5, s8""")
    for p in range(8):
        vm.issue(f"buffer_load_dwordx2 {vr(160+2*p,2)}, v17, {SWS}, s5 offen sc1", 'p8')
        if p < 7: a("s_add_u32 s5, s5, 8192")
    def acc_add(dst, sreg, first=False):
        if first:
            a(f"""v_lshlrev_b32 v{dst}, 16, v{sreg}
            v_and_b32 v{dst+1}, {sMSK}, v{sreg}
            v_lshlrev_b32 v{dst+2}, 16, v{sreg+1}
            v_and_b32 v{dst+3}, {sMSK}, v{sreg+1}""")
        else:
            a(f"""v_lshlrev_b32 v8, 16, v{sreg}
            v_and_b32 v9, {sMSK}, v{sreg}
            v_lshlrev_b32 v10, 16, v{sreg+1}
            v_and_b32 v11, {sMSK}, v{sreg+1}
            v_pk_add_f32 {vr(dst,2)}, {vr(dst,2)}, v[8:9]
            v_pk_add_f32 {vr(dst+2,2)}, {vr(dst+2,2)}, v[10:11]""")
    def finish(acc, xr, gb, vaddr, soff):
        a(f"""v_lshlrev_b32 v8, 16, v{xr}
        v_and_b32 v9, {sMSK}, v{xr}
        v_lshlrev_b32 v10, 16, v{xr+1}
        v_and_b32 v11, {sMSK}, v{xr+1}
        v_pk_fma_f32 v[8:9], {vr(acc,2)}, {vr(gb,2)}, v[8:9]
        v_pk_fma_f32 v[10:11], {vr(acc+2,2)}, {vr(gb+2,2)}, v[10:11]
        v_cvt_pk_bf16_f32 v{acc}, v8, v9
        v_cvt_pk_bf16_f32 v{acc+1}, v10, v11""")
        vm.issue(f"buffer_store_dwordx2 {vr(acc,2)}, {vaddr}, {SOUT}, {soff} offen")
    for p in range(1, 8):
        vm.wait(f'p{p}')
        for r in range(4): acc_add(acc0 + 4*r, 96 + 8*p + 2*r)
    for r in range(4):
        finish(acc0 + 4*r, 64 + 2*r, 72, "v5", "s55")
        if r < 3: a(f"s_add_u32 s55, s55, {16*1152}")
    vm.wait('p8')
    for p in range(8): acc_add(84, 160 + 2*p, p == 0)
    finish(84, 76, 80, "v7", "s59")

def p3_setup(a):
    T1, T2, TT, PT = P3.sT1, P3.sT2, P3.TT, P3.PT
    a(f"""s_mul_i32 s26, {sI}, 57
    s_lshr_b32 s26, s26, 9
    s_mul_i32 s26, s26, 9
    s_sub_u32 s26, {sI}, s26
    s_mul_i32 s27, {sJ}, 36
    s_add_u32 s27, s27, {sW}""")
    for t in range(9):
        a(f"""s_add_u32 s88, s26, {t}
        s_cmp_ge_u32 s88, 9
        s_cselect_b32 s89, 9, 0
        s_sub_u32 s88, s88, s89
        s_lshl_b32 s{TT[t]}, s88, 11
        s_lshl_b32 s88, s88, 2
        s_add_u32 s88, s88, s27
        s_mul_i32 s88, s88, 36864
        s_add_u32 s{T1+t}, s88, {WGU_SW}""")
    a(f"s_mul_i32 s26, {sI}, 72\ns_add_u32 s26, s26, {sJ}")
    for t in range(9):
        if t == 0: a("s_mov_b32 s88, 8")
        else: a(f"s_add_u32 s88, {sJ}, {t}\ns_and_b32 s88, s88, 7")
        a(f"""s_lshl_b32 s89, s88, 2
        s_add_u32 s89, s89, s27
        s_mul_i32 s89, s89, 18432
        s_add_u32 s{T2+t}, s89, {WD_SW}
        s_lshl_b32 s88, s88, 3
        s_add_u32 s88, s88, s26
        s_lshl_b32 s88, s88, 2
        s_add_u32 s88, s88, {sW}
        s_lshl_b32 s88, s88, 11
        s_add_u32 s{PT[t]}, s88, {PART}""")
    for g in range(9): a(f"v_add_u32 v{8+g}, {4096*g}, v21")
    a(f"""s_cmp_lt_u32 {sW}, 2
    s_cselect_b32 s88, 0, 0x7ff00000
    v_add_u32 v17, s88, v12
    s_lshl_b32 s88, {sW}, 10
    v_add_u32 v18, s88, v21
    v_add_u32 v19, {3*HRT}, v18
    v_add_u32 v22, {3*HRT}, v21
    s_lshl_b32 s88, {sW}, 7
    s_add_u32 s88, s88, {MV}
    v_lshlrev_b32 v23, 5, {vQ}
    v_add_u32 v23, s88, v23""")

def x1_loads(a, vm):
    a(f"""s_lshl_b32 s88, {sI}, 2
    s_mul_i32 s88, s88, {HRT}
    s_lshl_b32 s89, {sW}, 10
    s_add_u32 s88, s88, s89
    s_add_u32 s88, s88, {X1}""")
    for r in range(4):
        for k in range(5):
            vm.issue(f"buffer_load_dwordx4 {vr(R2(r,k))}, v{8+k if k < 4 else 17}, {SWS}, s88 offen sc1", 'x1')
        if r < 3: a(f"s_add_u32 s88, s88, {HRT}")

NAMES = {}
def build(stamps=False, dbg=None):
    a = Asm(); vm = Vm(a)
    def st(i, name):
        NAMES[i] = name; stamp(a, i, stamps)
    prologue(a, "L_end", t0=stamps)
    if stamps:
        a("v_writelane_b32 v0, s98, 0"); NAMES[0] = "wave start"
    st(28, "srd built")
    a(f"s_add_u32 s8, s26, {EPOCH}\ns_addc_u32 s9, s27, 0\ns_load_dword {sTAG}, s[8:9], 0")
    map1(a)
    setup1(a)
    st(29, "setup1")
    loads_mod(a)
    st(30, "mod ld iss")
    loads_x(a)
    st(31, "x ld iss")
    setup1b(a)
    wo_dma(a)
    st(32, "setup1b")
    for s in range(8): P1.w_dma(a, s)
    st(33, "W dma iss")
    tr_setup(a)
    a(f"s_waitcnt lgkmcnt(0)\ns_mul_i32 {sTAG}, {sTAG}, 0x9E3779B1\ns_add_u32 {sTAG}, {sTAG}, 0x7F4A7C15")
    ffn_decode(a)
    a(";@assume_drained")
    st(1, "issued")
    mod_compute(a)
    st(2, "mod pub")
    wo_tr(a)
    ln1_pre(a)
    st(3, "ln1 pre")
    a(";@assume_drained")
    a(f"s_cmp_lt_u32 {sW}, 2\ns_cbranch_scc0 L_stgB\n;@fork stg")
    P1.w_stage_rest(a, 4)
    a("s_branch L_stgE\nL_stgB:")
    P1.w_stage_rest(a, 3)
    a(";@join stg\nL_stgE:\ns_waitcnt vmcnt(0) lgkmcnt(0)")
    early_flags(a)
    st(4, "W staged")
    poll_mod(a)
    a("s_waitcnt lgkmcnt(0)\ns_barrier")
    st(5, "mod in")
    ln_apply(a, 5, R1, None, f"s_cmp_ge_u32 {sW}, 2", "m1")
    a("s_barrier")
    st(6, "h1 done"); cstamp(a, 43, stamps)
    a(";@fork g")
    for w in range(4):
        if w: a(f";@restore g\nL_g{w}:")
        if w < 3: a(f"s_cmp_eq_u32 {sW}, {w}\ns_cbranch_scc0 L_g{w+1}")
        jobs = qkv_gemm(a, w)
        st(7, "qkv gemm"); cstamp(a, 44, stamps)
        a(f"buffer_load_dword v7, v160, {SWS}, 0 offen sc1 ;@uncounted")
        a("s_barrier")
        rec_write(a, jobs)
        if w < 3: a("s_branch L_gE")
    a("L_gE:\n;@assume_drained")
    z_tr(a)
    a("s_waitcnt lgkmcnt(0)\ns_barrier")
    st(8, "rec done")
    a(f"s_mov_b32 s92, {sI}\ns_mov_b32 s93, {sJ}")
    map_M(a)
    a(f"s_mov_b32 s94, {sI}\ns_mov_b32 s95, {sJ}")
    fill = wo_dma_fillers()
    a(fill.pop(0))
    a(f"s_mov_b32 {sI}, s92\ns_mov_b32 {sJ}, s93")
    interleave(a, P1.attention, fill, 11)
    a("s_waitcnt lgkmcnt(0)\ns_barrier")
    st(9, "attn done")
    P1.o_store(a, SC1)
    a(f"""s_lshl_b32 s22, {sI}, 5
    s_lshl_b32 s23, {sJ}, 2
    s_add_u32 s22, s22, s23
    s_add_u32 s22, s22, {F_O}
    s_mov_b32 {sI}, s94
    s_mov_b32 {sJ}, s95
    s_waitcnt vmcnt(0)
    s_barrier""")
    flag_store(a, vm, ["s22"])
    st(10, "o pub")
    P2.p2_side_loads(a, vm, SC1)
    a(f"""s_lshl_b32 s88, {sW}, 10
    s_add_u32 m0, s88, {MV}
    s_add_u32 s88, s88, {MOD + 6912}""")
    vm.issue(f"buffer_load_dwordx4 v21, {SWS}, s88 offen sc1 lds", 'mv')
    a(f"s_mov_b32 m0, {MV + 4096}\ns_mov_b32 s88, {MOD + 6912 + 4096}")
    vm.issue(f"buffer_load_dwordx4 v21, {SWS}, s88 offen sc1 lds", 'mv')
    z_store(a, vm, [0, 1])
    a(f"s_lshl_b32 s22, {sI}, 5\ns_add_u32 s22, s22, {F_O}")
    smem_poll(a, "po", [("s22", 8, 8)])
    a("s_barrier")
    st(11, "o flags")
    P2.p2_o_loads(a, vm, SC1)
    z_store(a, vm, [2, 3])
    p2_gemm(a, vm)
    st(12, "wo gemm")
    P2.p2_epilogue(a, vm, SC1)
    a(f"""s_lshl_b32 s22, {sI}, 5
    s_lshl_b32 s23, {sJ}, 2
    s_add_u32 s22, s22, s23
    s_add_u32 s22, s22, {F_X}
    s_and_b32 s23, {sB}, 7
    s_lshl_b32 s23, s23, 7
    s_lshr_b32 s24, {sB}, 3
    s_lshl_b32 s24, s24, 2
    s_add_u32 s23, s23, s24
    s_add_u32 s23, s23, {F_S}""")
    map_F(a)
    vm.drain()
    a("s_barrier")
    flag_store(a, vm, ["s22", "s23"])
    st(13, "x1 pub")
    a(f"""s_lshl_b32 s22, {sI}, 5
    s_add_u32 s22, s22, {F_X}
    s_lshl_b32 s23, {sJ}, 7
    s_add_u32 s23, s23, {F_S}
    s_add_u32 s24, s23, 64""")
    a(f"""v_lshlrev_b32 v4, 2, {vL}
    v_add_u32 v5, s22, v4
    s_sub_u32 s23, s23, 32
    v_add_u32 v4, s23, v4
    v_cmp_gt_u32 vcc, 8, {vL}
    v_cndmask_b32 v4, v4, v5, vcc""")
    p3_setup(a)
    vmem_poll(a, "px", "v4", 40)
    a("s_barrier")
    st(14, "x1 flags")
    x1_loads(a, vm)
    for x in range(12): P3.stream_load(a, vm, x)
    for r in range(4): a(f"v_mov_b32 v{92+r}, 0x3f803f80")
    vm.wait('x1')
    st(15, "x1 landed")
    ln_stats(a, 4, R2, 92, 24, 56, 88, P3.HH)
    st(16, "ln2 stats")
    ln_apply(a, 4, R2, 88, f"s_cmp_lt_u32 {sW}, 2", "m2")
    st(17, "ln2 main")
    for x in range(12, P3.RING): P3.stream_load(a, vm, x)
    a(f"""s_and_b32 s88, {sW}, 1
    s_lshl_b32 s88, s88, 3
    s_lshr_b32 s89, {sW}, 1
    s_lshl_b32 s89, s89, 10
    s_add_u32 s88, s88, s89
    s_add_u32 s88, s88, {P3.HH}
    v_add_u32 v19, s88, v21
    s_barrier""")
    st(18, "ln2 bar"); cstamp(a, 40, stamps)
    P3.gemm1(a, vm, False)
    a("s_waitcnt lgkmcnt(0)\ns_barrier")
    st(19, "gemm1"); cstamp(a, 41, stamps)
    P3.gemm2(a, vm, SC1, keep_last=True, pre_last=lambda: tail_prefetch(a, vm))
    st(20, "gemm2"); cstamp(a, 42, stamps)
    tail(a, vm, stamps)
    NAMES[26] = "part pub"; NAMES[27] = "part flags"
    a(f"""s_cmp_eq_u32 {sB}, 0
    s_cselect_b32 s4, {sW}, 1
    s_cmp_eq_u32 s4, 0
    s_cbranch_scc0 L_noep
    v_mov_b32 v4, {sTAG}
    s_mov_b32 s4, {EPOCH}
    s_mov_b64 exec, 1
    buffer_store_dword v4, off, {SWS}, s4 sc1
    s_mov_b64 exec, -1
    L_noep:""")
    if stamps: vm.drain()
    st(21, "end")
    stamp_flush(a, 0, 48, stamps)
    if dbg:
        a(f"""s_cmp_eq_u32 {sB}, {dbg[0]}
        s_cselect_b32 s4, {sW}, 1
        s_cmp_eq_u32 s4, 0
        s_cbranch_scc0 L_nodbg
        s_load_dwordx2 s[72:73], s[0:1], 80
        s_mov_b32 s74, 256
        s_mov_b32 s75, 0x20000
        v_readlane_b32 s4, v0, 0
        s_waitcnt lgkmcnt(0)""")
        for n, k in enumerate(dbg[1]):
            a(f"v_readlane_b32 s5, v0, {k}\ns_sub_u32 s5, s5, s4\nv_mov_b32 v4, s5\ns_mov_b32 s6, {4*n}\ns_mov_b64 exec, 1\nbuffer_store_dword v4, off, s[72:75], s6\ns_mov_b64 exec, -1")
        a("L_nodbg:")
    a("L_end:\ns_endpgm")
    return file_text("; adaLN block (sliding dilated attention + gated FFN), one persistent launch\n",
                     [dict(name=KNAME, body=a.finish(), vgpr=256, agpr=256, sgpr=102, grid=256, block=256, lds=163840)])

def p2_gemm(a, vm):
    a(f"v_add_u32 v22, {P2.WOB}, v21\nv_add_u32 v23, {P2.WOB + 3*18432}, v21")
    def rd(s, t):
        ad, off = ("v22", t*18432) if t < 3 else ("v23", (t-3)*18432)
        return f"ds_read_b128 {vr(152 + 20*(s%3) + 4*t)}, {ad} offset:{off + s*1024}"
    for s in range(2):
        for t in range(5): a(rd(s, t))
    for s in range(18):
        a(f"s_waitcnt lgkmcnt({5 if s < 17 else 0})")
        vm.wait(f'o{s}')
        for t in range(5):
            acc = vr(56 + 4*t)
            a(f"v_mfma_f32_16x16x32_bf16 {acc}, {vr(152 + 20*(s%3) + 4*t)}, {vr(80+4*s)}, {acc if s else 0}")
            if s + 2 < 18: a(rd(s+2, t))

if __name__ == "__main__":
    if len(sys.argv) > 2:
        open(sys.argv[1], "w").write(build(True, (int(sys.argv[2]), [int(x) for x in sys.argv[3].split(",")])))
    else:
        open(sys.argv[1], "w").write(build())
```

```python
import sys
from gen_common import *
from gen_k0 import tr_addr, dma_chunk
import gen_p1 as P1
import gen_p2 as P2
from gen_p1 import HRT, TILES, wfrag, sMSK
from gen_v2 import (map1, vmem_poll, flag_store, unpack, norm, modfma, pack, loads_mod, mod_compute, poll_mod,
                    rec_fillers, rec_write, interleave, wo_dma_fillers, p2_gemm, ACC1, BB1, R1, R2,
                    MODT, EPOCH, F_O, F_X, F_W, F_M, sTAG, SC1, POLL_MAX, OOB)
import gen_v2 as V2

F_S = FLAGS + 0x20000
F_P = FLAGS + 0x80000
SLOT = [98304, 122880, 0, 24576, 49152, 73728]
ST1, MZ, WOSTG, MV1 = 147456, 150528, 151552, 157696
HH = 73728
ST2, MV2, SZ = HH, HH + 4096, 147456
RING = 26
DIAG = None
NPRE = 12
V2.WOSTG = WOSTG

class L:
    def __init__(self): self.l = []
    def __call__(self, s):
        for x in s.split("\n"):
            if x.strip(): self.l.append(x.strip())

def wslot(s): return SLOT[s % 6] if s < 12 else SLOT[s % 2]

def smem_poll8(a, name, soff, wave=1):
    a(f"""s_cmp_eq_u32 {sW}, {wave}
    s_cbranch_scc0 L_{name}_skip
    s_mov_b32 s89, 0
    s_add_u32 s86, s64, {soff}
    s_addc_u32 s87, s65, 0
    L_{name}:
    s_load_dwordx8 s[52:59], s[86:87], 0 glc
    s_add_u32 s89, s89, 1
    s_cmp_gt_u32 s89, {POLL_MAX}
    s_cbranch_scc1 L_{name}_to
    s_waitcnt lgkmcnt(0)""")
    for k in range(8): a(f"s_xor_b32 s{52+k}, s{52+k}, {sTAG}")
    for st in (1, 2, 4):
        for k in range(0, 8, 2*st): a(f"s_or_b32 s{52+k}, s{52+k}, s{52+k+st}")
    a(f"s_cbranch_scc1 L_{name}\nL_{name}_to:\ns_waitcnt lgkmcnt(0)\nL_{name}_skip:")

def x_dma(a, vm):
    a(f"""v_lshrrev_b32 v4, 3, {vL}
    v_mul_u32_u24 v8, 1152, v4
    v_lshrrev_b32 v4, 4, {vL}
    s_and_b32 s4, {sW}, 1
    s_lshl_b32 s4, s4, 2
    v_or_b32 v4, s4, v4
    v_and_b32 v5, 7, {vL}
    v_xor_b32 v4, v4, v5
    v_lshl_add_u32 v8, v4, 4, v8
    s_mul_i32 s5, {sI}, {64*1152}
    s_mul_i32 s6, {sW}, {8*1152}
    s_add_u32 s5, s5, s6
    s_sub_u32 s7, s5, {16*1152}
    s_cmp_lt_u32 {sW}, 2
    s_cselect_b32 s8, {sI}, 1
    s_cmp_eq_u32 s8, 0
    s_cselect_b32 s7, s6, s7
    s_mul_i32 s9, {sW}, 9216
    s_add_u32 s5, s5, {2*8*1152}""")
    for g in range(3):
        if g == 2: a(f"s_cmp_lt_u32 {sW}, 2\ns_cbranch_scc0 L_x2")
        for line in range(9):
            base = "s7" if g == 0 else "s5"
            a(f"s_add_u32 m0, s9, {g*4*9216 + line*1024}\ns_add_u32 s6, {base}, {(g-1)*4*9216 + line*128 if g else line*128}")
            a(f"buffer_load_dwordx4 v8, {SX}, s6 offen lds")
    a("L_x2:")

def loads_mod3(a):
    a(f"""s_cmp_lt_u32 {sB}, 54
    s_cbranch_scc0 L_nomod1
    s_mul_i32 s4, {sW}, 144
    v_lshrrev_b32 v4, 3, {vL}
    v_mul_u32_u24 v4, 18, v4
    v_add_u32 v16, s4, v4
    v_lshlrev_b32 v17, 1, v16
    v_mul_u32_u24 v16, 6912, v16
    v_and_b32 v4, 7, {vL}
    v_lshl_add_u32 v16, v4, 4, v16
    s_lshl_b32 s5, {sB}, 7
    v_add_u32 v16, s5, v16
    buffer_load_dwordx4 v[232:235], v17, {SC}, 0 offen
    buffer_load_dwordx4 v[236:239], v17, {SC}, 0 offen offset:16
    buffer_load_dword v240, v17, {SC}, 0 offen offset:32""")
    for t in range(18):
        a(f"s_mov_b32 s4, {6912*t}\nbuffer_load_dwordx4 {vr(48+4*t)}, v16, {SMOD}, s4 offen")
    a("L_nomod1:")

def mod_compute3(a):
    t = Asm(); mod_compute(t)
    for l in t.ins:
        if l.startswith("v_lshlrev_b32 v") and l.split()[1].rstrip(',') in [f"v{24+k}" for k in range(18)] and l.split()[2] == "16," and l.split()[1].rstrip(',') == l.split()[3]:
            k = int(l.split()[1].rstrip(',')[1:]) - 24
            l = f"v_lshlrev_b32 v{24+k}, 16, v{232 + k//2}" if k % 2 == 0 else f"v_and_b32 v{24+k}, 0xffff0000, v{232 + k//2}"
        l = l.replace("s_waitcnt vmcnt(57)", "s_waitcnt vmcnt(18)").replace("s_add_u32 s4, s4, 4096", f"s_add_u32 s4, s4, {MZ}").replace("v_add_u32 v5, 4096, v4", f"v_add_u32 v5, {MZ}, v4")
        a(l)

def w_prefetch(a):
    a(f"""s_and_b32 s4, {sI}, 7
    s_mul_i32 s4, s4, 48
    s_mul_i32 s5, {sW}, 12
    s_add_u32 s4, s4, s5
    s_add_u32 s4, s4, 192
    v_lshrrev_b32 v4, 3, {vL}
    v_and_b32 v5, 7, {vL}
    v_min_u32 v5, 5, v5
    v_lshrrev_b32 v6, 1, v5
    v_mul_u32_u24 v6, 1152, v6
    v_and_b32 v5, 1, v5
    v_lshl_add_u32 v6, v5, 7, v6
    s_mul_i32 s5, {sJ}, 144
    s_and_b32 s5, s5, 0xffffff80
    v_add_u32 v6, s5, v6
    v_add_u32 v5, s4, v4
    v_mul_u32_u24 v5, 3456, v5
    v_add_u32 v5, v5, v6
    v_and_b32 v4, 3, v4
    v_add3_u32 v4, v4, s4, 8
    v_mul_u32_u24 v4, 3456, v4
    v_add_u32 v4, v4, v6""")
    return [f"buffer_load_dword v254, v5, {SQKV}, 0 offen", f"buffer_load_dword v255, v4, {SQKV}, 0 offen"]

def weave(a, lines, ops, emit_op, start=0):
    ok = []; cond = False; scc = False
    for i, l in enumerate(lines):
        if l.startswith('s_cbranch'): cond = True
        if l.endswith(':'): cond = False
        if l.startswith('s_cmp'): scc = True
        elif scc and not l.startswith(('s_cselect', 's_mov', 's_movk')): scc = False
        good = not cond and not scc and l.startswith(('v_', 'ds_')) and i >= start and not (i + 1 < len(lines) and lines[i+1].startswith('s_mov_b64 exec, -1')) and not l.startswith('ds_write_b64 v5')
        if good: ok.append(i)
    pos = {}
    for n, o in enumerate(ops):
        pos.setdefault(ok[min(len(ok)-1, (n * len(ok)) // len(ops))], []).append(o)
    for i, l in enumerate(lines):
        a(l)
        for o in pos.get(i, []): emit_op(o)

def lines_of(f, *args):
    t = Asm(); f(t, *args); return t.ins

def w_setup(a):
    a(f"""v_lshrrev_b32 v4, 4, {vL}
    s_and_b32 s4, {sW}, 1
    s_lshl_b32 s4, s4, 2
    v_or_b32 v5, s4, v4
    v_lshlrev_b32 v5, 1, v5
    v_and_b32 v6, 15, {vL}
    v_xor_b32 v5, v5, v6
    v_mul_u32_u24 v9, 3456, v4
    v_lshl_add_u32 v9, v5, 4, v9
    s_mul_i32 s4, {sJ}, 144
    s_and_b32 s4, s4, 0xffffff80
    s_mul_i32 s5, {sW}, {8*3456}
    s_add_u32 s4, s4, s5
    v_add_u32 v9, s4, v9
    s_lshl_b32 s84, {sW}, 11""")

def w_dma_ops(s):
    ops = []
    for seg in range(3):
        for h in range(2):
            ops.append(f"s_add_u32 m0, s84, {wslot(s) + seg*8192 + h*1024}\ns_mov_b32 s4, {s*110592 + h*4*3456 + seg*1152}\nbuffer_load_dwordx4 v9, {SQKV}, s4 offen lds")
    return ops
def w_dma(a, vm, s):
    for o in w_dma_ops(s): vm.issue(o, f'W{s}')
def w_tr_ops(s):
    ops = []
    sl = wslot(s); hi = sl >= 73728
    for tau in range(4):
        f = wfrag(tau, s); k = f[0]; b = int(f[2:f.index(':')])
        for hf in range(2):
            ops.append(f"ds_read_b64_tr_b16 {k}[{b+2*hf}:{b+2*hf+1}], v{10 + tau + 4*hi} offset:{sl - 73728*hi + 1024*hf}")
    return ops

def tr_setup(a):
    def ent(T, h):
        cc8 = 2*T + h
        if cc8 >= 27: cc8 = 2*T if 2*T < 27 else 0
        seg, r = divmod(cc8, 9)
        return [1, 2, 0][seg]*16 + r
    tabs = []
    for w in range(4):
        e = []
        for T in TILES[w] + [0]*(4-len(TILES[w])): e += [ent(T, 0), ent(T, 1)]
        tabs.append((e[0] | e[2] << 8 | e[4] << 16 | e[6] << 24, e[1] | e[3] << 8 | e[5] << 16 | e[7] << 24))
    a(f"s_mov_b32 s4, {tabs[0][0]}\ns_mov_b32 s5, {tabs[0][1]}")
    for w in range(1, 4):
        a(f"s_cmp_eq_u32 {sW}, {w}\ns_cselect_b32 s4, {tabs[w][0]}, s4\ns_cselect_b32 s5, {tabs[w][1]}, s5")
    a(f"""v_mov_b32 v4, s4
    v_mov_b32 v5, s5
    v_and_b32 v6, 2, {vN}
    v_cmp_eq_u32 vcc, 0, v6
    v_cndmask_b32 v18, v5, v4, vcc
    v_lshrrev_b32 v6, 2, {vN}
    v_and_b32 v7, 1, {vQ}
    v_lshl_or_b32 v7, v7, 2, v6
    v_lshlrev_b32 v19, 1, v7
    v_lshl_add_u32 v6, {vQ}, 3, v6
    v_lshlrev_b32 v6, 8, v6
    v_and_b32 v7, 1, {vN}
    v_lshl_or_b32 v20, v7, 3, v6""")
    for tau in range(4):
        a(f"""v_bfe_u32 v4, v18, {8*tau}, 4
        v_bfe_u32 v5, v18, {8*tau+4}, 2
        v_add_u32 v4, {sJ}, v4
        v_xor_b32 v4, v4, v19
        v_lshl_add_u32 v4, v4, 4, v20
        v_lshl_add_u32 v{10+tau}, v5, 13, v4
        v_add_u32 v{14+tau}, 73728, v{10+tau}""")
    a(f"""s_sub_u32 s88, 3, {sW}
    s_and_b32 s4, s88, 1
    s_lshl_b32 s4, s4, 2
    v_or_b32 v4, s4, {vQ}
    v_bfe_u32 v5, {vN}, 1, 3
    v_xor_b32 v4, v4, v5
    v_lshlrev_b32 v4, 4, v4
    v_and_b32 v5, 7, {vN}
    v_lshl_or_b32 v4, v5, 7, v4
    v_lshrrev_b32 v5, 3, {vN}
    v_mul_u32_u24 v5, 9216, v5
    s_lshr_b32 s4, s88, 1
    s_lshl_b32 s4, s4, 10
    v_add3_u32 v18, v4, v5, s4
    v_add_u32 v19, {3*HRT}, v18
    v_add_u32 v22, {3*HRT}, v21
    s_lshl_b32 s4, s88, 7
    s_add_u32 s4, s4, {MV1}
    v_lshlrev_b32 v23, 5, {vQ}
    v_add_u32 v23, s4, v23""")
    P1.ln_masks(a)

def wo_dma(a):
    a(f"""s_cmp_ge_u32 {sB}, 112
    s_cselect_b32 s85, {sW}, 0
    s_cmp_eq_u32 s85, 2
    s_cbranch_scc0 L_nowo1""")
    dma_chunk(a, "v31", 0, "v4", "v5"); dma_chunk(a, "v32", 1, "v4", "v5")
    a(f"""s_sub_u32 s4, {sB}, 112
    s_mul_i32 s5, s4, 57
    s_lshr_b32 s5, s5, 10
    s_mul_i32 s6, s5, 18
    s_sub_u32 s6, s4, s6
    s_mul_i32 s7, s6, {32*1152}
    s_mul_i32 s8, s5, 144
    s_add_u32 s7, s7, s8
    s_mul_i32 s5, s5, 90
    s_add_u32 s5, s5, s6
    s_lshl_b32 s5, s5, 10
    s_add_u32 s91, s5, {WO_SW}
    v_lshrrev_b32 v4, 3, {vL}
    v_mul_u32_u24 v4, 1152, v4
    v_lshl_add_u32 v5, v32, 4, v4
    v_lshl_add_u32 v4, v31, 4, v4
    v_mul_u32_u24 v6, 1152, {vL}
    v_add_u32 v6, 128, v6
    v_mov_b32 v30, {OOB}
    v_cmp_gt_u32 vcc, 32, {vL}
    v_cndmask_b32 v6, v30, v6, vcc
    s_mov_b32 m0, {WOSTG + 4096}
    s_nop 0
    buffer_load_dwordx4 v6, {SWO}, s7 offen lds""")
    for ii in range(4):
        a(f"s_mov_b32 m0, {WOSTG + ii*1024}\ns_nop 0\nbuffer_load_dwordx4 v{4 + (ii&1)}, {SWO}, s7 offen lds")
        if ii < 3: a(f"s_add_u32 s7, s7, {8*1152}")
    a("L_nowo1:")

def wo_tr(a):
    t = Asm(); V2.wo_tr(t)
    for l in t.ins:
        a(l.replace("s_cmp_eq_u32 s85, 1", "s_cmp_eq_u32 s85, 2").replace("s_waitcnt vmcnt(32)", "s_waitcnt vmcnt(0)"))

def ln_stats_a(a, NR, raw, ones, SA, ST):
    for k in range(5):
        for r in range(NR):
            x = vr(raw(r, k))
            a(f"v_mfma_f32_16x16x32_bf16 {vr(SA+8*r)}, {vr(ones)}, {x}, {vr(SA+8*r) if k else 0}")
            a(f"v_mfma_f32_16x16x32_bf16 {vr(SA+8*r+4)}, {x}, {x}, {vr(SA+8*r+4) if k else 0}")
def ln_stats_b(a, NR, SA, ST):
    a(f"""s_mul_i32 s89, {sW}, {NR*128}
    s_add_u32 s89, s89, {ST}
    v_lshlrev_b32 v5, 3, {vN}
    v_add_u32 v6, {ST}, v5
    v_add_u32 v5, s89, v5""")
    for r in range(NR):
        b = SA + 8*r
        a(f"""v_cndmask_b32 v{b+1}, v{b+4}, v{b+5}, s[76:77]
        v_cndmask_b32 v{b+1}, v{b+1}, v{b+6}, s[78:79]
        v_cndmask_b32 v{b+1}, v{b+1}, v{b+7}, s[80:81]""")
    a("s_mov_b64 exec, s[82:83]")
    for r in range(NR): a(f"ds_write_b64 v5, {vr(SA+8*r,2)} offset:{r*128}")
    a("s_mov_b64 exec, -1")
def ln_stats_c(a, NR, RD):
    for r in range(NR):
        for w in range(4): a(f"ds_read_b64 {vr(RD+8*r+2*w,2)}, v6 offset:{(w*NR + r)*128}")
def ln_stats_d(a, NR, RD, P):
    for r in range(NR):
        b = RD + 8*r
        a(f"""v_pk_add_f32 {vr(b,2)}, {vr(b,2)}, {vr(b+2,2)}
        v_pk_add_f32 {vr(b+4,2)}, {vr(b+4,2)}, {vr(b+6,2)}
        v_pk_add_f32 {vr(b,2)}, {vr(b,2)}, {vr(b+4,2)}""")
    R = range(NR)
    m = lambda r: f"v{RD+8*r}"; q = lambda r: f"v{RD+8*r+1}"
    for r in R: a(f"v_mul_f32 {m(r)}, {fbits(1.0/576)}, {m(r)}")
    for r in R: a(f"v_mul_f32 {q(r)}, {fbits(1.0/576)}, {q(r)}")
    for r in R: a(f"v_fma_f32 {q(r)}, -{m(r)}, {m(r)}, {q(r)}")
    for r in R: a(f"v_max_f32 {q(r)}, 0, {q(r)}")
    def rnd(f):
        for r in R: a(f"v_cvt_pk_bf16_f32 {f(r)}, {f(r)}, {f(r)}")
        for r in R: a(f"v_and_b32 {f(r)}, {sMSK}, {f(r)}")
    rnd(m); rnd(q)
    for r in R: a(f"v_add_f32 {q(r)}, {fbits(1e-5)}, {q(r)}")
    rnd(q)
    for r in R: a(f"v_sqrt_f32 {q(r)}, {q(r)}")
    rnd(q)
    for r in R: a(f"v_rcp_f32 v{P+2*r}, {q(r)}")
    for r in R: a(f"v_mul_f32 v{P+2*r+1}, -{m(r)}, v{P+2*r}")

def ln_apply(a, NR, raw, P, has5, name, after=None):
    V2.mread(a, 0)
    cnt = 0
    for k in range(5):
        if k == 4: a(f"{has5}\ns_cbranch_scc0 L_{name}_e")
        if k < 4: V2.mread(a, k+1)
        for r in range(NR):
            u = 56 + 8*(cnt & 1); t = 72 + 4*(cnt & 1); cnt += 1
            unpack(a, u, raw(r, k))
            if after and k < 4: after(r, k)
            norm(a, u, P + 2*r)
            if r == 0: a(f"s_waitcnt lgkmcnt({4 if k == 0 else NR + 4 if k < 4 else NR})")
            modfma(a, u, 24 + 16*(k & 1)); pack(a, t, u)
            ad, off = ("v18", r*HRT) if r < 3 else ("v19", (r-3)*HRT)
            a(f"ds_write_b128 {ad}, {vr(t)} offset:{off + 4096*k}")
    a(f"s_waitcnt lgkmcnt(0)\nL_{name}_e:\n;@assume_drained_lg\ns_waitcnt lgkmcnt(0)")

def early_flags(a):
    t = Asm(); V2.early_flags(t)
    for l in t.ins: a(l.replace("s_cmp_eq_u32 s85, 1", "s_cmp_eq_u32 s85, 2"))

def qkv_gemm(a, vm, w):
    units = [(t, rt) for rt in range(5) for t in range(4) if t < 2 or rt > 0] if w < 2 else [(t, rt) for rt in range(5) for t in range(3)]
    rf, jobs = rec_fillers(w)
    misc = rf + [f"""s_and_b32 s4, {sB}, 63
        s_lshr_b32 s4, s4, 3
        s_mul_i32 s4, s4, 72
        s_add_u32 s4, s4, {F_W - 36*4}""", f"v_lshlrev_b32 v160, 2, {vL}", f"v_add_u32 v4, {F_M}, v160", "v_add_u32 v160, s4, v160",
        f"v_cmp_gt_u32 vcc, 36, {vL}", "v_cndmask_b32 v160, v160, v4, vcc"]
    plan = {0: w_tr_ops(12), 1: w_tr_ops(13), 2: [('W14', o) for o in w_dma_ops(14)], 3: [('W15', o) for o in w_dma_ops(15)],
            6: w_tr_ops(14), 7: w_tr_ops(15), 8: [('W16', o) for o in w_dma_ops(16)], 9: [('W17', o) for o in w_dma_ops(17)],
            12: w_tr_ops(16), 13: w_tr_ops(17)}
    def rd(s, rt):
        ad, off = ("v21", rt*HRT) if rt < 3 else ("v22", (rt-3)*HRT)
        return f"ds_read_b128 {vr(BB1(s, rt))}, {ad} offset:{off + s*1024}"
    for rt in range(5): a(rd(0, rt))
    for s in range(18):
        a("s_waitcnt lgkmcnt(0)")
        if s in (6, 12): vm.wait(f'W{s+9}' if s == 6 else 'W17')
        if s in (2, 6, 8, 12): a("s_barrier")
        nxt = [rd(s+1, rt) for rt in range(5)] if s < 17 else []
        here = list(plan.get(s, []))
        if s == 15: here.append(('pw', f"buffer_load_dword v7, v160, {SWS}, 0 offen sc1"))
        for n, (tau, rt) in enumerate(units):
            acc = vr(ACC1(tau, rt))
            a(f"v_mfma_f32_16x16x32_bf16 {acc}, {wfrag(tau, s)}, {vr(BB1(s, rt))}, {acc if s else 0}")
            if nxt and n % 3 == 0: a(nxt.pop(0))
            elif here:
                o = here.pop(0)
                if isinstance(o, tuple): vm.issue(o[1], o[0])
                else: a(o)
            elif misc and s < 15: a(misc.pop(0))
        assert not nxt and not here, (s, nxt, here)
    assert not misc
    return jobs

FREG = ['s10', 's93', 's94', 's95']
def slot_decode(k):
    c = L()
    c(f"""s_lshr_b32 s22, {sB}, 3
    s_lshl_b32 s22, s22, 2
    s_add_u32 s22, s22, {sW}
    s_and_b32 s23, {sB}, 7
    s_lshl_b32 s24, s23, 5
    s_lshr_b32 s25, {sB}, 3
    s_add_u32 s24, s24, s25
    s_lshl_b32 s24, s24, 7
    s_add_u32 {FREG[k]}, s24, {F_S + k*32768}""")
    if k < 3:
        c(f"""s_mul_i32 s24, s22, 57
        s_lshr_b32 s24, s24, 11
        s_mul_i32 s25, s24, 36
        s_sub_u32 s25, s22, s25
        s_add_u32 s24, s24, {3*k}
        s_cmp_ge_u32 s25, 18
        s_cselect_b32 s26, 18, 0
        s_cselect_b32 s72, s44, s40
        s_cselect_b32 s73, s45, s41
        s_cselect_b32 s27, 1024, 0
        s_sub_u32 s25, s25, s26
        s_mul_i32 s5, s25, {32*9216}
        s_mul_i32 s26, s23, 1152
        s_add_u32 s5, s5, s26
        s_lshl_b32 s26, s24, 7
        s_add_u32 s5, s5, s26
        s_mul_i32 s6, s23, 36
        s_lshl_b32 s26, s24, 2
        s_add_u32 s6, s6, s26
        s_mul_i32 s6, s6, 18
        s_add_u32 s6, s6, s25
        s_lshl_b32 s6, s6, 11
        s_add_u32 s6, s6, s27
        s_add_u32 s6, s6, {WGU_SW}""")
    c(f"s_mov_b32 s74, {D*F*2}\ns_mov_b32 s75, 0x20000")
    if k > 0:
        off = {1: -108, 2: -88, 3: 40}[k]
        c(f"""s_add_i32 s24, s22, {off}
        s_mul_i32 s25, s24, 57
        s_lshr_b32 s25, s25, 9
        s_mul_i32 s26, s25, 9
        s_sub_u32 s24, s24, s26
        s_mul_i32 s11, s23, {576*1152}
        s_mul_i32 s26, s25, {32*1152}
        s_add_u32 s11, s11, s26
        s_lshl_b32 s26, s24, 7
        s_add_u32 s11, s11, s26
        s_mul_i32 s12, s23, 36
        s_lshl_b32 s26, s24, 2
        s_add_u32 s12, s12, s26
        s_mul_i32 s12, s12, 18
        s_add_u32 s12, s12, s25
        s_lshl_b32 s12, s12, 10
        s_add_u32 s12, s12, {WD_SW}""")
    if k == 0:
        c(f"""s_mov_b32 s7, 36864
        s_movk_i32 s8, 9216
        s_mov_b32 s9, 0
        s_cmp_ge_u32 s22, 108
        s_cselect_b32 s74, 0, s74
        s_cselect_b32 s6, 0x7ff00000, s6""")
    elif k < 3:
        c(f"""s_cmp_ge_u32 s22, 108
        s_cselect_b32 s9, 1, 0
        s_cselect_b32 s5, s11, s5
        s_cselect_b32 s6, s12, s6
        s_cselect_b32 s72, s48, s72
        s_cselect_b32 s73, s49, s73
        s_mov_b32 s7, 36864
        s_cselect_b32 s7, 18432, s7
        s_movk_i32 s8, 9216
        s_cselect_b32 s8, 1152, s8""")
    else:
        c(f"""s_mov_b32 s9, 1
        s_mov_b32 s5, s11
        s_mov_b32 s72, s48
        s_mov_b32 s73, s49
        s_mov_b32 s7, 18432
        s_movk_i32 s8, 1152
        s_cmp_ge_u32 s22, 122
        s_cselect_b32 s74, 0, s74
        s_cselect_b32 s6, 0x7ff00000, s12""")
    return c.l

def group_scc(lines):
    out = []; i = 0
    while i < len(lines):
        g = [lines[i]]
        if lines[i].startswith('s_cmp'):
            j = i + 1
            while j < len(lines) and lines[j].startswith(('s_cselect', 's_mov')):
                g.append(lines[j]); j += 1
            i = j
        else: i += 1
        out.append("\n".join(g))
    return out

def slot_dma(zone, A):
    c = L()
    dma_chunk(c, f"v{A}", 0, "v4", "v5"); dma_chunk(c, f"v{A+1}", 1, "v4", "v5")
    c(f"""v_lshrrev_b32 v4, 3, {vL}
    v_mul_u32_u24 v4, s8, v4
    v_lshl_add_u32 v{A}, v{A}, 4, v4
    v_lshl_add_u32 v{A+1}, v{A+1}, 4, v4
    s_lshl_b32 s26, s8, 3
    s_lshl_b32 s27, {sW}, 12
    s_add_u32 s27, s27, {zone}""")
    d = []
    for ii in range(4):
        d.append(f"s_add_u32 m0, s27, {ii*1024}\n" + ("s_add_u32 s5, s5, s26" if ii else "s_nop 0") + f"\nbuffer_load_dwordx4 v{A + (ii&1)}, s[72:75], s5 offen lds")
    return c.l, d

def slot_tr(A, Dt):
    c = L()
    c(f"""s_lshr_b32 s26, 3, s9
    s_lshl_b32 s25, s9, 1
    s_lshl_b32 s25, 4, s25
    v_lshrrev_b32 v{A+2}, 2, {vN}
    v_lshlrev_b32 v4, s26, {vQ}
    v_add_u32 v{A+2}, v{A+2}, v4
    v_add_u32 v{A+3}, s25, v{A+2}""")
    return c

def slot_tr_ops(A, Dt):
    c = L()
    if isinstance(Dt, int): Dt = [Dt + 4*k for k in range(4)]
    c(f"""s_sub_u32 s26, 3, s9
    s_lshl_b32 s25, s9, 1
    s_lshl_b32 s25, 4, s25
    v_lshrrev_b32 v{A+2}, 2, {vN}
    v_lshlrev_b32 v4, s26, {vQ}
    v_add_u32 v{A+2}, v{A+2}, v4
    v_add_u32 v{A+3}, s25, v{A+2}""")
    tr_addr(c, f"v{A}", f"v{A+2}", "v4", "v5")
    tr_addr(c, f"v{A+1}", f"v{A+3}", "v4", "v5")
    c(f"v_add_u32 v{A}, s27, v{A}\nv_add_u32 v{A+1}, s27, v{A+1}")
    for tau in range(1, 4):
        c(f"v_xor_b32 v{A+2*tau}, {32*tau}, v{A}\nv_xor_b32 v{A+2*tau+1}, {32*tau}, v{A+1}")
    r = []
    for tau in range(4):
        r += [f"ds_read_b64_tr_b16 {vr(Dt[tau],2)}, v{A+2*tau}", f"ds_read_b64_tr_b16 {vr(Dt[tau]+2,2)}, v{A+2*tau+1}"]
    return c.l, r

def slot_store_ops(Dt):
    if isinstance(Dt, int): Dt = [Dt + 4*k for k in range(4)]
    return [("s_add_u32 s6, s6, s7\n" if tau else "") + f"buffer_store_dwordx4 {vr(Dt[tau])}, v21, {SWS}, s6 offen sc1" for tau in range(4)]

def slot_flag_op(k):
    return f"""s_barrier
    v_mov_b32 v17, {sTAG}
    s_cmp_eq_u32 {sW}, 0
    s_cselect_b32 s88, {FREG[k]}, 0x7ff00000
    s_mov_b64 exec, 1
    buffer_store_dword v17, off, {SWS}, s88 sc1
    s_mov_b64 exec, -1""".replace("    ", "")

def poll2_check(a, name, soff):
    a(f"""s_mov_b32 s88, 0
    L_{name}:
    v_cmp_ne_u32 vcc, {sTAG}, v6
    s_cbranch_vccz L_{name}_ok
    s_add_u32 s88, s88, 1
    s_cmp_gt_u32 s88, {POLL_MAX}
    s_cbranch_scc1 L_{name}_ok
    s_sleep 4
    buffer_load_dword v6, v23, {SWS}, {soff} offen sc1 ;@uncounted
    s_waitcnt vmcnt(0)
    s_branch L_{name}
    L_{name}_ok:""")

sT1, sT2 = 4, 13
PT = [32, 33, 34, 35, 36, 37, 38, 39, 71]
def bfrag(r, s):
    i = 4*s + r
    return ar(4*i) if i < 64 else vr(224 + 4*(i-64))
class Ring:
    def __init__(self): self.reset()
    def reset(self): self.free = []; self.slot = {}; self.hold = 0; self.retire = set(); self.checked = set()
    def add(self, regs): self.free += regs
    def take(self, x): self.slot[x] = self.free.pop(0); return self.slot[x]
    def give(self, x):
        if self.slot[x] not in self.retire: self.free.append(self.slot[x])
RG = Ring()
def ring(x): return RG.slot[x]

def p3_setup(a):
    a(f"""s_mul_i32 s27, {sJ}, 36
    s_add_u32 s27, s27, {sW}
    s_mul_i32 s{sT1}, s27, 36864
    s_add_u32 s{sT1}, s{sT1}, {WGU_SW}
    s_mul_i32 s26, {sI}, 72
    s_add_u32 s26, s26, {sJ}""")
    for t in range(9):
        if t == 0: a("s_mov_b32 s88, 8")
        else: a(f"s_add_u32 s88, {sJ}, {t}\ns_and_b32 s88, s88, 7")
        a(f"""s_lshl_b32 s89, s88, 2
        s_add_u32 s89, s89, s27
        s_mul_i32 s89, s89, 18432
        s_add_u32 s{sT2+t}, s89, {WD_SW}
        s_lshl_b32 s88, s88, 3
        s_add_u32 s88, s88, s26
        s_lshl_b32 s88, s88, 2
        s_add_u32 s88, s88, {sW}
        s_lshl_b32 s88, s88, 11
        s_add_u32 s{PT[t]}, s88, {PART}""")
    for g in range(9): a(f"v_add_u32 v{8+g}, {4096*g}, v21")
    a(f"""s_cmp_lt_u32 {sW}, 2
    s_cselect_b32 s88, 0, 0x7ff00000
    v_add_u32 v17, s88, v12
    s_lshl_b32 s88, {sW}, 10
    v_add_u32 v18, s88, v21
    v_add_u32 v19, {3*HRT}, v18
    v_add_u32 v22, {3*HRT}, v21
    s_lshl_b32 s88, {sW}, 7
    s_add_u32 s88, s88, {MV2}
    v_lshlrev_b32 v23, 5, {vQ}
    v_add_u32 v23, s88, v23
    s_lshl_b32 s92, {sJ}, 12
    s_add_u32 s92, s92, {F_S}""")

def stream_op(x):
    if x >= 486: return None
    pre = None
    if x < 324:
        t, k = divmod(x, 36); base = sT1
        if k == 0 and t: pre = f"s_add_u32 s{sT1}, s{sT1}, {4*36864}"
    else:
        t, k = divmod(x - 324, 18); base = sT2 + t
    txt = f"buffer_load_dwordx4 {vr(RG.take(x))}, v{8 + k//4}, {SWS}, s{base} offen offset:{(k%4)*1024}"
    return ((pre + "\n" if pre else "") + txt, f'w{x}')
NEXT = [0]
def stream_next(vm):
    if NEXT[0] >= 486 or len(RG.free) <= RG.hold: return False
    for lim, nm in ((108, 'ps1'), (216, 'ps2'), (324, 'ps3')):
        assert NEXT[0] < lim or nm in RG.checked, (NEXT[0], nm)
    o = stream_op(NEXT[0]); NEXT[0] += 1
    vm.issue(o[0], o[1]); return True

def cost(op):
    if isinstance(op, tuple): return 2
    if callable(op): return 2
    n = 0
    for l in op.split("\n"):
        n += 2 if l.startswith(('v_exp', 'v_rcp', 'buffer_')) else 1
    return n

class Stream:
    def __init__(self, a, vm): self.a = a; self.vm = vm
    def emit(self, op):
        if isinstance(op, tuple): self.vm.issue(op[0], op[1])
        elif callable(op): op()
        else: self.a(op)

def glu_ops(acc, tt):
    ops = []
    for r in range(4):
        g = acc + 8*r; u = g + 4; t = 88 + 4*(r & 1)
        ops += [f"v_mul_f32 v{t+e}, s89, v{g+e}" for e in range(4)]
        ops += [f"v_exp_f32 v{t+e}, v{t+e}" for e in range(4)]
        ops += [f"v_add_f32 v{t+e}, 1.0, v{t+e}" for e in range(4)]
        ops += [f"v_rcp_f32 v{t+e}, v{t+e}" for e in range(4)]
        ops += [f"v_mul_f32 v{t+e}, v{t+e}, v{u+e}" for e in range(4)]
        ops += [f"v_cvt_pk_bf16_f32 v{t+e}, v{t+2*e}, v{t+2*e+1}" for e in range(2)]
        ad, off = ("v18", r*HRT) if r < 3 else ("v19", 0)
        ops += [f"ds_write_b64 {ad}, {vr(t,2)} offset:{off + 2048*tt}"]
    return ops

def bread_ops(s, a0, a1):
    return [f"ds_read_b128 {bfrag(r, s)}, {a0 if r < 3 else a1} offset:{(r*HRT if r < 3 else 0) + s*1024}" for r in range(4)]

SA_, SD_ = 216, 200

def gemm1(a, vm, extra, hard, stamps=False):
    S = Stream(a, vm)
    a(f"s_mov_b32 s89, {fbits(-LOG2E)}")
    for s in range(3):
        for o in bread_ops(s, "v21", "v22"): a(o)
    q2 = []
    for t in range(9):
        acc = 24 + 32*(t & 1)
        if t and DIAG is None: cstamp(a, 45 + t, stamps)
        glu = glu_ops(24 + 32*((t-1) & 1), t-1) if t else []
        total = sum(cost(o) for o in glu); done = 0
        for s in range(18):
            x = 36*t + 2*s
            if DIAG == ('g1', t): cstamp(a, 45 + s, stamps)
            if DIAG == ('g1', t - 1) and s == 0: cstamp(a, 63, stamps)
            q2 += extra.get((t, s), [])
            for o in hard.get((t, s), []): o()
            rd = bread_ops(s+3, "v21", "v22") if t == 0 and s + 3 < 18 else []
            if t == 0: a("s_waitcnt lgkmcnt(%d)" % (8 if s < 16 else 4 if s == 16 else 0))
            vm.wait(f'w{x}', f'w{x+1}')
            for n in range(8):
                r, m = n >> 1, n & 1
                c = vr(acc + 8*r + 4*m)
                a(f"v_mfma_f32_16x16x32_bf16 {c}, {vr(ring(x+m))}, {bfrag(r, s)}, {c if s else 0}")
                budget = 2 if n < 7 else 1
                if n in (1, 4) and stream_next(vm): continue
                if rd and n in (0, 2, 3, 5): S.emit(rd.pop(0)); budget -= 1
                pos = 8*s + n
                while glu and pos >= 4 and budget >= cost(glu[0]) and done <= total*(pos - 3)/132:
                    o = glu.pop(0); S.emit(o); done += cost(o); budget -= cost(o)
                while q2 and budget >= min(2, cost(q2[0])):
                    o = q2.pop(0); S.emit(o); budget -= cost(o)
            RG.give(x); RG.give(x+1)
            assert not rd
        for o in glu: S.emit(o)
    assert not q2
    for o in glu_ops(24, 8): a(o)
    a("s_waitcnt lgkmcnt(0)")

def epi2_ops(acc, t):
    ops = []
    for r in range(4):
        ops += [f"v_cvt_pk_bf16_f32 v{56+2*r}, v{acc+4*r}, v{acc+4*r+1}", f"v_cvt_pk_bf16_f32 v{57+2*r}, v{acc+4*r+2}, v{acc+4*r+3}"]
        if r & 1:
            ops.append((f"buffer_store_dwordx4 {vr(56+2*(r-1))}, v21, {SWS}, s{PT[t]} offen offset:{(r>>1)*1024} sc1", f'part{t}'))
    return ops

def gemm2(a, vm, extra, hard, stamps=False):
    S = Stream(a, vm)
    a(f"v_add_u32 v20, {HH}, v21\nv_add_u32 v22, {HH + 3*HRT}, v21")
    for s in range(3):
        for o in bread_ops(s, "v20", "v22"): a(o)
    q2 = []
    for t in range(9):
        acc = 24 + 16*(t & 1)
        if t and DIAG is None: cstamp(a, 54 + t, stamps)
        epi = epi2_ops(24 + 16*((t-1) & 1), t-1) if t else []
        for s in range(18):
            x = 324 + 18*t + s
            if DIAG == ('g2', t): cstamp(a, 45 + s, stamps)
            if DIAG == ('g2', t - 1) and s == 0: cstamp(a, 63, stamps)
            q2 += extra.get((t, s), [])
            for o in hard.get((t, s), []): o()
            rd = bread_ops(s+3, "v20", "v22") if t == 0 and s + 3 < 18 else []
            if t == 0: a("s_waitcnt lgkmcnt(%d)" % (8 if s < 16 else 4 if s == 16 else 0))
            vm.wait(f'w{x}')
            for r in range(4):
                c = vr(acc + 4*r)
                a(f"v_mfma_f32_16x16x32_bf16 {c}, {vr(ring(x))}, {bfrag(r, s)}, {c if s else 0}")
                budget = 2 if r < 3 else 1
                if rd: S.emit(rd.pop(0)); budget -= 1
                if r == 1 and stream_next(vm): continue
                if r == 2 and len(RG.free) > 1 and stream_next(vm): continue
                first = 2 if (len(epi) > 5 or t == 8) else 10
                if epi and s >= first and budget >= cost(epi[0]):
                    o = epi.pop(0); S.emit(o); budget -= cost(o)
                while q2 and budget >= min(2, cost(q2[0])):
                    o = q2.pop(0); S.emit(o); budget -= cost(o)
            RG.give(x)
        assert not epi
    for o in q2: S.emit(o)

SEL, SEL2 = 88, 92
PCR = {}
def tail_setup_ops():
    c = L()
    t = Asm(); V2.tail_prefetch(t, Vm(t))
    ops = []
    for l in t.ins: ops.append((l, 'tx') if l.startswith('buffer_') else l)
    return group_scc_mixed(ops)

def group_scc_mixed(ops):
    out = []; i = 0
    while i < len(ops):
        o = ops[i]
        if isinstance(o, str) and o.startswith('s_cmp'):
            g = [o]; j = i + 1
            while j < len(ops) and isinstance(ops[j], str) and ops[j].startswith(('s_cselect', 's_mov')):
                g.append(ops[j]); j += 1
            out.append("\n".join(g)); i = j
        else:
            out.append(o); i += 1
    return out

def sel_ops():
    c = L()
    c(f"""v_and_b32 v8, 1, {vN}
    v_lshlrev_b32 v8, 4, v8
    v_mov_b32 v9, 0x3f80
    v_lshlrev_b32 v8, v8, v9
    v_cndmask_b32 v8, 0, v8, s[82:83]
    v_and_b32 v9, 2, {vN}
    v_cmp_eq_u32 vcc, 0, v9
    v_cndmask_b32 v{SEL}, 0, v8, vcc
    v_cndmask_b32 v{SEL+1}, v8, 0, vcc
    v_mov_b32 v{SEL+2}, 0
    v_mov_b32 v{SEL+3}, 0
    v_mov_b32 v{SEL2}, 0
    v_mov_b32 v{SEL2+1}, 0
    v_mov_b32 v{SEL2+2}, v{SEL}
    v_mov_b32 v{SEL2+3}, v{SEL+1}
    v_mov_b32 v8, v{SEL}
    v_mov_b32 v9, v{SEL+1}
    v_mov_b32 v10, v{SEL}
    v_mov_b32 v11, v{SEL+1}""")
    out = []; i = 0
    for l in c.l:
        if l.startswith('v_cndmask') and l.endswith('vcc'): out[-1] += "\n" + l
        else: out.append(l)
    return out

def pflag_addr_ops(stage):
    return group_scc(f"""s_lshl_b32 s22, {sI}, 2
    s_add_u32 s22, s22, {sW}
    s_lshl_b32 s22, s22, 3
    s_add_u32 s22, s22, {sJ}
    s_lshl_b32 s22, s22, 7
    s_add_u32 s22, s22, {F_P + stage*131072}""".replace("    ", "").split("\n"))
def pflag_op():
    return f"v_mov_b32 v16, {sTAG}\ns_mov_b64 exec, 1\nbuffer_store_dword v16, off, {SWS}, s22 sc1\ns_mov_b64 exec, -1"

def ppoll_addr_ops():
    o = f"""s_lshl_b32 s23, {sI}, 2
    s_add_u32 s24, s23, {sW}
    s_lshl_b32 s24, s24, 10
    s_add_u32 s24, s24, {F_P}
    s_add_u32 s23, s23, s56
    s_lshl_b32 s23, s23, 10
    s_add_u32 s23, s23, {F_P}
    v_and_b32 v16, 3, {vL}
    v_min_u32 v16, 2, v16
    v_sub_u32 v15, {sJ}, v16
    v_add_u32 v16, -1, v15
    v_and_b32 v16, 7, v16
    v_lshlrev_b32 v16, 7, v16
    v_add_u32 v13, s24, v16
    v_add_u32 v16, -4, v15
    v_and_b32 v16, 7, v16
    v_lshlrev_b32 v16, 7, v16
    s_add_u32 s24, s24, 131072
    v_add_u32 v14, s24, v16
    v_and_b32 v16, 7, {vL}
    v_lshlrev_b32 v16, 7, v16
    v_add_u32 v16, s23, v16
    v_cmp_gt_u32 vcc, 8, {vL}|v_cndmask_b32 v13, v16, v13, vcc
    s_add_u32 s23, {sJ}, 1
    s_and_b32 s23, s23, 7
    s_lshl_b32 s23, s23, 7
    s_add_u32 s23, s23, s24
    s_add_u32 s60x, s23, 131072""".replace("    ", "").replace("s60x", "s91").split("\n")
    return [x.replace("|", "\n") for x in o]

def poll1_check(a, name, vaddr, vres):
    a(f"""s_mov_b32 s88, 0
    L_{name}:
    v_cmp_ne_u32 vcc, {sTAG}, {vres}
    s_cbranch_vccz L_{name}_ok
    s_add_u32 s88, s88, 1
    s_cmp_gt_u32 s88, {POLL_MAX}
    s_cbranch_scc1 L_{name}_ok
    s_sleep 2
    buffer_load_dword {vres}, {vaddr}, {SWS}, 0 offen sc1 ;@uncounted
    s_waitcnt vmcnt(0)
    s_branch L_{name}
    L_{name}_ok:""")

def piece_load_ops(vm, taus):
    ops = []
    for tau in taus:
        ops.append(f"s_sub_u32 s24, {sJ}, {tau}\ns_and_b32 s24, s24, 7\ns_lshl_b32 s24, s24, 13\ns_add_u32 s24, s24, s25")
        for h in range(2):
            ops.append(lambda tau=tau, h=h: vm.issue(f"buffer_load_dwordx4 {vr(RG.take(('pc', tau, h)))}, v21, {SWS}, s24 offen offset:{1024*h} sc1", f'pc{tau}'))
    return ops
def p8_load_ops(vm):
    ops = []
    for p in range(8):
        def f(p=p):
            if p % 2 == 0: RG.take(('p8', p//2))
            vm.issue(("s_add_u32 s27, s27, 8192\n" if p else "") + f"buffer_load_dwordx2 {vr(RG.slot[('p8', p//2)] + 2*(p&1), 2)}, v17, {SWS}, s27 offen sc1", 'p8')
        ops.append(f)
    return ops

def piece_base_ops():
    return f"""s_mul_i32 s23, {sI}, 9
    s_add_u32 s25, s23, {sJ}
    s_lshl_b32 s25, s25, 5
    s_add_u32 s25, s25, {sW}
    s_lshl_b32 s25, s25, 11
    s_add_u32 s25, s25, {PART}
    s_add_u32 s27, s23, 8
    s_lshl_b32 s27, s27, 5
    s_add_u32 s27, s27, s56
    s_lshl_b32 s27, s27, 11
    s_add_u32 s27, s27, {PART}
    s_lshr_b32 s23, s57, 1
    s_lshl_b32 s23, s23, 10
    s_add_u32 s27, s27, s23
    s_and_b32 s23, s57, 1
    s_lshl_b32 s23, s23, 3
    s_add_u32 s27, s27, s23""".replace("    ", "").split("\n")

def piece_mfma(a, tau, acc0=24):
    for h in range(2):
        b = vr(RG.slot[('pc', tau, h)])
        a(f"v_mfma_f32_16x16x32_bf16 {vr(acc0+8*h)}, {vr(SEL)}, {b}, {vr(acc0+8*h)}")
        a(f"v_mfma_f32_16x16x32_bf16 {vr(acc0+8*h+4)}, {vr(SEL2)}, {b}, {vr(acc0+8*h+4)}")

def tail(a, vm, stamps, st):
    acc0 = 24
    run = lambda ops: [o() if callable(o) else a(o) for o in ops]
    vm.wait('part7')
    run(pflag_addr_ops(2)); vm.issue(pflag_op(), 'fl')
    vm.wait('poll2'); poll1_check(a, "pq2", "v14", "v15")
    run(piece_load_ops(vm, [4, 5, 6]))
    a("v_mov_b32 v14, s91")
    vm.issue(f"buffer_load_dword v15, v14, {SWS}, 0 offen sc1", 'poll3')
    st(26, "stage2 ok")
    vm.wait('pc1', 'pc2', 'pc3', 'p8', 'tx')
    for k in (1, 2, 3): piece_mfma(a, k)
    for p in range(4):
        a(f"v_mfma_f32_16x16x32_bf16 v[84:87], v[8:11], {vr(RG.slot[('p8', p)])}, {'v[84:87]' if p else 0}")
    vm.wait('poll3'); poll1_check(a, "pq3", "v14", "v15")
    run(piece_load_ops(vm, [7]))
    st(27, "stage3 ok")
    for tau in (4, 5, 6): piece_mfma(a, tau)
    def finish(acc, xr, gb, vaddr, soff):
        a(f"""v_lshlrev_b32 v12, 16, v{xr}
        v_and_b32 v13, {sMSK}, v{xr}
        v_lshlrev_b32 v14, 16, v{xr+1}
        v_and_b32 v15, {sMSK}, v{xr+1}
        v_pk_fma_f32 v[12:13], {vr(acc,2)}, {vr(gb,2)}, v[12:13]
        v_pk_fma_f32 v[14:15], {vr(acc+2,2)}, {vr(gb+2,2)}, v[14:15]
        v_cvt_pk_bf16_f32 v{acc}, v12, v13
        v_cvt_pk_bf16_f32 v{acc+1}, v14, v15""")
        vm.issue(f"buffer_store_dwordx2 {vr(acc,2)}, {vaddr}, {SOUT}, {soff} offen")
    finish(84, 76, 80, "v7", "s59")
    vm.wait('pc7'); piece_mfma(a, 7)
    for r in range(4):
        finish(acc0 + 4*r, 64 + 2*r, 72, "v5", "s55")
        if r < 3: a(f"s_add_u32 s55, s55, {16*1152}")

NAMES = {}
def build(stamps=False, dbg=None):
    a = Asm(); vm = Vm(a)
    NAMES.clear()
    def st(i, name):
        NAMES[i] = name; stamp(a, i, stamps)
    prologue(a, "L_end", t0=stamps)
    if stamps:
        a("v_writelane_b32 v0, s98, 0"); NAMES[0] = "wave start"
    a(f"s_add_u32 s8, s26, {EPOCH}\ns_addc_u32 s9, s27, 0\ns_load_dword {sTAG}, s[8:9], 0")
    map1(a)
    a(f"v_lshlrev_b32 v21, 4, {vL}")
    loads_mod3(a)
    xl = lines_of(x_dma, None)
    for l in xl: a(l)
    a(f"s_waitcnt lgkmcnt(0)\ns_mul_i32 {sTAG}, {sTAG}, 0x9E3779B1\ns_add_u32 {sTAG}, {sTAG}, 0x7F4A7C15\ns_mov_b32 {sMSK}, 0xffff0000")
    st(28, "x issued")
    a(";@assume_drained")
    mod_compute3(a)
    st(1, "mod pub")
    w_setup(a)
    emitW = lambda o: vm.issue(o[1], o[0])
    Wops = lambda s: [(f'W{s}', o) for o in w_dma_ops(s)]
    pf = w_prefetch(a)
    vm.issue(pf[0], 'pf'); vm.issue(pf[1], 'pf')
    setup = lines_of(tr_setup)
    setup += [f"v_mov_b32 v{120+r}, 0x3f803f80" for r in range(4)]
    setup += [f"v_mov_b32 v{R1(r,4)+d}, 0" for r in range(5) for d in range(4)]
    setup = [l.replace("s4", "s22").replace("s5", "s23") for l in setup]
    weave(a, setup, Wops(0) + Wops(1), emitW)
    wo_dma(a)
    a("s_waitcnt vmcnt(14)\ns_barrier")
    st(29, "x landed")
    for k in range(5):
        if k == 4: a(f"s_cmp_ge_u32 {sW}, 2\ns_cbranch_scc0 L_xz")
        for r in range(5):
            ad, off = ("v18", r*HRT) if r < 3 else ("v19", (r-3)*HRT)
            a(f"ds_read_b128 {vr(R1(r,k))}, {ad} offset:{off + 2048*k}")
    a("L_xz:")
    wo_tr(a)
    a("s_waitcnt lgkmcnt(0)\ns_barrier")
    st(2, "x read")
    def stage(s):
        vm.wait(f'W{s}')
        a("s_waitcnt lgkmcnt(0)\ns_barrier")
        for o in w_tr_ops(s): a(o)
    sa = lines_of(ln_stats_a, 5, R1, 120, 24, ST1)
    weave(a, sa[:26], Wops(2) + Wops(3), emitW)
    stage(0)
    weave(a, sa[26:], Wops(4) + Wops(5), emitW)
    stage(1)
    weave(a, lines_of(ln_stats_b, 5, 24, ST1), Wops(6), emitW)
    stage(2)
    ln_stats_c(a, 5, 64)
    for o in Wops(7): emitW(o)
    stage(3)
    sd = lines_of(ln_stats_d, 5, 64, 104)
    weave(a, sd[:55], Wops(8), emitW)
    stage(4)
    weave(a, sd[55:], Wops(9), emitW)
    st(3, "ln1 stats")
    for s in range(5, NPRE):
        stage(s)
        if s <= 8:
            for o in Wops(s + 5): emitW(o)
    early_flags(a)
    a(f"""s_lshl_b32 s4, s88, 10
    v_add_u32 v18, s4, v21
    v_add_u32 v19, {3*HRT}, v18""")
    st(4, "W staged")
    t = Asm(); poll_mod(t)
    for l in t.ins: a(l)
    vm.q = []
    a("s_waitcnt lgkmcnt(0)\ns_barrier")
    st(5, "mod in")
    ln_apply(a, 5, R1, 104, f"s_cmp_ge_u32 {sW}, 2", "m1")
    a("s_barrier")
    st(6, "h1 done"); cstamp(a, 43, stamps)
    a(";@fork g")
    for w in range(4):
        if w: a(f";@restore g\nL_g{w}:")
        if w < 3: a(f"s_cmp_eq_u32 {sW}, {w}\ns_cbranch_scc0 L_g{w+1}")
        vm.q = []
        jobs = qkv_gemm(a, vm, w)
        st(7, "qkv gemm"); cstamp(a, 44, stamps)
        a("s_barrier")
        rec_write(a, jobs)
        if w < 3: a("s_branch L_gE")
    a("L_gE:\n;@assume_drained")
    vm.q = []
    a("v_mov_b32 v162, v160")
    vmem_poll(a, "pw", "v162", 54, wave=None, first_issued=True)
    a("s_waitcnt lgkmcnt(0)\ns_barrier")
    st(8, "rec done")
    a(f"s_mov_b32 s92, {sI}\ns_mov_b32 s93, {sJ}")
    map_M(a)
    a(f"s_mov_b32 s94, {sI}\ns_mov_b32 s95, {sJ}")
    fill = wo_dma_fillers()
    a(fill.pop(0))
    a(f"s_mov_b32 {sI}, s92\ns_mov_b32 {sJ}, s93")
    interleave(a, P1.attention, fill, 11)
    a("s_waitcnt lgkmcnt(0)\ns_barrier")
    st(9, "attn done")
    P1.o_store(a, SC1)
    a(f"""s_lshl_b32 s22, {sI}, 5
    s_lshl_b32 s23, {sJ}, 2
    s_add_u32 s22, s22, s23
    s_add_u32 s22, s22, {F_O}
    s_mov_b32 {sI}, s94
    s_mov_b32 {sJ}, s95
    s_waitcnt vmcnt(0)
    s_barrier""")
    flag_store(a, vm, ["s22"])
    st(10, "o pub")
    P2.p2_side_loads(a, vm, SC1)
    for l in slot_decode(0): a(l)
    v, d = slot_dma(0, 240)
    for l in v: a(l)
    for o in d: vm.issue(o, 'swd')
    v, rd = slot_tr_ops(240, 224)
    for l in v: a(l)
    a(f"s_lshl_b32 s22, {sI}, 5\ns_add_u32 s22, s22, {F_O}")
    smem_poll8(a, "po", "s22")
    a("s_barrier")
    st(11, "o flags")
    P2.p2_o_loads(a, vm, SC1)
    vm.wait('swd')
    for o in rd: a(o)
    a("s_waitcnt lgkmcnt(0)")
    for o in slot_store_ops(224): vm.issue(o, 'sw')
    p2_gemm(a, vm)
    st(12, "wo gemm")
    P2.p2_epilogue(a, vm, SC1)
    a(f"""s_lshl_b32 s22, {sI}, 5
    s_lshl_b32 s23, {sJ}, 2
    s_add_u32 s22, s22, s23
    s_add_u32 s22, s22, {F_X}""")
    map_F(a)
    vm.drain()
    a("s_barrier")
    flag_store(a, vm, ["s22", "s10"])
    st(13, "x1 pub")
    a(f"s_lshl_b32 s91, {sI}, 5\ns_add_u32 s91, s91, {F_X}")
    a(f"""s_lshl_b32 s88, {sW}, 10
    s_add_u32 m0, s88, {MV2}
    s_add_u32 s88, s88, {MOD + 6912}""")
    vm.issue(f"buffer_load_dwordx4 v21, {SWS}, s88 offen sc1 lds", 'mv')
    a(f"s_mov_b32 m0, {MV2 + 4096}\ns_mov_b32 s88, {MOD + 6912 + 4096}")
    vm.issue(f"buffer_load_dwordx4 v21, {SWS}, s88 offen sc1 lds", 'mv')
    for l in slot_decode(1): a(l)
    p3_setup(a)
    v, d = slot_dma(SZ, 240)
    for l in v: a(l)
    a(f"s_cmp_eq_u32 {sW}, 2\ns_cbranch_scc0 L_ps0_skip\nv_mov_b32 v202, v23\nv_and_b32 v23, 31, {vL}\nv_lshlrev_b32 v23, 7, v23\nbuffer_load_dword v6, v23, {SWS}, s92 offen sc1 ;@uncounted\ns_waitcnt vmcnt(0)")
    poll2_check(a, "ps0", "s92")
    a("v_mov_b32 v23, v202\nL_ps0_skip:")
    smem_poll8(a, "px", "s91")
    a("s_waitcnt vmcnt(0)\ns_barrier")
    vm.q = []
    st(14, "x1 flags")
    V2.x1_loads(a, vm)
    for o in d: vm.issue(o, 'swd')
    RG.reset(); NEXT[0] = 0
    RG.add([96 + 4*k for k in range(12)])
    while stream_next(vm): pass
    v, rd = slot_tr_ops(240, 224)
    for l in v: a(l)
    for r in range(4): a(f"v_mov_b32 v{92+r}, 0x3f803f80")
    vm.wait('x1')
    st(15, "x1 landed")
    ln_stats_a(a, 4, R2, 92, 24, ST2)
    ln_stats_b(a, 4, 24, ST2)
    vm.wait('swd')
    for o in rd: a(o)
    a("s_waitcnt lgkmcnt(0)\ns_barrier")
    ln_stats_c(a, 4, 56)
    for o in slot_store_ops(224): vm.issue(o, 'sw')
    a("s_waitcnt lgkmcnt(0)")
    ln_stats_d(a, 4, 56, 88)
    st(16, "ln2 stats")
    def refill(r, k):
        if R2(r, k) < SA_:
            RG.add([R2(r, k)]); stream_next(vm)
    ln_apply(a, 4, R2, 88, f"s_cmp_lt_u32 {sW}, 2", "m2", refill)
    st(17, "ln2 main")
    RG.add([R2(r, 4) for r in range(3)])
    while stream_next(vm): pass
    a(f"""s_and_b32 s88, {sW}, 1
    s_lshl_b32 s88, s88, 3
    s_lshr_b32 s89, {sW}, 1
    s_lshl_b32 s89, s89, 10
    s_add_u32 s88, s88, s89
    s_add_u32 s88, s88, {HH}
    v_add_u32 v18, s88, v21
    v_add_u32 v19, {3*HRT}, v18
    v_and_b32 v23, 31, {vL}
    v_lshlrev_b32 v23, 7, v23
    s_barrier""")
    st(18, "ln2 bar"); cstamp(a, 40, stamps)
    ex = {}; hard = {}
    def add(t, s, ops): ex.setdefault((t, s), []).extend(ops)
    def addh(t, s, f): hard.setdefault((t, s), []).append(f)
    def step(t, s, d):
        s += d
        return (t + s // 18, s % 18)
    def slot(k, dec, dma, tr, sto, flag):
        v, d = slot_dma(SZ, SA_)
        add(*dec, group_scc(slot_decode(k)) + v)
        for n in range(4): add(*dma[n], [(d[n], 'swd')])
        addh(*step(*tr, -3), lambda: setattr(RG, 'hold', 4))
        v2, _ = slot_tr_ops(SA_, [0, 0, 0, 0])
        add(*step(*tr, -5), v2)
        def do_tr():
            regs = [RG.take(('sw', k, n)) for n in range(4)]; RG.hold = 0
            vm.wait('swd')
            for o in slot_tr_ops(SA_, regs)[1]: a(o)
        add(*tr, [do_tr])
        for n in range(4):
            def do_st(n=n):
                if n == 0: a("s_waitcnt lgkmcnt(0)")
                regs = [RG.slot[('sw', k, m)] for m in range(4)]
                vm.issue(slot_store_ops(regs)[n], 'sw'); RG.give(('sw', k, n))
            add(*sto[n], [do_st])
        add(*flag, [lambda: vm.wait('sw'), (slot_flag_op(k), 'fl')])
    def poll(iss, chk, k):
        addh(*iss, lambda: vm.issue(f"s_add_u32 s92, s92, 32768\nbuffer_load_dword v6, v23, {SWS}, s92 offen sc1", f'ps{k}'))
        addh(*chk, lambda: (vm.wait(f'ps{k}'), poll2_check(a, f"ps{k}", "s92"), RG.checked.add(f'ps{k}')))
    add(0, 7, [lambda: vm.wait('sw'), (slot_flag_op(1), 'fl')])
    slot(2, (0, 0), [(0, 11), (0, 14), (0, 17), (1, 2)], (1, 16), [(2, 0), (2, 4), (2, 8), (2, 12)], (3, 8))
    slot(3, (2, 13), [(3, 4), (3, 7), (3, 10), (3, 13)], (4, 9), [(4, 11), (4, 15), (5, 1), (5, 5)], (6, 1))
    poll((1, 0), (1, 15), 1)
    poll((3, 15), (4, 12), 2)
    poll((6, 9), (7, 6), 3)
    gemm1(a, vm, ex, hard, stamps)
    a("s_barrier")
    st(19, "gemm1"); cstamp(a, 41, stamps)
    ex = {}; hard = {}
    extra_slots = [64 + 4*k for k in range(6)]
    RG.add(extra_slots + [216, 220])
    addh(3, 0, lambda: (RG.retire.update(extra_slots), [RG.free.remove(r) for r in extra_slots if r in RG.free]))
    add(5, 12, tail_setup_ops() + ppoll_addr_ops() + piece_base_ops())
    add(6, 14, pflag_addr_ops(0) + [lambda: vm.wait('part3'), (pflag_op(), 'fl')])
    add(7, 6, [(f"buffer_load_dword v15, v13, {SWS}, 0 offen sc1", 'poll1')])
    addh(8, 0, lambda: (vm.wait('poll1'), poll1_check(a, "pq1", "v13", "v15")))
    add(8, 0, piece_load_ops(vm, [1, 2, 3]))
    add(8, 7, pflag_addr_ops(1) + [lambda: vm.wait('part6'), (pflag_op(), 'fl')])
    add(8, 8, p8_load_ops(vm) + sel_ops())
    add(8, 16, [(f"buffer_load_dword v15, v14, {SWS}, 0 offen sc1", 'poll2')])
    gemm2(a, vm, ex, hard, stamps)
    st(20, "gemm2"); cstamp(a, 42, stamps)
    tail(a, vm, stamps, st)
    a(f"""s_cmp_eq_u32 {sB}, 0
    s_cselect_b32 s4, {sW}, 1
    s_cmp_eq_u32 s4, 0
    s_cbranch_scc0 L_noep
    v_mov_b32 v4, {sTAG}
    s_mov_b32 s4, {EPOCH}
    s_mov_b64 exec, 1
    buffer_store_dword v4, off, {SWS}, s4 sc1
    s_mov_b64 exec, -1
    L_noep:""")
    if stamps: vm.drain()
    st(21, "end")
    stamp_flush(a, 0, 64, stamps)
    if dbg:
        a(f"""s_cmp_eq_u32 {sB}, {dbg[0]}
        s_cselect_b32 s4, {sW}, 1
        s_cmp_eq_u32 s4, 0
        s_cbranch_scc0 L_nodbg
        s_load_dwordx2 s[72:73], s[0:1], 80
        s_mov_b32 s74, 256
        s_mov_b32 s75, 0x20000
        v_readlane_b32 s4, v0, 0
        s_waitcnt lgkmcnt(0)""")
        for n, k in enumerate(dbg[1]):
            a(f"v_readlane_b32 s5, v0, {k}\ns_sub_u32 s5, s5, s4\nv_mov_b32 v4, s5\ns_mov_b32 s6, {4*n}\ns_mov_b64 exec, 1\nbuffer_store_dword v4, off, s[72:75], s6\ns_mov_b64 exec, -1")
        a("L_nodbg:")
    a("L_end:\ns_endpgm")
    return file_text("; adaLN block (sliding dilated attention + gated FFN), one persistent launch\n",
                     [dict(name=KNAME, body=a.finish(), vgpr=256, agpr=256, sgpr=102, grid=256, block=256, lds=163840)])

if __name__ == "__main__":
    if len(sys.argv) > 2:
        open(sys.argv[1], "w").write(build(True, (int(sys.argv[2]), [int(x) for x in sys.argv[3].split(",")])))
    else:
        open(sys.argv[1], "w").write(build())
```

```python
import sys
from gen_v3 import *
import gen_v3 as V3

def sal(s): return [x.strip() for x in s.split("\n") if x.strip()]
def pairs(items, n=2):
    out = []
    for it in items:
        if isinstance(it, str) and out and isinstance(out[-1], str) and all(l.startswith('s_') for l in (it + "\n" + out[-1]).split("\n")) and out[-1].count("\n") + it.count("\n") + 2 <= n:
            out[-1] += "\n" + it
        else: out.append(it)
    return out

def w_prefetch4(a):
    a(f"""s_and_b32 s4, {sI}, 7
    s_lshl_b32 s4, s4, 6
    s_lshl_b32 s5, {sW}, 4
    s_add_u32 s4, s4, s5
    s_add_u32 s4, s4, 64
    s_mul_i32 s4, s4, 3456
    s_mul_i32 s5, {sJ}, 144
    s_and_b32 s5, s5, 0xffffff80
    s_add_u32 s4, s4, s5
    s_add_u32 s5, s4, {8*3456}
    v_lshrrev_b32 v4, 3, {vL}
    v_mul_u32_u24 v4, 3456, v4
    v_and_b32 v5, 7, {vL}
    v_min_u32 v5, 5, v5
    v_lshrrev_b32 v6, 1, v5
    v_mul_u32_u24 v6, 1152, v6
    v_and_b32 v5, 1, v5
    v_lshl_add_u32 v6, v5, 7, v6
    v_add_u32 v4, v4, v6
    buffer_load_dword v254, v4, {SQKV}, s4 offen
    buffer_load_dword v255, v4, {SQKV}, s5 offen""")

XL = [f"s{10+l}" for l in range(9)]
sWR = "s95"
def x_prep(a):
    a(f"""v_lshrrev_b32 v4, 3, {vL}
    v_mul_u32_u24 v8, 1152, v4
    v_lshrrev_b32 v4, 4, {vL}
    s_and_b32 s4, {sW}, 1
    s_lshl_b32 s4, s4, 2
    v_or_b32 v4, s4, v4
    v_and_b32 v5, 7, {vL}
    v_xor_b32 v4, v4, v5
    v_lshl_add_u32 v8, v4, 4, v8
    s_and_b32 s27, {sI}, 7
    s_mul_i32 {sWR}, s27, {2*110592}
    s_mul_i32 s5, {sI}, {64*1152}
    s_mul_i32 s6, {sW}, {8*1152}
    s_add_u32 s5, s5, s6
    s_sub_u32 s7, s5, {16*1152}
    s_cmp_lt_u32 {sW}, 2
    s_cselect_b32 s8, {sI}, 1
    s_cselect_b32 s26, 3, 2
    s_cmp_eq_u32 s8, 0
    s_cselect_b32 s7, s6, s7
    s_sub_u32 s5, s5, {16*1152}
    s_and_b32 s8, {sJ}, 3
    s_cmp_ge_u32 s8, s26
    s_cselect_b32 s9, s26, 0
    s_sub_u32 s8, s8, s9
    s_cmp_ge_u32 s8, s26
    s_cselect_b32 s9, s26, 0
    s_sub_u32 s8, s8, s9""")
    for l in range(9):
        a(f"""s_add_u32 s9, s27, {l}
        s_cmp_ge_u32 s9, 9
        s_cselect_b32 s4, 9, 0
        s_sub_u32 s9, s9, s4
        s_lshl_b32 {XL[l]}, s9, 7""")
def x_group_base(t):
    return f"""s_add_u32 s9, s8, {t}
    s_cmp_ge_u32 s9, s26
    s_cselect_b32 s4, s26, 0
    s_sub_u32 s9, s9, s4
    s_mul_i32 s4, s9, 36864
    s_add_u32 s91, s6, s4
    s_add_u32 s92, s5, s4
    s_cmp_eq_u32 s9, 0
    s_cselect_b32 s92, s7, s92""".replace("    ", "")
def x_group_ops():
    return [f"s_add_u32 m0, s91, {l*1024}\ns_add_u32 s4, s92, {XL[l]}\nbuffer_load_dwordx4 v8, {SX}, s4 offen lds" for l in range(9)]

def w_dma_ops(s):
    ops = []
    for seg in range(3):
        for h in range(2):
            pre = f"s_add_u32 {sWR}, {sWR}, 110592\ns_cmp_eq_u32 {sWR}, {18*110592}\ns_cselect_b32 {sWR}, 0, {sWR}\n" if s and seg == 0 and h == 0 else ""
            ops.append(pre + f"s_add_u32 m0, s84, {wslot(s) + seg*8192 + h*1024}\ns_add_u32 s4, {sWR}, {h*4*3456 + seg*1152}\nbuffer_load_dwordx4 v9, {SQKV}, s4 offen lds")
    return ops

def poll_mod4(a):
    ls = lines_of(poll_mod)
    i = ls.index("s_mov_b32 s89, 0")
    for l in ls[:i]: a(l)
    a(f"""s_and_b32 s4, {sI}, 7
    s_lshl_b32 s4, s4, 8""")
    for r in ("v5", "v7", "v6"):
        a(f"""v_subrev_u32 v36, {MV1}, {r}
        v_cmp_le_u32 vcc, 2304, v36
        v_cndmask_b32 v37, 0, v38, vcc
        v_add_u32 v37, s4, v37
        v_cmp_lt_u32 vcc, v36, v37
        v_subrev_u32 {r}, s4, {r}
        v_cndmask_b32 v36, 0, v38, vcc
        v_add_u32 {r}, {r}, v36""".replace("v_subrev_u32 v36", "v_mov_b32 v38, 2304\nv_subrev_u32 v36"))
    for l in ls[i:]: a(l)

ZB = 98304
ALIGN = True
CODEPF = True
TOUCH = True
NL = 1
SRC = lambda k: f"s{10+3*k}"; DST = lambda k: f"s{11+3*k}"; TYP = lambda k: f"s{12+3*k}"
def ffn_decode(a):
    a(f"""s_lshr_b32 s22, {sB}, 3
    s_lshl_b32 s22, s22, 2
    s_add_u32 s22, s22, {sW}
    s_and_b32 s23, {sB}, 7
    s_mul_i32 s24, s22, 57
    s_lshr_b32 s24, s24, 11
    s_mul_i32 s25, s24, 36
    s_sub_u32 s25, s22, s25
    s_cmp_ge_u32 s25, 18
    s_cselect_b32 s26, 18, 0
    s_cselect_b32 s27, 1, 0
    s_sub_u32 s25, s25, s26
    s_mul_i32 s4, s25, {32*9216}
    s_mul_i32 s26, s23, 1152
    s_add_u32 s4, s4, s26
    s_lshl_b32 s26, s24, 7
    s_add_u32 s4, s4, s26
    s_mul_i32 s5, s23, 36
    s_lshl_b32 s26, s24, 2
    s_add_u32 s5, s5, s26
    s_mul_i32 s5, s5, 18
    s_add_u32 s5, s5, s25
    s_lshl_b32 s5, s5, 1
    s_add_u32 s5, s5, s27
    s_lshl_b32 s5, s5, 10
    s_add_u32 s5, s5, {WGU_SW}""")
    for k in range(4):
        if k > 0:
            off = {1: -108, 2: -88, 3: 40}[k]
            a(f"""s_add_i32 s24, s22, {off}
            s_mul_i32 s25, s24, 57
            s_lshr_b32 s25, s25, 9
            s_mul_i32 s26, s25, 9
            s_sub_u32 s24, s24, s26
            s_mul_i32 s6, s23, {576*1152}
            s_mul_i32 s26, s25, {32*1152}
            s_add_u32 s6, s6, s26
            s_lshl_b32 s26, s24, 7
            s_add_u32 s6, s6, s26
            s_mul_i32 s7, s23, 36
            s_lshl_b32 s26, s24, 2
            s_add_u32 s7, s7, s26
            s_mul_i32 s7, s7, 18
            s_add_u32 s7, s7, s25
            s_lshl_b32 s7, s7, 10
            s_add_u32 s7, s7, {WD_SW}""")
        if k < 3:
            a(f"s_add_u32 {SRC(k)}, s4, {3*k*128}\ns_add_u32 {DST(k)}, s5, {3*k*147456}\ns_cmp_ge_u32 s22, 108")
            if k == 0: a(f"s_cselect_b32 {TYP(k)}, 3, s27\ns_cselect_b32 {DST(k)}, 0x7ff00000, {DST(k)}")
            else: a(f"s_cselect_b32 {TYP(k)}, 2, s27\ns_cselect_b32 {SRC(k)}, s6, {SRC(k)}\ns_cselect_b32 {DST(k)}, s7, {DST(k)}")
        else:
            a(f"s_mov_b32 {SRC(k)}, s6\ns_cmp_ge_u32 s22, 122\ns_cselect_b32 {TYP(k)}, 3, 2\ns_cselect_b32 {DST(k)}, 0x7ff00000, s7")

def ffn_prep_fillers():
    c = L()
    dma_chunk(c, "v150", 0, "v4", "v5"); dma_chunk(c, "v151", 1, "v4", "v5")
    c(f"""v_lshlrev_b32 v150, 4, v150
    v_lshlrev_b32 v151, 4, v151
    v_lshrrev_b32 v146, 3, {vL}
    s_lshl_b32 s27, {sW}, 14
    s_add_u32 s27, s27, {ZB}""")
    return c.l
def ffn_slot_fillers(k):
    f = [f"""s_cmp_eq_u32 {TYP(k)}, 1
    s_cselect_b32 s72, s44, s40
    s_cselect_b32 s73, s45, s41""", f"""s_cmp_eq_u32 {TYP(k)}, 2
    s_cselect_b32 s72, s48, s72
    s_cselect_b32 s73, s49, s73
    s_movk_i32 s8, 9216
    s_cselect_b32 s8, 1152, s8""", f"""s_mov_b32 s74, {D*F*2}
    s_cmp_eq_u32 {TYP(k)}, 3
    s_cselect_b32 s74, 0, s74
    s_mov_b32 s75, 0x20000""", "v_mul_u32_u24 v147, s8, v146", "v_add_u32 v144, v147, v150", "v_add_u32 v145, v147, v151", "s_lshl_b32 s26, s8, 3"]
    f = [x.replace("    ", "") for x in f]
    for ii in range(4):
        f.append(('swd', f"s_add_u32 m0, s27, {k*4096 + ii*1024}\n" + (f"s_add_u32 {SRC(k)}, {SRC(k)}, s26" if ii else "s_nop 0") + f"\nbuffer_load_dwordx4 v{144 + (ii&1)}, s[72:75], {SRC(k)} offen lds"))
    return f

def qkv_gemm4(a, vm, w, stamps=False):
    units = [(t, rt) for rt in range(5) for t in range(4) if t < 2 or rt > 0] if w < 2 else [(t, rt) for rt in range(5) for t in range(3)]
    rf, jobs = rec_fillers(w)
    pw = [f"""s_and_b32 s5, {sB}, 63
        s_lshr_b32 s5, s5, 3""".replace("        ", ""), f"s_mul_i32 s5, s5, 72\ns_add_u32 s5, s5, {F_W - 36*4}", f"v_min_u32 v160, 53, {vL}", "v_lshlrev_b32 v160, 2, v160", f"v_add_u32 v4, {F_M}, v160", "v_add_u32 v160, s5, v160",
        f"v_cmp_gt_u32 vcc, 36, {vL}\nv_cndmask_b32 v160, v160, v4, vcc"]
    misc = pw + ffn_prep_fillers() + rf
    d16 = [('W16', o) for o in w_dma_ops(16)]; d17 = [('W17', o) for o in w_dma_ops(17)]
    plan = {0: w_tr_ops(14), 1: w_tr_ops(15), 2: d16[:3], 3: d16[3:], 4: d17[:3], 5: d17[3:], 6: [('pw', f"buffer_load_dword v7, v160, {SWS}, 0 offen sc1")],
            7: w_tr_ops(16), 8: w_tr_ops(17)}
    ffn = []
    for k in range(4): ffn += ffn_slot_fillers(k)
    def rd(s, rt):
        ad, off = ("v21", rt*HRT) if rt < 3 else ("v22", (rt-3)*HRT)
        return f"ds_read_b128 {vr(BB1(s, rt))}, {ad} offset:{off + s*1024}"
    for rt in range(5): a(rd(0, rt))
    for s in range(18):
        a("s_waitcnt lgkmcnt(0)")
        if s in (2, 7, 9, 13): cstamp(a, {2: 34, 7: 35, 9: 36, 13: 38}[s], stamps)
        if s == 7: vm.wait('W17')
        if s == 9:
            vm.wait('pw')
            poll1_check(a, f"pw{w}", "v160", "v7")
        if s in (2, 7, 9): a("s_barrier")
        if s == 9: cstamp(a, 37, stamps)
        nxt = [rd(s+1, rt) for rt in range(5)] if s < 17 else []
        here = list(plan.get(s, []))
        spaced = s in (2, 3, 4, 5)
        ndma = 0
        for n, (tau, rt) in enumerate(units):
            acc = vr(ACC1(tau, rt))
            a(f"v_mfma_f32_16x16x32_bf16 {acc}, {wfrag(tau, s)}, {vr(BB1(s, rt))}, {acc if s else 0}")
            if nxt and n % 3 == 0: a(nxt.pop(0))
            elif here and (not spaced or n % 4 == 1):
                o = here.pop(0)
                if isinstance(o, tuple): vm.issue(o[1], o[0])
                else: a(o)
            elif s >= 9 and ffn and not (isinstance(ffn[0], tuple) and (ndma >= 2 or n % 5 != 1 and n % 5 != 2)):
                o = ffn.pop(0)
                if isinstance(o, tuple): vm.issue(o[1], o[0]); ndma += 1
                else: a(o)
            elif misc:
                a(misc.pop(0))
                if w >= 2 and s in (6, 10) and misc: a(misc.pop(0))
        assert not nxt and not here, (s, nxt, here)
    assert not misc and not ffn, (len(misc), len(ffn))
    return jobs

def z_tr(a):
    a(f"v_lshrrev_b32 v6, 2, {vN}\nv_lshl_add_u32 v7, {vQ}, 3, v6")
    tr_addr(a, "v8", "v7", "v4", "v5")
    a("v_add_u32 v7, 4, v7"); tr_addr(a, "v9", "v7", "v4", "v5")
    a(f"v_lshl_add_u32 v7, {vQ}, 2, v6"); tr_addr(a, "v10", "v7", "v4", "v5")
    a("v_add_u32 v7, 16, v7"); tr_addr(a, "v11", "v7", "v4", "v5")
    a(f"s_lshl_b32 s27, {sW}, 14\ns_add_u32 s27, s27, {ZB}")
    for r in range(8, 12): a(f"v_add_u32 v{r}, s27, v{r}")
    for k in range(4):
        b = 24 + 8*k
        a(f"""s_cmp_eq_u32 {TYP(k)}, 2
        s_cselect_b64 vcc, -1, 0
        v_cndmask_b32 v{b}, v8, v10, vcc
        v_cndmask_b32 v{b+1}, v9, v11, vcc""")
        for tau in range(1, 4):
            a(f"v_xor_b32 v{b+2*tau}, {32*tau}, v{b}\nv_xor_b32 v{b+2*tau+1}, {32*tau}, v{b+1}")
        a(f"s_cmp_eq_u32 {TYP(k)}, 2\ns_mov_b32 {TYP(k)}, 36864\ns_cselect_b32 {TYP(k)}, 18432, {TYP(k)}")
    rd = []
    for k in range(4):
        for tau in range(4):
            r = 16*k + 4*tau; x = 24 + 8*k + 2*tau
            rd += [f"ds_read_b64_tr_b16 {ar(r,2)}, v{x} offset:{k*4096}", f"ds_read_b64_tr_b16 {ar(r+2,2)}, v{x+1} offset:{k*4096}"]
    return rd

ZD = [40, 41, 42, 43, 44, 45, 46, 47]
def z_store_ops(k):
    d, t = f"s{ZD[2*k]}", f"s{ZD[2*k+1]}"
    return [(f"s_add_u32 {d}, {d}, {t}\n" if tau else "") + f"buffer_store_dwordx4 {ar(16*k + 4*tau)}, v21, {SWS}, {d} offen sc1" for tau in range(4)]

NAMES = V3.NAMES
def build(stamps=False, dbg=None):
    a = Asm(); vm = Vm(a)
    NAMES.clear()
    def st(i, name):
        NAMES[i] = name; stamp(a, i, stamps)
    prologue(a, "L_end", t0=stamps, page=TOUCH)
    if stamps:
        a("v_writelane_b32 v0, s98, 0"); NAMES[0] = "wave start"
    a(f"s_add_u32 s8, s26, {EPOCH}\ns_addc_u32 s9, s27, 0\ns_load_dword {sTAG}, s[8:9], 0")
    map1(a)
    a(f"v_lshlrev_b32 v21, 4, {vL}")
    if CODEPF:
        a(f"""s_cmp_eq_u32 {sW}, 3
        s_cbranch_scc0 L_nopf
        s_getpc_b64 s[22:23]
        L_pc:
        s_lshr_b32 s4, {sB}, 3
        s_lshl_b32 s4, s4, 12
        v_lshlrev_b32 v4, 7, {vL}
        v_add_u32 v4, s4, v4
        s_mov_b32 s5, L_end-L_pc
        v_min_u32 v4, s5, v4
        s_mov_b32 exec_hi, 0
        global_load_dword v253, v4, s[22:23] ;@uncounted
        s_mov_b32 exec_hi, -1
        L_nopf:""")
    loads_mod3(a)
    emitW = lambda o: vm.issue(o[1], o[0])
    Wops = lambda s: [(f'W{s}', o) for o in w_dma_ops(s)]
    x_prep(a)
    setup = lines_of(w_setup) + lines_of(tr_setup)
    setup += [f"v_mov_b32 v{120+r}, 0x3f803f80" for r in range(4)]
    setup += [f"v_mov_b32 v{R1(r,4)+d}, 0" for r in range(5) for d in range(4)]
    import re
    ren = {'s4': 's22', 's5': 's23'}
    setup = [re.sub(r'\bs([45])\b', lambda m: ren['s' + m.group(1)], l) for l in setup]
    a(x_group_base(0))
    g0 = x_group_ops(); g1 = x_group_ops(); g1[0] = x_group_base(1) + "\n" + g1[0]
    weave(a, setup, g0 + g1, a)
    a(f"s_cmp_lt_u32 {sW}, 2\ns_cbranch_scc0 L_x2")
    a(x_group_base(2))
    for o in x_group_ops(): a(o)
    a("L_x2:")
    a(f"s_waitcnt lgkmcnt(0)\ns_mul_i32 {sTAG}, {sTAG}, 0x9E3779B1\ns_add_u32 {sTAG}, {sTAG}, 0x7F4A7C15")
    st(28, "x issued")
    a(";@assume_drained")
    ml = [l for l in lines_of(mod_compute3)]
    cut = next(i for i, l in enumerate(ml) if 'row_ror' in l)
    a(ml[0]); a("s_cbranch_scc0 L_nomodW")
    body = [re.sub(r'\bs4\b', 's22', l) for l in ml[2:cut]]
    weave(a, body, [o[1] + " ;@uncounted" for o in Wops(0) + Wops(1)], a, start=40)
    for l in ml[cut:]: a(l)
    a("s_branch L_modE\nL_nomodW:")
    for o in Wops(0) + Wops(1): a(o[1] + " ;@uncounted")
    a("L_modE:")
    vm.q = ['W0']*6 + ['W1']*6
    st(1, "mod pub")
    wo_dma(a)
    a(";@touch m0 m1\n;@mark m0")
    a("s_waitcnt vmcnt(12)\ns_barrier")
    st(29, "x landed")
    for k in range(5):
        if k == 4: a(f"s_cmp_ge_u32 {sW}, 2\ns_cbranch_scc0 L_xz")
        for r in range(5):
            ad, off = ("v18", r*HRT) if r < 3 else ("v19", (r-3)*HRT)
            a(f"ds_read_b128 {vr(R1(r,k))}, {ad} offset:{off + 2048*k}")
    a("L_xz:")
    wo_tr(a)
    a("s_waitcnt lgkmcnt(0)\ns_barrier")
    st(2, "x read")
    def stage(s):
        vm.wait(f'W{s}')
        a("s_waitcnt lgkmcnt(0)\ns_barrier")
        for o in w_tr_ops(s): a(o)
    sa = lines_of(ln_stats_a, 5, R1, 120, 24, ST1)
    weave(a, sa[:26], Wops(2) + Wops(3)[:2], emitW)
    stage(0)
    weave(a, sa[26:], Wops(3)[2:] + Wops(4)[:4], emitW)
    stage(1)
    weave(a, lines_of(ln_stats_b, 5, 24, ST1), Wops(4)[4:] + Wops(5), emitW)
    stage(2)
    ln_stats_c(a, 5, 64)
    for o in Wops(6): emitW(o)
    stage(3)
    sd = lines_of(ln_stats_d, 5, 64, 104)
    weave(a, sd[:55], Wops(7) + Wops(8), emitW)
    stage(4)
    weave(a, sd[55:], Wops(9), emitW)
    st(3, "ln1 stats")
    dec = lines_of(ffn_decode)
    for s in range(5, 12):
        stage(s)
        if s <= 8:
            for o in Wops(s + 5): emitW(o)
        if s == 9:
            for l in dec: a(l)
    vm.wait('W13')
    a("s_waitcnt lgkmcnt(0)\ns_barrier")
    for o in w_tr_ops(12) + w_tr_ops(13): a(o)
    early_flags(a)
    a(f"""s_lshl_b32 s4, s88, 10
    v_add_u32 v18, s4, v21
    v_add_u32 v19, {3*HRT}, v18""")
    st(4, "W staged")
    a(";@touch m1 m2")
    poll_mod4(a)
    vm.q = []
    a("s_waitcnt lgkmcnt(0)\ns_barrier")
    st(5, "mod in")
    wq = Wops(14) + Wops(15)
    def wdma(r, k):
        if wq and (5*k + r) % 3 != 2: emitW(wq.pop(0))
    ln_apply(a, 5, R1, 104, f"s_cmp_ge_u32 {sW}, 2", "m1", wdma)
    assert not wq
    vm.wait('W15')
    a("s_barrier")
    st(6, "h1 done"); cstamp(a, 43, stamps)
    a(";@fork g")
    for w in range(4):
        if w: a(f";@restore g\nL_g{w}:")
        if w < 3: a(f"s_cmp_eq_u32 {sW}, {w}\ns_cbranch_scc0 L_g{w+1}")
        vm.q = []
        jobs = qkv_gemm4(a, vm, w, stamps)
        st(7, "qkv gemm"); cstamp(a, 44, stamps)
        a("s_barrier")
        rec_write(a, jobs)
        if w < 3: a("s_branch L_gE")
    a("L_gE:\n;@assume_drained")
    vm.q = []
    a("s_waitcnt lgkmcnt(0)\ns_barrier")
    st(8, "rec done")
    a(";@mark m1")
    P1.attention(a)
    a("s_waitcnt lgkmcnt(0)\ns_barrier")
    st(9, "attn done")
    P1.o_store(a, SC1)
    a(f"""s_lshl_b32 s22, {sI}, 5
    s_lshl_b32 s23, {sJ}, 2
    s_add_u32 s22, s22, s23
    s_add_u32 s22, s22, {F_O}""")
    map_M(a)
    rd = z_tr(a)
    a("s_waitcnt vmcnt(0)\ns_barrier")
    flag_store(a, vm, ["s22"])
    st(10, "o pub")
    for o in rd: a(o)
    for k in range(4): a(f"s_mov_b32 s{ZD[2*k]}, {DST(k)}\ns_mov_b32 s{ZD[2*k+1]}, {TYP(k)}")
    fill = wo_dma_fillers()
    a(fill.pop(0))
    a("s_waitcnt lgkmcnt(0)\ns_barrier")
    for o in fill: vm.issue(o, 'wo')
    P2.p2_side_loads(a, vm, SC1)
    for o in z_store_ops(0): vm.issue(o, 'sw')
    a(f"s_lshl_b32 s22, {sI}, 5\ns_add_u32 s22, s22, {F_O}")
    smem_poll8(a, "po", "s22")
    vm.wait('wo')
    a("s_barrier")
    st(11, "o flags")
    P2.p2_o_loads(a, vm, SC1)
    p2_gemm(a, vm)
    st(12, "wo gemm")
    P2.p2_epilogue(a, vm, SC1)
    a(f"""s_lshl_b32 s22, {sI}, 5
    s_lshl_b32 s23, {sJ}, 2
    s_add_u32 s22, s22, s23
    s_add_u32 s22, s22, {F_X}
    s_and_b32 s23, {sB}, 7
    s_lshl_b32 s23, s23, 5
    s_lshr_b32 s24, {sB}, 3
    s_add_u32 s23, s23, s24
    s_lshl_b32 s23, s23, 7
    s_add_u32 s10, s23, {F_S}
    s_add_u32 s93, s10, 32768""")
    map_F(a)
    vm.drain()
    a("s_barrier")
    flag_store(a, vm, ["s22", "s10"])
    st(13, "x1 pub")
    a(";@mark m2")
    a(f"s_lshl_b32 s91, {sI}, 5\ns_add_u32 s91, s91, {F_X}")
    a(f"""s_lshl_b32 s88, {sW}, 10
    s_add_u32 m0, s88, {MV2}
    s_add_u32 s88, s88, {MOD + 6912}""")
    vm.issue(f"buffer_load_dwordx4 v21, {SWS}, s88 offen sc1 lds", 'mv')
    a(f"s_mov_b32 m0, {MV2 + 4096}\ns_mov_b32 s88, {MOD + 6912 + 4096}")
    vm.issue(f"buffer_load_dwordx4 v21, {SWS}, s88 offen sc1 lds", 'mv')
    p3_setup(a)
    a(f"s_cmp_eq_u32 {sW}, 2\ns_cbranch_scc0 L_ps0_skip\nv_mov_b32 v202, v23\nv_and_b32 v23, 31, {vL}\nv_lshlrev_b32 v23, 7, v23\nbuffer_load_dword v6, v23, {SWS}, s92 offen sc1 ;@uncounted\ns_waitcnt vmcnt(0)")
    poll2_check(a, "ps0", "s92")
    a("v_mov_b32 v23, v202\nL_ps0_skip:")
    a(";@touch m2 m3")
    smem_poll8(a, "px", "s91")
    a("s_waitcnt vmcnt(0)\ns_barrier")
    vm.q = []
    st(14, "x1 flags")
    V2.x1_loads(a, vm)
    RG.reset(); NEXT[0] = 0
    RG.checked.update(('ps2', 'ps3'))
    RG.add([96 + 4*k for k in range(12)])
    while stream_next(vm): pass
    for r in range(4): a(f"v_mov_b32 v{92+r}, 0x3f803f80")
    vm.wait('x1')
    st(15, "x1 landed")
    zs = [('sw', o) for k in (1, 2, 3) for o in z_store_ops(k)]
    weave(a, lines_of(ln_stats_a, 4, R2, 92, 24, ST2), zs[:6], emitW)
    ln_stats_b(a, 4, 24, ST2)
    a("s_waitcnt lgkmcnt(0)\ns_barrier")
    ln_stats_c(a, 4, 56)
    for o in zs[6:8]: emitW(o)
    a("s_waitcnt lgkmcnt(0)")
    weave(a, lines_of(ln_stats_d, 4, 56, 88), zs[8:], emitW)
    st(16, "ln2 stats")
    def refill(r, k):
        RG.add([R2(r, k)]); stream_next(vm)
    ln_apply(a, 4, R2, 88, f"s_cmp_lt_u32 {sW}, 2", "m2", refill)
    st(17, "ln2 main")
    RG.add([R2(r, 4) for r in range(4)])
    while stream_next(vm): pass
    a(f"""s_and_b32 s88, {sW}, 1
    s_lshl_b32 s88, s88, 3
    s_lshr_b32 s89, {sW}, 1
    s_lshl_b32 s89, s89, 10
    s_add_u32 s88, s88, s89
    s_add_u32 s88, s88, {HH}
    v_add_u32 v18, s88, v21
    v_add_u32 v19, {3*HRT}, v18
    v_and_b32 v23, 31, {vL}
    v_lshlrev_b32 v23, 7, v23
    s_barrier""")
    st(18, "ln2 bar"); cstamp(a, 40, stamps)
    ex = {}; hard = {}
    def add(t, s, ops): ex.setdefault((t, s), []).extend(ops)
    def addh(t, s, f): hard.setdefault((t, s), []).append(f)
    add(0, 7, [lambda: vm.wait('sw'), (slot_flag_op(1), 'fl')])
    addh(1, 2, lambda: vm.issue(f"s_add_u32 s92, s92, 32768\nbuffer_load_dword v6, v23, {SWS}, s92 offen sc1", 'ps1'))
    addh(2, 0, lambda: (vm.wait('ps1'), poll2_check(a, "ps1", "s92"), RG.checked.add('ps1')))
    gemm1(a, vm, ex, hard, stamps)
    a("s_barrier")
    st(19, "gemm1"); cstamp(a, 41, stamps)
    ex = {}; hard = {}
    extra_slots = [64 + 4*k for k in range(6)]
    RG.add(extra_slots)
    addh(3, 0, lambda: (RG.retire.update(extra_slots), [RG.free.remove(r) for r in extra_slots if r in RG.free]))
    add(5, 12, tail_setup_ops() + ppoll_addr_ops() + piece_base_ops())
    add(6, 14, pflag_addr_ops(0) + [lambda: vm.wait('part3'), (pflag_op(), 'fl')])
    add(7, 10, [(f"buffer_load_dword v15, v13, {SWS}, 0 offen sc1", 'poll1')])
    addh(8, 5, lambda: (vm.wait('poll1'), poll1_check(a, "pq1", "v13", "v15")))
    add(8, 5, piece_load_ops(vm, [1, 2, 3]))
    add(8, 7, pflag_addr_ops(1) + [lambda: vm.wait('part6'), (pflag_op(), 'fl')])
    add(8, 8, p8_load_ops(vm) + sel_ops())
    add(8, 16, [(f"buffer_load_dword v15, v14, {SWS}, 0 offen sc1", 'poll2')])
    gemm2(a, vm, ex, hard, stamps)
    st(20, "gemm2"); cstamp(a, 42, stamps)
    tail(a, vm, stamps, st)
    a(";@mark m3")
    finish_kernel(a, vm, st, stamps, dbg)
    return file_text("; adaLN block (sliding dilated attention + gated FFN), one persistent launch\n",
                     [dict(name=KNAME, body=align8(a.finish(), (1 << 30) if TOUCH else None, nl=NL), vgpr=256, agpr=256, sgpr=102, grid=256, block=256, lds=163840)])

def finish_kernel(a, vm, st, stamps, dbg):
    a(f"""s_cmp_eq_u32 {sB}, 0
    s_cselect_b32 s4, {sW}, 1
    s_cmp_eq_u32 s4, 0
    s_cbranch_scc0 L_noep
    v_mov_b32 v4, {sTAG}
    s_mov_b32 s4, {EPOCH}
    s_mov_b64 exec, 1
    buffer_store_dword v4, off, {SWS}, s4 sc1
    s_mov_b64 exec, -1
    L_noep:""")
    if stamps: vm.drain()
    st(21, "end")
    stamp_flush(a, 0, 64, stamps)
    if dbg:
        a(f"""s_cmp_eq_u32 {sB}, {dbg[0]}
        s_cselect_b32 s4, {sW}, 1
        s_cmp_eq_u32 s4, 0
        s_cbranch_scc0 L_nodbg
        s_load_dwordx2 s[72:73], s[0:1], 80
        s_mov_b32 s74, 256
        s_mov_b32 s75, 0x20000
        v_readlane_b32 s4, v0, 0
        s_waitcnt lgkmcnt(0)""")
        for n, k in enumerate(dbg[1]):
            a(f"v_readlane_b32 s5, v0, {k}\ns_sub_u32 s5, s5, s4\nv_mov_b32 v4, s5\ns_mov_b32 s6, {4*n}\ns_mov_b64 exec, 1\nbuffer_store_dword v4, off, s[72:75], s6\ns_mov_b64 exec, -1")
        a("L_nodbg:")
    a("L_end:\ns_endpgm")

if __name__ == "__main__":
    if len(sys.argv) > 2:
        open(sys.argv[1], "w").write(build(True, (int(sys.argv[2]), [int(x) for x in sys.argv[3].split(",")])))
    else:
        open(sys.argv[1], "w").write(build())
```

```python
import re, copy
KNAME = "adaLN_cond__sliding_local_dilated__glu_gated_glu__prompt_kernel"

REG_RE = re.compile(r'^(-?)(?:abs\()?([vas])(?:\[(\d+):(\d+)\]|(\d+))\)?$')

def regs_of(tok):
    tok = tok.strip()
    neg = tok.lstrip('-').strip('|')
    if neg in ('vcc', 'vcc_lo', 'vcc_hi'): return [('s', 'vcc')]
    if neg in ('exec', 'exec_lo', 'exec_hi'): return [('s', 'exec')]
    if neg == 'm0': return [('s', 'm0')]
    m = REG_RE.match(tok)
    if not m: return []
    k = m.group(2)
    if m.group(3) is not None:
        return [(k, i) for i in range(int(m.group(3)), int(m.group(4)) + 1)]
    return [(k, int(m.group(5)))]

TRANS = ('v_exp_f32', 'v_log_f32', 'v_rcp_f32', 'v_rsq_f32', 'v_sqrt_f32', 'v_sin_f32', 'v_cos_f32', 'v_rcp_iflag_f32')

class Ins:
    __slots__ = ('text', 'op', 'dst', 'src', 'kind', 'ops', 'mods', 'nstates', 'srcC', 'srcAB', 'passes', 'sdata', 'vmem_addr_s', 'dpp', 'lds_dma')
    def __init__(self, text):
        self.text = text
        t = text.split(';')[0].strip()
        self.dst = []; self.src = []; self.kind = 'other'; self.nstates = 1
        self.srcC = []; self.srcAB = []; self.passes = 0; self.sdata = []; self.dpp = False; self.lds_dma = False
        self.ops = []; self.mods = ''
        if not t:
            self.op = ''; self.kind = 'pseudo'; self.nstates = 0; return
        if t.endswith(':'):
            self.op = t; self.kind = 'label'; self.nstates = 0; return
        if t.startswith('.'):
            self.op = t; self.kind = 'directive'; self.nstates = 0; return
        sp = t.split(None, 1)
        op = sp[0]; rest = sp[1] if len(sp) > 1 else ''
        base = re.sub(r'_(e32|e64|dpp|sdwa)$', '', op)
        self.op = base
        parts = []; depth = 0; cur = ''
        for ch in rest:
            if ch in '[(': depth += 1
            if ch in '])': depth -= 1
            if ch == ',' and depth == 0:
                parts.append(cur.strip()); cur = ''
            else: cur += ch
        if cur.strip(): parts.append(cur.strip())
        if parts:
            last = parts[-1].split(None, 1)
            parts[-1] = last[0]
            self.mods = last[1] if len(last) > 1 else ''
        self.ops = parts
        R = [regs_of(p) for p in parts]
        flat = lambda L: [r for x in L for r in x]
        self.dpp = op.endswith('_dpp') or 'row_' in self.mods or 'quad_perm' in self.mods
        if base.startswith('v_mfma'):
            self.kind = 'mfma'
            self.dst = R[0]; self.srcAB = R[1] + R[2]; self.srcC = R[3]; self.src = self.srcAB + self.srcC
            self.passes = 8 if '32x32x16' in base else 4 if '16x16x32' in base else None
            assert self.passes, text
        elif base.startswith('v_'):
            self.kind = 'trans' if base in TRANS else 'valu'
            if base.startswith('v_cmp'):
                self.dst = R[0]; self.src = flat(R[1:])
                assert not base.startswith('v_cmpx')
            elif base in ('v_permlane16_swap_b32', 'v_permlane32_swap_b32', 'v_swap_b32'):
                self.dst = R[0] + R[1]; self.src = R[0] + R[1]
            elif base in ('v_add_co_u32', 'v_sub_co_u32', 'v_subrev_co_u32', 'v_addc_co_u32', 'v_subb_co_u32', 'v_mad_u64_u32'):
                self.dst = R[0] + R[1]; self.src = flat(R[2:])
            elif base in ('v_fmac_f32', 'v_dot2c_f32_bf16', 'v_pk_fmac_f16', 'v_fmac_f32_dpp'):
                self.dst = R[0]; self.src = flat(R)
            elif base == 'v_nop':
                pass
            else:
                self.dst = R[0]; self.src = flat(R[1:])
                if self.dpp: self.src = flat(R)
            if base == 'v_cndmask_b32' and len(parts) == 3: self.src.append(('s', 'vcc'))
        elif base.startswith('ds_'):
            self.kind = 'ds'
            if base.startswith('ds_read') or base.startswith('ds_bpermute') or base.startswith('ds_permute') or base.startswith('ds_swizzle'):
                self.dst = R[0]; self.src = flat(R[1:])
            else:
                self.src = flat(R); self.sdata = flat(R[1:])
        elif base.startswith('buffer_') or base.startswith('global_'):
            self.kind = 'vmem'
            words = (self.mods + ' ').split()
            if base in ('buffer_wbl2', 'buffer_inv'):
                pass
            elif 'lds' in words or '_lds_' in base:
                self.lds_dma = True; self.src = flat(R) + [('s', 'm0')]
            elif '_load' in base:
                self.dst = R[0]; self.src = flat(R[1:])
                if 'd16' in base: self.src = flat(R)
            elif '_store' in base:
                self.src = flat(R)
                self.sdata = R[0] if base.startswith('buffer_') else R[1]
            elif 'atomic' in base:
                if base.startswith('buffer_'):
                    self.src = flat(R); self.sdata = R[0]
                    if 'sc0' in words: self.dst = R[0]
                else:
                    if 'sc0' in words: self.dst = R[0]; self.src = flat(R[1:])
                    else: self.src = flat(R)
            else:
                raise ValueError(text)
        elif base.startswith('s_load') or base.startswith('s_buffer_load') or base in ('s_memtime', 's_memrealtime'):
            self.kind = 'smem'; self.dst = R[0]; self.src = flat(R[1:])
        elif base == 's_nop':
            self.kind = 'nop'; self.nstates = int(parts[0], 0) + 1
        elif base == 's_waitcnt':
            self.kind = 'wait'
        elif base.startswith('s_cbranch') or base == 's_branch':
            self.kind = 'branch'
            if 'vcc' in base: self.src = [('s', 'vcc')]
            if 'exec' in base: self.src = [('s', 'exec')]
        elif base in ('s_barrier', 's_endpgm', 's_sleep', 's_setprio'):
            self.kind = 'misc'
        elif base.startswith('s_cmp') or base.startswith('s_bitcmp'):
            self.kind = 'salu'; self.src = flat(R)
        elif base.startswith('s_'):
            self.kind = 'salu'
            self.dst = list(R[0]) if R else []; self.src = flat(R[1:])
            if 'saveexec' in base: self.dst = self.dst + [('s', 'exec')]; self.src.append(('s', 'exec'))
            if base in ('s_addk_i32', 's_mulk_i32', 's_cmov_b32'): self.src += R[0]
        else:
            raise ValueError("unknown instruction: " + text)

def ov(a, b):
    return not set(a).isdisjoint(b)

def need(p, c):
    n = 0
    pv = p.kind in ('valu', 'trans')
    cv = c.kind in ('valu', 'trans')
    if pv:
        vd = [r for r in p.dst if r[0] in 'va']
        sd = [r for r in p.dst if r[0] == 's']
        if vd:
            if c.kind == 'mfma' and ov(vd, c.src): n = max(n, 2)
            if c.op in ('v_readlane_b32', 'v_readfirstlane_b32') and ov(vd, c.src): n = max(n, 1)
            if cv and c.dpp and ov(vd, c.src): n = max(n, 2)
            if c.op.startswith('v_permlane') and ov(vd, c.src): n = max(n, 2)
            if p.kind == 'trans' and c.kind == 'valu' and ov(vd, c.src): n = max(n, 1)
            if p.kind == 'trans' and c.kind in ('ds', 'vmem') and ov(vd, c.src): n = max(n, 1)
            if 'op_sel' in p.mods and not p.op.startswith('v_pk') and cv and ov(vd, c.src + c.dst): n = max(n, 1)
        if sd:
            if cv and ov(sd, c.src):
                n = max(n, 4 if c.op in ('v_readlane_b32', 'v_writelane_b32') else 2)
            if c.kind == 'vmem' and ov(sd, c.src): n = max(n, 5)
            if c.kind in ('salu', 'smem', 'branch') and ov(sd, c.src): n = max(n, 3)
    if p.op.startswith('v_dot'):
        if c.op != p.op:
            if ov(p.dst, c.src + c.dst): n = max(n, 3)
        else:
            ab = regs_of(c.ops[1]) + regs_of(c.ops[2])
            if ov(p.dst, ab): n = max(n, 3)
    if p.kind == 'mfma':
        P = p.passes
        if c.kind == 'mfma':
            if ov(p.dst, c.srcAB): n = max(n, {4: 8, 8: 12}[P])
            if ov(p.dst, c.srcC) and not (p.dst == c.srcC and P == c.passes): n = max(n, {4: 6, 8: 10}[P])
            if ov(p.dst, c.dst) and not ov(p.dst, c.srcC): n = max(n, {4: 8, 8: 12}[P])
        elif cv:
            if ov(p.dst, c.src + c.dst): n = max(n, {4: 8, 8: 12}[P])
            if ov(p.srcC, c.dst): n = max(n, {4: 3, 8: 7}[P])
        elif c.kind in ('ds', 'vmem'):
            if ov(p.dst, c.src + c.dst): n = max(n, {4: 8, 8: 12}[P])
    if p.kind == 'salu' and ('s', 'm0') in p.dst and c.lds_dma: n = max(n, 1)
    if p.kind == 'salu' and ('s', 'exec') in p.dst and (c.dpp or c.kind == 'mfma' or c.op.startswith('v_permlane')): n = max(n, 1)
    if p.kind in ('vmem', 'ds') and len(p.sdata) >= 3 and ov(p.sdata, c.dst):
        n = max(n, 2)
    return n

class State:
    def __init__(self):
        self.recent = []
        self.vm = []
        self.lg = []
    def clone(self):
        s = State(); s.recent = list(self.recent); s.vm = list(self.vm); s.lg = list(self.lg); return s

class Asm:
    def __init__(self, check=True):
        self.ins = []
        self.uid = 0
        self.check = check
    def __call__(self, s):
        for l in s.split("\n"):
            l = l.strip()
            if l: self.ins.append(l)
    def label(self, base):
        self.uid += 1
        return f"{base}_{self.uid}"
    def finish(self):
        out = []; st = State(); saved = {}; nnop = 0
        errs = []
        for li, l in enumerate(self.ins):
            if l.startswith(';@'):
                w = l[2:].split()
                if w[0] == 'fork': saved[w[1]] = st.clone()
                elif w[0] == 'restore':
                    saved[w[1] + '_end'] = st.clone(); st = saved[w[1]].clone()
                elif w[0] == 'join':
                    o = saved[w[1] + '_end']
                    if len(o.vm) != len(st.vm) or len(o.lg) != len(st.lg):
                        errs.append(f"join {w[1]}: counters differ vm {len(o.vm)} vs {len(st.vm)} lg {len(o.lg)} vs {len(st.lg)}")
                    n = min(len(o.vm), len(st.vm))
                    st.vm = [(a[0], a[1] + b[1]) for a, b in zip(o.vm[len(o.vm)-n:], st.vm[len(st.vm)-n:])]
                    n = min(len(o.lg), len(st.lg))
                    st.lg = [(a[0], a[1] + b[1]) for a, b in zip(o.lg[len(o.lg)-n:], st.lg[len(st.lg)-n:])]
                    st.recent = st.recent + o.recent
                elif w[0] == 'drained':
                    if st.vm or st.lg: errs.append(f"{l}: outstanding vm {len(st.vm)} lg {len(st.lg)}")
                elif w[0] == 'assume_drained':
                    st.vm = []; st.lg = []
                elif w[0] == 'assume_drained_lg':
                    st.lg = []
                elif w[0] in ('mark', 'touch'):
                    out.append(l)
                continue
            c = Ins(l)
            if c.kind in ('pseudo', 'label', 'directive'):
                out.append(l); continue
            req = 0
            for p, d in st.recent:
                k = need(p, c) - d
                if k > req: req = k
            if req > 0:
                nnop += 1
                out.append(f"s_nop {req-1}")
                st.recent = [(p, d + req) for p, d in st.recent]
            touched = set(c.src) | set(c.dst)
            if self.check:
                for q, nm in ((st.vm, 'vm'), (st.lg, 'lg')):
                    for t, regs in q:
                        if regs and not touched.isdisjoint(regs):
                            if nm == 'vm' and c.kind == 'vmem' and touched.isdisjoint(set(regs) - set(c.dst)) and set(c.src).isdisjoint(regs):
                                continue
                            if nm == 'lg' and c.kind == 'ds' and not t.startswith('s_') and set(c.src).isdisjoint(regs):
                                continue
                            errs.append(f"line {li}: '{l}' touches registers of pending {nm} op '{t}'")
            if c.kind == 'vmem':
                if '@uncounted' not in l: st.vm.append((l, list(c.dst)))
            elif c.kind == 'ds': st.lg.append((l, list(c.dst)))
            elif c.kind == 'smem': st.lg.append((l, list(c.dst)))
            elif c.kind == 'wait':
                m = re.search(r'vmcnt\((\d+)\)', l)
                if m:
                    n = int(m.group(1)); assert n <= 63, l
                    while len(st.vm) > n: st.vm.pop(0)
                m = re.search(r'lgkmcnt\((\d+)\)', l)
                if m:
                    n = int(m.group(1)); assert n <= 15, l
                    if n > 0 and any(t.startswith('s_') for t, _ in st.lg):
                        errs.append(f"line {li}: counted lgkmcnt with SMEM outstanding")
                    while len(st.lg) > n: st.lg.pop(0)
            out.append(l)
            st.recent = [(p, d + c.nstates) for p, d in st.recent if d + c.nstates < 20]
            st.recent.append((c, 0))
        if errs:
            raise RuntimeError("checker:\n" + "\n".join(errs[:30]))
        self.nnop = nnop
        return "\n".join(("" if x.endswith(":") else "    ") + x for x in out) + "\n"

def insn_sizes(body):
    import subprocess, tempfile, os
    d = tempfile.mkdtemp()
    open(d + "/a.s", "w").write('.amdgcn_target "amdgcn-amd-amdhsa--gfx950"\n.text\nk:\n' + body)
    subprocess.run(["clang", "-x", "assembler", "-target", "amdgcn-amd-amdhsa", "-mcpu=gfx950", "-c", d + "/a.s", "-o", d + "/a.o"], check=True)
    out = subprocess.run(["llvm-objdump", "-d", "--mcpu=gfx950", d + "/a.o"], capture_output=True, text=True).stdout
    sizes = []
    for l in out.split("\n"):
        if "//" in l and ":" in l.split("//")[1]:
            sizes.append(4 * len(l.split("//")[1].split(":")[1].split("<")[0].split()))
    return sizes

PROMOTE = ('v_mov_b32', 'v_add_f32', 'v_mul_f32', 'v_sub_f32', 'v_max_f32', 'v_min_f32', 'v_exp_f32', 'v_rcp_f32', 'v_sqrt_f32', 'v_and_b32', 'v_or_b32', 'v_xor_b32',
           'v_lshlrev_b32', 'v_lshrrev_b32', 'v_add_u32', 'v_sub_u32', 'v_subrev_u32', 'v_mul_u32_u24', 'v_min_u32', 'v_max_i32', 'v_cndmask_b32', 'v_fmac_f32')
def align8(body, stub_phase=None, wave_reg="s68", nl=1):
    lines = body.split("\n")
    exp = []
    for l in lines:
        t = l.strip()
        if t.startswith(';@touch'):
            _, lo, hi = t.split()[:3]
            skip = int(t.split()[3]) if len(t.split()) > 3 else -1
            n = f"{lo}_{hi}"
            exp.append("    s_mov_b64 exec, 0")
            for w in range(3):
                exp.append(f"    s_cmp_eq_u32 {wave_reg}, {w}"); exp.append(f"    s_cbranch_scc1 L_tch_{n}_{w}")
            exp.append(f"    s_branch L_tch_{n}_3")
            exp.append(f"L_tchret_{n}:"); exp.append("    s_mov_b64 exec, -1")
            exp.append(f";@touchdef {lo} {hi} {skip}")
        else: exp.append(l)
    lines = exp
    probe = "\n".join(re.sub(r'L_tch_(\w+)_(\d)$', r'L_tchret_\1', l) for l in lines if not l.strip().startswith('.p2align 12'))
    sizes = insn_sizes(probe)
    out = []; off = 0; k = 0; last = None; nxt = stub_phase
    stubs = []; marks = {}; touches = []
    prev_scc = False; page = 0; line = 0
    for l in lines:
        t = l.split(';')[0].strip()
        if l.strip().startswith(';@mark'): marks[l.split()[1]] = len(stubs)
        if l.strip().startswith(';@touchdef'): touches.append(l.split()[1:4])
        if t.startswith('.p2align 12'):
            out.append(l); off = 0; last = None; nxt = 4096 if stub_phase is not None else None; line = 0
            while k < len(sizes) and sizes[k] < 0: k += 1
            continue
        if not t or t.endswith(':') or t.startswith('.'):
            out.append(l)
            if t.endswith(':'): last = None
            continue
        sz = sizes[k]; k += 1
        if nxt is not None and off >= nxt and not prev_scc:
            stubs.append(page); out.append(f"L_stub_{len(stubs)-1}:"); out.append("@STUB"); off += 4; last = None
            line = (off - 4096*(page + 1)) // 64 + 1
            if line >= nl: page += 1; nxt = 4096*(page + 1); line = 0
            else: nxt = 4096*(page + 1) + 64*line
        if sz == 8 and off % 8 == 4 and t.startswith(('v_', 'ds_', 'buffer_')):
            op = out[last].split(';')[0].split()[0] if last is not None else ''
            if op in PROMOTE and lastsz == 4:
                out[last] = out[last].replace(op, op + '_e64', 1)
            else:
                out.append("    s_nop 0")
            off += 4
        out.append(l); last = len(out) - 1; lastsz = sz; off += sz
    assert k == len(sizes), (k, len(sizes))
    target = {}; first = {}
    for lo, hi, skip in touches:
        ids = list(range(marks[lo], marks[hi])); n = f"{lo}_{hi}"
        pages = sorted(set(stubs[x] for x in ids))
        ws = [w for w in range(4) if w != int(skip)]
        for w in range(4):
            ch = [x for x in ids if w in ws and pages.index(stubs[x]) % len(ws) == ws.index(w)]
            first[f"L_tch_{n}_{w}"] = f"L_stub_{ch[0]}" if ch else f"L_tchret_{n}"
            for a_, b_ in zip(ch, ch[1:] + [None]): target[a_] = f"L_stub_{b_}" if b_ is not None else f"L_tchret_{n}"
    res = []; si = 0
    for l in out:
        if l == "@STUB":
            res.append(f"    s_cbranch_execz {target[si]}" if si in target else "    s_nop 0"); si += 1
        elif l.strip().startswith(';@'): continue
        else:
            m = re.search(r'(L_tch_\w+)$', l)
            res.append(l.replace(m.group(1), first[m.group(1)]) if m else l)
    return "\n".join(res)

def file_text(header, kernels):
    out = header
    if len(kernels) == 1 and kernels[0]['name'] == KNAME:
        k = kernels[0]
        out += f"; @launch grid=({k['grid']},1,1) block=({k['block']},1,1) lds={k['lds']}\n"
    else:
        for k in kernels:
            out += f"; @launch kernel={k['name']} grid=({k['grid']},1,1) block=({k['block']},1,1) lds={k['lds']}\n"
    out += '.amdgcn_target "amdgcn-amd-amdhsa--gfx950"\n.text\n'
    seen = set(); descs = ""
    for k in kernels:
        if k['name'] in seen: continue
        seen.add(k['name'])
        name = k['name']
        acc = (k['vgpr'] + 3) // 4 * 4
        nfv = acc + k['agpr'] if k['agpr'] else k['vgpr']
        out += f".globl {name}\n.p2align 8\n.type {name},@function\n{name}:\n{k['body']}"
        descs += f""".section .rodata,"a"
.p2align 6
.amdhsa_kernel {name}
  .amdhsa_next_free_vgpr {nfv}
  .amdhsa_next_free_sgpr {k.get('sgpr', 102)}
  .amdhsa_accum_offset {acc}
  .amdhsa_group_segment_fixed_size 0
  .amdhsa_kernarg_size 96
  .amdhsa_user_sgpr_count 2
  .amdhsa_user_sgpr_kernarg_segment_ptr 1
  .amdhsa_system_sgpr_workgroup_id_x 1
  .amdhsa_float_denorm_mode_32 3
.end_amdhsa_kernel
"""
    return out + descs
```

```python
import sys
from gen_common import *
from gen_k0 import tr_addr, dma_chunk
import gen_p1 as P1
import gen_p2 as P2
from gen_p1 import HRT, TILES, wfrag, sMSK
from gen_v2 import (map1, vmem_poll, flag_store, unpack, norm, modfma, pack, loads_mod, mod_compute, poll_mod,
                    rec_fillers, rec_write, interleave, wo_dma_fillers, p2_gemm, ACC1, BB1, R1, R2,
                    MODT, EPOCH, F_O, F_X, F_W, F_M, sTAG, SC1, POLL_MAX, OOB)
import gen_v2 as V2

F_S = FLAGS + 0x20000
F_P = FLAGS + 0x80000
SLOT = [98304, 122880, 0, 24576, 49152, 73728]
ST1, MZ, WOSTG, MV1 = 147456, 150528, 151552, 157696
HH = 73728
ST2, MV2, SZ = HH, HH + 4096, 147456
RING = 26
DIAG = None
X_NOGLU = False
X_NOSTORE = False
X_ORDER = 0
X_NOMFMA = 0
NPRE = 12
V2.WOSTG = WOSTG

class L:
    def __init__(self): self.l = []
    def __call__(self, s):
        for x in s.split("\n"):
            if x.strip(): self.l.append(x.strip())

def wslot(s): return SLOT[s % 6] if s < 12 else SLOT[s % 2]

def smem_poll8(a, name, soff, wave=1):
    a(f"""s_cmp_eq_u32 {sW}, {wave}
    s_cbranch_scc0 L_{name}_skip
    s_mov_b32 s89, 0
    s_add_u32 s86, s64, {soff}
    s_addc_u32 s87, s65, 0
    L_{name}:
    s_load_dwordx8 s[52:59], s[86:87], 0 glc
    s_add_u32 s89, s89, 1
    s_cmp_gt_u32 s89, {POLL_MAX}
    s_cbranch_scc1 L_{name}_to
    s_waitcnt lgkmcnt(0)""")
    for k in range(8): a(f"s_xor_b32 s{52+k}, s{52+k}, {sTAG}")
    for st in (1, 2, 4):
        for k in range(0, 8, 2*st): a(f"s_or_b32 s{52+k}, s{52+k}, s{52+k+st}")
    a(f"s_cbranch_scc1 L_{name}\nL_{name}_to:\ns_waitcnt lgkmcnt(0)\nL_{name}_skip:")

def x_dma(a, vm):
    a(f"""v_lshrrev_b32 v4, 3, {vL}
    v_mul_u32_u24 v8, 1152, v4
    v_lshrrev_b32 v4, 4, {vL}
    s_and_b32 s4, {sW}, 1
    s_lshl_b32 s4, s4, 2
    v_or_b32 v4, s4, v4
    v_and_b32 v5, 7, {vL}
    v_xor_b32 v4, v4, v5
    v_lshl_add_u32 v8, v4, 4, v8
    s_mul_i32 s5, {sI}, {64*1152}
    s_mul_i32 s6, {sW}, {8*1152}
    s_add_u32 s5, s5, s6
    s_sub_u32 s7, s5, {16*1152}
    s_cmp_lt_u32 {sW}, 2
    s_cselect_b32 s8, {sI}, 1
    s_cmp_eq_u32 s8, 0
    s_cselect_b32 s7, s6, s7
    s_mul_i32 s9, {sW}, 9216
    s_add_u32 s5, s5, {2*8*1152}""")
    for g in range(3):
        if g == 2: a(f"s_cmp_lt_u32 {sW}, 2\ns_cbranch_scc0 L_x2")
        for line in range(9):
            base = "s7" if g == 0 else "s5"
            a(f"s_add_u32 m0, s9, {g*4*9216 + line*1024}\ns_add_u32 s6, {base}, {(g-1)*4*9216 + line*128 if g else line*128}")
            a(f"buffer_load_dwordx4 v8, {SX}, s6 offen lds")
    a("L_x2:")

def loads_mod3(a):
    a(f"""s_cmp_lt_u32 {sB}, 54
    s_cbranch_scc0 L_nomod1
    s_mul_i32 s4, {sW}, 144
    v_lshrrev_b32 v4, 3, {vL}
    v_mul_u32_u24 v4, 18, v4
    v_add_u32 v16, s4, v4
    v_lshlrev_b32 v17, 1, v16
    v_mul_u32_u24 v16, 6912, v16
    v_and_b32 v4, 7, {vL}
    v_lshl_add_u32 v16, v4, 4, v16
    s_lshl_b32 s5, {sB}, 7
    v_add_u32 v16, s5, v16
    buffer_load_dwordx4 v[232:235], v17, {SC}, 0 offen
    buffer_load_dwordx4 v[236:239], v17, {SC}, 0 offen offset:16
    buffer_load_dword v240, v17, {SC}, 0 offen offset:32""")
    for t in range(18):
        a(f"s_mov_b32 s4, {6912*t}\nbuffer_load_dwordx4 {vr(48+4*t)}, v16, {SMOD}, s4 offen")
    a("L_nomod1:")

def mod_compute3(a):
    t = Asm(); mod_compute(t)
    for l in t.ins:
        if l.startswith("v_lshlrev_b32 v") and l.split()[1].rstrip(',') in [f"v{24+k}" for k in range(18)] and l.split()[2] == "16," and l.split()[1].rstrip(',') == l.split()[3]:
            k = int(l.split()[1].rstrip(',')[1:]) - 24
            l = f"v_lshlrev_b32 v{24+k}, 16, v{232 + k//2}" if k % 2 == 0 else f"v_and_b32 v{24+k}, 0xffff0000, v{232 + k//2}"
        l = l.replace("s_waitcnt vmcnt(57)", "s_waitcnt vmcnt(18)").replace("s_add_u32 s4, s4, 4096", f"s_add_u32 s4, s4, {MZ}").replace("v_add_u32 v5, 4096, v4", f"v_add_u32 v5, {MZ}, v4")
        a(l)

def w_prefetch(a):
    a(f"""s_and_b32 s4, {sI}, 7
    s_mul_i32 s4, s4, 48
    s_mul_i32 s5, {sW}, 12
    s_add_u32 s4, s4, s5
    s_add_u32 s4, s4, 192
    v_lshrrev_b32 v4, 3, {vL}
    v_and_b32 v5, 7, {vL}
    v_min_u32 v5, 5, v5
    v_lshrrev_b32 v6, 1, v5
    v_mul_u32_u24 v6, 1152, v6
    v_and_b32 v5, 1, v5
    v_lshl_add_u32 v6, v5, 7, v6
    s_mul_i32 s5, {sJ}, 144
    s_and_b32 s5, s5, 0xffffff80
    v_add_u32 v6, s5, v6
    v_add_u32 v5, s4, v4
    v_mul_u32_u24 v5, 3456, v5
    v_add_u32 v5, v5, v6
    v_and_b32 v4, 3, v4
    v_add3_u32 v4, v4, s4, 8
    v_mul_u32_u24 v4, 3456, v4
    v_add_u32 v4, v4, v6""")
    return [f"buffer_load_dword v254, v5, {SQKV}, 0 offen", f"buffer_load_dword v255, v4, {SQKV}, 0 offen"]

def weave(a, lines, ops, emit_op, start=0):
    ok = []; cond = False; scc = False
    for i, l in enumerate(lines):
        if l.startswith('s_cbranch'): cond = True
        if l.endswith(':'): cond = False
        if l.startswith('s_cmp'): scc = True
        elif scc and not l.startswith(('s_cselect', 's_mov', 's_movk')): scc = False
        good = not cond and not scc and l.startswith(('v_', 'ds_')) and i >= start and not (i + 1 < len(lines) and lines[i+1].startswith('s_mov_b64 exec, -1')) and not l.startswith('ds_write_b64 v5')
        if good: ok.append(i)
    pos = {}
    for n, o in enumerate(ops):
        pos.setdefault(ok[min(len(ok)-1, (n * len(ok)) // len(ops))], []).append(o)
    for i, l in enumerate(lines):
        a(l)
        for o in pos.get(i, []): emit_op(o)

def lines_of(f, *args):
    t = Asm(); f(t, *args); return t.ins

def w_setup(a):
    a(f"""v_lshrrev_b32 v4, 4, {vL}
    s_and_b32 s4, {sW}, 1
    s_lshl_b32 s4, s4, 2
    v_or_b32 v5, s4, v4
    v_lshlrev_b32 v5, 1, v5
    v_and_b32 v6, 15, {vL}
    v_xor_b32 v5, v5, v6
    v_mul_u32_u24 v9, 3456, v4
    v_lshl_add_u32 v9, v5, 4, v9
    s_mul_i32 s4, {sJ}, 144
    s_and_b32 s4, s4, 0xffffff80
    s_mul_i32 s5, {sW}, {8*3456}
    s_add_u32 s4, s4, s5
    v_add_u32 v9, s4, v9
    s_lshl_b32 s84, {sW}, 11""")

def w_dma_ops(s):
    ops = []
    for seg in range(3):
        for h in range(2):
            ops.append(f"s_add_u32 m0, s84, {wslot(s) + seg*8192 + h*1024}\ns_mov_b32 s4, {s*110592 + h*4*3456 + seg*1152}\nbuffer_load_dwordx4 v9, {SQKV}, s4 offen lds")
    return ops
def w_dma(a, vm, s):
    for o in w_dma_ops(s): vm.issue(o, f'W{s}')
def w_tr_ops(s):
    ops = []
    sl = wslot(s); hi = sl >= 73728
    for tau in range(4):
        f = wfrag(tau, s); k = f[0]; b = int(f[2:f.index(':')])
        for hf in range(2):
            ops.append(f"ds_read_b64_tr_b16 {k}[{b+2*hf}:{b+2*hf+1}], v{10 + tau + 4*hi} offset:{sl - 73728*hi + 1024*hf}")
    return ops

def tr_setup(a):
    def ent(T, h):
        cc8 = 2*T + h
        if cc8 >= 27: cc8 = 2*T if 2*T < 27 else 0
        seg, r = divmod(cc8, 9)
        return [1, 2, 0][seg]*16 + r
    tabs = []
    for w in range(4):
        e = []
        for T in TILES[w] + [0]*(4-len(TILES[w])): e += [ent(T, 0), ent(T, 1)]
        tabs.append((e[0] | e[2] << 8 | e[4] << 16 | e[6] << 24, e[1] | e[3] << 8 | e[5] << 16 | e[7] << 24))
    a(f"s_mov_b32 s4, {tabs[0][0]}\ns_mov_b32 s5, {tabs[0][1]}")
    for w in range(1, 4):
        a(f"s_cmp_eq_u32 {sW}, {w}\ns_cselect_b32 s4, {tabs[w][0]}, s4\ns_cselect_b32 s5, {tabs[w][1]}, s5")
    a(f"""v_mov_b32 v4, s4
    v_mov_b32 v5, s5
    v_and_b32 v6, 2, {vN}
    v_cmp_eq_u32 vcc, 0, v6
    v_cndmask_b32 v18, v5, v4, vcc
    v_lshrrev_b32 v6, 2, {vN}
    v_and_b32 v7, 1, {vQ}
    v_lshl_or_b32 v7, v7, 2, v6
    v_lshlrev_b32 v19, 1, v7
    v_lshl_add_u32 v6, {vQ}, 3, v6
    v_lshlrev_b32 v6, 8, v6
    v_and_b32 v7, 1, {vN}
    v_lshl_or_b32 v20, v7, 3, v6""")
    for tau in range(4):
        a(f"""v_bfe_u32 v4, v18, {8*tau}, 4
        v_bfe_u32 v5, v18, {8*tau+4}, 2
        v_add_u32 v4, {sJ}, v4
        v_xor_b32 v4, v4, v19
        v_lshl_add_u32 v4, v4, 4, v20
        v_lshl_add_u32 v{10+tau}, v5, 13, v4
        v_add_u32 v{14+tau}, 73728, v{10+tau}""")
    a(f"""s_sub_u32 s88, 3, {sW}
    s_and_b32 s4, s88, 1
    s_lshl_b32 s4, s4, 2
    v_or_b32 v4, s4, {vQ}
    v_bfe_u32 v5, {vN}, 1, 3
    v_xor_b32 v4, v4, v5
    v_lshlrev_b32 v4, 4, v4
    v_and_b32 v5, 7, {vN}
    v_lshl_or_b32 v4, v5, 7, v4
    v_lshrrev_b32 v5, 3, {vN}
    v_mul_u32_u24 v5, 9216, v5
    s_lshr_b32 s4, s88, 1
    s_lshl_b32 s4, s4, 10
    v_add3_u32 v18, v4, v5, s4
    v_add_u32 v19, {3*HRT}, v18
    v_add_u32 v22, {3*HRT}, v21
    s_lshl_b32 s4, s88, 7
    s_add_u32 s4, s4, {MV1}
    v_lshlrev_b32 v23, 5, {vQ}
    v_add_u32 v23, s4, v23""")
    P1.ln_masks(a)

def wo_dma(a):
    a(f"""s_cmp_ge_u32 {sB}, 112
    s_cselect_b32 s85, {sW}, 0
    s_cmp_eq_u32 s85, 2
    s_cbranch_scc0 L_nowo1""")
    dma_chunk(a, "v31", 0, "v4", "v5"); dma_chunk(a, "v32", 1, "v4", "v5")
    a(f"""s_sub_u32 s4, {sB}, 112
    s_mul_i32 s5, s4, 57
    s_lshr_b32 s5, s5, 10
    s_mul_i32 s6, s5, 18
    s_sub_u32 s6, s4, s6
    s_mul_i32 s7, s6, {32*1152}
    s_mul_i32 s8, s5, 144
    s_add_u32 s7, s7, s8
    s_mul_i32 s5, s5, 90
    s_add_u32 s5, s5, s6
    s_lshl_b32 s5, s5, 10
    s_add_u32 s91, s5, {WO_SW}
    v_lshrrev_b32 v4, 3, {vL}
    v_mul_u32_u24 v4, 1152, v4
    v_lshl_add_u32 v5, v32, 4, v4
    v_lshl_add_u32 v4, v31, 4, v4
    v_mul_u32_u24 v6, 1152, {vL}
    v_add_u32 v6, 128, v6
    v_mov_b32 v30, {OOB}
    v_cmp_gt_u32 vcc, 32, {vL}
    v_cndmask_b32 v6, v30, v6, vcc
    s_mov_b32 m0, {WOSTG + 4096}
    s_nop 0
    buffer_load_dwordx4 v6, {SWO}, s7 offen lds""")
    for ii in range(4):
        a(f"s_mov_b32 m0, {WOSTG + ii*1024}\ns_nop 0\nbuffer_load_dwordx4 v{4 + (ii&1)}, {SWO}, s7 offen lds")
        if ii < 3: a(f"s_add_u32 s7, s7, {8*1152}")
    a("L_nowo1:")

def wo_tr(a):
    t = Asm(); V2.wo_tr(t)
    for l in t.ins:
        a(l.replace("s_cmp_eq_u32 s85, 1", "s_cmp_eq_u32 s85, 2").replace("s_waitcnt vmcnt(32)", "s_waitcnt vmcnt(0)"))

def ln_stats_a(a, NR, raw, ones, SA, ST):
    for k in range(5):
        for r in range(NR):
            x = vr(raw(r, k))
            a(f"v_mfma_f32_16x16x32_bf16 {vr(SA+8*r)}, {vr(ones)}, {x}, {vr(SA+8*r) if k else 0}")
            a(f"v_mfma_f32_16x16x32_bf16 {vr(SA+8*r+4)}, {x}, {x}, {vr(SA+8*r+4) if k else 0}")
def ln_stats_b(a, NR, SA, ST):
    a(f"""s_mul_i32 s89, {sW}, {NR*128}
    s_add_u32 s89, s89, {ST}
    v_lshlrev_b32 v5, 3, {vN}
    v_add_u32 v6, {ST}, v5
    v_add_u32 v5, s89, v5""")
    for r in range(NR):
        b = SA + 8*r
        a(f"""v_cndmask_b32 v{b+1}, v{b+4}, v{b+5}, s[76:77]
        v_cndmask_b32 v{b+1}, v{b+1}, v{b+6}, s[78:79]
        v_cndmask_b32 v{b+1}, v{b+1}, v{b+7}, s[80:81]""")
    a("s_mov_b64 exec, s[82:83]")
    for r in range(NR): a(f"ds_write_b64 v5, {vr(SA+8*r,2)} offset:{r*128}")
    a("s_mov_b64 exec, -1")
def ln_stats_c(a, NR, RD):
    for r in range(NR):
        for w in range(4): a(f"ds_read_b64 {vr(RD+8*r+2*w,2)}, v6 offset:{(w*NR + r)*128}")
def ln_stats_d(a, NR, RD, P):
    for r in range(NR):
        b = RD + 8*r
        a(f"""v_pk_add_f32 {vr(b,2)}, {vr(b,2)}, {vr(b+2,2)}
        v_pk_add_f32 {vr(b+4,2)}, {vr(b+4,2)}, {vr(b+6,2)}
        v_pk_add_f32 {vr(b,2)}, {vr(b,2)}, {vr(b+4,2)}""")
    R = range(NR)
    m = lambda r: f"v{RD+8*r}"; q = lambda r: f"v{RD+8*r+1}"
    for r in R: a(f"v_mul_f32 {m(r)}, {fbits(1.0/576)}, {m(r)}")
    for r in R: a(f"v_mul_f32 {q(r)}, {fbits(1.0/576)}, {q(r)}")
    for r in R: a(f"v_fma_f32 {q(r)}, -{m(r)}, {m(r)}, {q(r)}")
    for r in R: a(f"v_max_f32 {q(r)}, 0, {q(r)}")
    def rnd(f):
        for r in R: a(f"v_cvt_pk_bf16_f32 {f(r)}, {f(r)}, {f(r)}")
        for r in R: a(f"v_and_b32 {f(r)}, {sMSK}, {f(r)}")
    rnd(m); rnd(q)
    for r in R: a(f"v_add_f32 {q(r)}, {fbits(1e-5)}, {q(r)}")
    rnd(q)
    for r in R: a(f"v_sqrt_f32 {q(r)}, {q(r)}")
    rnd(q)
    for r in R: a(f"v_rcp_f32 v{P+2*r}, {q(r)}")
    for r in R: a(f"v_mul_f32 v{P+2*r+1}, -{m(r)}, v{P+2*r}")

def ln_apply(a, NR, raw, P, has5, name, after=None, split=3):
    V2.mread(a, 0)
    cnt = 0
    for k in range(5):
        if k == 4: a(f"{has5}\ns_cbranch_scc0 L_{name}_e")
        if k < 4: V2.mread(a, k+1)
        for r in range(NR):
            u = 56 + 8*(cnt & 1); t = 72 + 4*(cnt & 1); cnt += 1
            unpack(a, u, raw(r, k))
            if after and k < 4: after(r, k)
            norm(a, u, P + 2*r)
            if r == 0: a(f"s_waitcnt lgkmcnt({4 if k == 0 else NR + 4 if k < 4 else NR})")
            modfma(a, u, 24 + 16*(k & 1)); pack(a, t, u)
            ad, off = ("v18", r*HRT) if r < split else ("v19", (r-split)*HRT)
            a(f"ds_write_b128 {ad}, {vr(t)} offset:{off + 4096*k}")
    a(f"s_waitcnt lgkmcnt(0)\nL_{name}_e:\n;@assume_drained_lg\ns_waitcnt lgkmcnt(0)")

def early_flags(a):
    t = Asm(); V2.early_flags(t)
    for l in t.ins: a(l.replace("s_cmp_eq_u32 s85, 1", "s_cmp_eq_u32 s85, 2"))

def qkv_gemm(a, vm, w):
    units = [(t, rt) for rt in range(5) for t in range(4) if t < 2 or rt > 0] if w < 2 else [(t, rt) for rt in range(5) for t in range(3)]
    rf, jobs = rec_fillers(w)
    misc = rf + [f"""s_and_b32 s4, {sB}, 63
        s_lshr_b32 s4, s4, 3
        s_mul_i32 s4, s4, 72
        s_add_u32 s4, s4, {F_W - 36*4}""", f"v_lshlrev_b32 v160, 2, {vL}", f"v_add_u32 v4, {F_M}, v160", "v_add_u32 v160, s4, v160",
        f"v_cmp_gt_u32 vcc, 36, {vL}", "v_cndmask_b32 v160, v160, v4, vcc"]
    plan = {0: w_tr_ops(12), 1: w_tr_ops(13), 2: [('W14', o) for o in w_dma_ops(14)], 3: [('W15', o) for o in w_dma_ops(15)],
            6: w_tr_ops(14), 7: w_tr_ops(15), 8: [('W16', o) for o in w_dma_ops(16)], 9: [('W17', o) for o in w_dma_ops(17)],
            12: w_tr_ops(16), 13: w_tr_ops(17)}
    def rd(s, rt):
        ad, off = ("v21", rt*HRT) if rt < 3 else ("v22", (rt-3)*HRT)
        return f"ds_read_b128 {vr(BB1(s, rt))}, {ad} offset:{off + s*1024}"
    for rt in range(5): a(rd(0, rt))
    for s in range(18):
        a("s_waitcnt lgkmcnt(0)")
        if s in (6, 12): vm.wait(f'W{s+9}' if s == 6 else 'W17')
        if s in (2, 6, 8, 12): a("s_barrier")
        nxt = [rd(s+1, rt) for rt in range(5)] if s < 17 else []
        here = list(plan.get(s, []))
        if s == 15: here.append(('pw', f"buffer_load_dword v7, v160, {SWS}, 0 offen sc1"))
        for n, (tau, rt) in enumerate(units):
            acc = vr(ACC1(tau, rt))
            a(f"v_mfma_f32_16x16x32_bf16 {acc}, {wfrag(tau, s)}, {vr(BB1(s, rt))}, {acc if s else 0}")
            if nxt and n % 3 == 0: a(nxt.pop(0))
            elif here:
                o = here.pop(0)
                if isinstance(o, tuple): vm.issue(o[1], o[0])
                else: a(o)
            elif misc and s < 15: a(misc.pop(0))
        assert not nxt and not here, (s, nxt, here)
    assert not misc
    return jobs

FREG = ['s10', 's93', 's94', 's95']
def slot_decode(k):
    c = L()
    c(f"""s_lshr_b32 s22, {sB}, 3
    s_lshl_b32 s22, s22, 2
    s_add_u32 s22, s22, {sW}
    s_and_b32 s23, {sB}, 7
    s_lshl_b32 s24, s23, 5
    s_lshr_b32 s25, {sB}, 3
    s_add_u32 s24, s24, s25
    s_lshl_b32 s24, s24, 7
    s_add_u32 {FREG[k]}, s24, {F_S + k*32768}""")
    if k < 3:
        c(f"""s_mul_i32 s24, s22, 57
        s_lshr_b32 s24, s24, 11
        s_mul_i32 s25, s24, 36
        s_sub_u32 s25, s22, s25
        s_add_u32 s24, s24, {3*k}
        s_cmp_ge_u32 s25, 18
        s_cselect_b32 s26, 18, 0
        s_cselect_b32 s72, s44, s40
        s_cselect_b32 s73, s45, s41
        s_cselect_b32 s27, 1024, 0
        s_sub_u32 s25, s25, s26
        s_mul_i32 s5, s25, {32*9216}
        s_mul_i32 s26, s23, 1152
        s_add_u32 s5, s5, s26
        s_lshl_b32 s26, s24, 7
        s_add_u32 s5, s5, s26
        s_mul_i32 s6, s23, 36
        s_lshl_b32 s26, s24, 2
        s_add_u32 s6, s6, s26
        s_mul_i32 s6, s6, 18
        s_add_u32 s6, s6, s25
        s_lshl_b32 s6, s6, 11
        s_add_u32 s6, s6, s27
        s_add_u32 s6, s6, {WGU_SW}""")
    c(f"s_mov_b32 s74, {D*F*2}\ns_mov_b32 s75, 0x20000")
    if k > 0:
        off = {1: -108, 2: -88, 3: 40}[k]
        c(f"""s_add_i32 s24, s22, {off}
        s_mul_i32 s25, s24, 57
        s_lshr_b32 s25, s25, 9
        s_mul_i32 s26, s25, 9
        s_sub_u32 s24, s24, s26
        s_mul_i32 s11, s23, {576*1152}
        s_mul_i32 s26, s25, {32*1152}
        s_add_u32 s11, s11, s26
        s_lshl_b32 s26, s24, 7
        s_add_u32 s11, s11, s26
        s_mul_i32 s12, s23, 36
        s_lshl_b32 s26, s24, 2
        s_add_u32 s12, s12, s26
        s_mul_i32 s12, s12, 18
        s_add_u32 s12, s12, s25
        s_lshl_b32 s12, s12, 10
        s_add_u32 s12, s12, {WD_SW}""")
    if k == 0:
        c(f"""s_mov_b32 s7, 36864
        s_movk_i32 s8, 9216
        s_mov_b32 s9, 0
        s_cmp_ge_u32 s22, 108
        s_cselect_b32 s74, 0, s74
        s_cselect_b32 s6, 0x7ff00000, s6""")
    elif k < 3:
        c(f"""s_cmp_ge_u32 s22, 108
        s_cselect_b32 s9, 1, 0
        s_cselect_b32 s5, s11, s5
        s_cselect_b32 s6, s12, s6
        s_cselect_b32 s72, s48, s72
        s_cselect_b32 s73, s49, s73
        s_mov_b32 s7, 36864
        s_cselect_b32 s7, 18432, s7
        s_movk_i32 s8, 9216
        s_cselect_b32 s8, 1152, s8""")
    else:
        c(f"""s_mov_b32 s9, 1
        s_mov_b32 s5, s11
        s_mov_b32 s72, s48
        s_mov_b32 s73, s49
        s_mov_b32 s7, 18432
        s_movk_i32 s8, 1152
        s_cmp_ge_u32 s22, 122
        s_cselect_b32 s74, 0, s74
        s_cselect_b32 s6, 0x7ff00000, s12""")
    return c.l

def group_scc(lines):
    out = []; i = 0
    while i < len(lines):
        g = [lines[i]]
        if lines[i].startswith('s_cmp'):
            j = i + 1
            while j < len(lines) and lines[j].startswith(('s_cselect', 's_mov')):
                g.append(lines[j]); j += 1
            i = j
        else: i += 1
        out.append("\n".join(g))
    return out

def slot_dma(zone, A):
    c = L()
    dma_chunk(c, f"v{A}", 0, "v4", "v5"); dma_chunk(c, f"v{A+1}", 1, "v4", "v5")
    c(f"""v_lshrrev_b32 v4, 3, {vL}
    v_mul_u32_u24 v4, s8, v4
    v_lshl_add_u32 v{A}, v{A}, 4, v4
    v_lshl_add_u32 v{A+1}, v{A+1}, 4, v4
    s_lshl_b32 s26, s8, 3
    s_lshl_b32 s27, {sW}, 12
    s_add_u32 s27, s27, {zone}""")
    d = []
    for ii in range(4):
        d.append(f"s_add_u32 m0, s27, {ii*1024}\n" + ("s_add_u32 s5, s5, s26" if ii else "s_nop 0") + f"\nbuffer_load_dwordx4 v{A + (ii&1)}, s[72:75], s5 offen lds")
    return c.l, d

def slot_tr(A, Dt):
    c = L()
    c(f"""s_lshr_b32 s26, 3, s9
    s_lshl_b32 s25, s9, 1
    s_lshl_b32 s25, 4, s25
    v_lshrrev_b32 v{A+2}, 2, {vN}
    v_lshlrev_b32 v4, s26, {vQ}
    v_add_u32 v{A+2}, v{A+2}, v4
    v_add_u32 v{A+3}, s25, v{A+2}""")
    return c

def slot_tr_ops(A, Dt):
    c = L()
    if isinstance(Dt, int): Dt = [Dt + 4*k for k in range(4)]
    c(f"""s_sub_u32 s26, 3, s9
    s_lshl_b32 s25, s9, 1
    s_lshl_b32 s25, 4, s25
    v_lshrrev_b32 v{A+2}, 2, {vN}
    v_lshlrev_b32 v4, s26, {vQ}
    v_add_u32 v{A+2}, v{A+2}, v4
    v_add_u32 v{A+3}, s25, v{A+2}""")
    tr_addr(c, f"v{A}", f"v{A+2}", "v4", "v5")
    tr_addr(c, f"v{A+1}", f"v{A+3}", "v4", "v5")
    c(f"v_add_u32 v{A}, s27, v{A}\nv_add_u32 v{A+1}, s27, v{A+1}")
    for tau in range(1, 4):
        c(f"v_xor_b32 v{A+2*tau}, {32*tau}, v{A}\nv_xor_b32 v{A+2*tau+1}, {32*tau}, v{A+1}")
    r = []
    for tau in range(4):
        r += [f"ds_read_b64_tr_b16 {vr(Dt[tau],2)}, v{A+2*tau}", f"ds_read_b64_tr_b16 {vr(Dt[tau]+2,2)}, v{A+2*tau+1}"]
    return c.l, r

def slot_store_ops(Dt):
    if isinstance(Dt, int): Dt = [Dt + 4*k for k in range(4)]
    return [("s_add_u32 s6, s6, s7\n" if tau else "") + f"buffer_store_dwordx4 {vr(Dt[tau])}, v21, {SWS}, s6 offen sc1" for tau in range(4)]

def slot_flag_op(k):
    return f"""s_barrier
    v_mov_b32 v17, {sTAG}
    s_cmp_eq_u32 {sW}, 0
    s_cselect_b32 s88, {FREG[k]}, 0x7ff00000
    s_mov_b64 exec, 1
    buffer_store_dword v17, off, {SWS}, s88 sc1
    s_mov_b64 exec, -1""".replace("    ", "")

def poll2_check(a, name, soff):
    a(f"""s_mov_b32 s88, 0
    L_{name}:
    v_cmp_ne_u32 vcc, {sTAG}, v6
    s_cbranch_vccz L_{name}_ok
    s_add_u32 s88, s88, 1
    s_cmp_gt_u32 s88, {POLL_MAX}
    s_cbranch_scc1 L_{name}_ok
    s_sleep 4
    buffer_load_dword v6, v23, {SWS}, {soff} offen sc1 ;@uncounted
    s_waitcnt vmcnt(0)
    s_branch L_{name}
    L_{name}_ok:""")

sT1, sT2 = 4, 13
PT = [32, 33, 34, 35, 36, 37, 38, 39, 71]
def bfrag(r, s):
    i = 4*s + r
    return ar(4*i) if i < 64 else vr(224 + 4*(i-64))
class Ring:
    def __init__(self): self.reset()
    def reset(self): self.free = []; self.slot = {}; self.hold = 0; self.retire = set(); self.checked = set()
    def add(self, regs): self.free += regs
    def take(self, x): self.slot[x] = self.free.pop(0); return self.slot[x]
    def give(self, x):
        if self.slot[x] not in self.retire: self.free.append(self.slot[x])
RG = Ring()
def ring(x): return RG.slot[x]

def p3_setup(a):
    a(f"""s_mul_i32 s27, {sJ}, 36
    s_add_u32 s27, s27, {sW}
    s_mul_i32 s{sT1}, s27, 36864
    s_add_u32 s{sT1}, s{sT1}, {WGU_SW}
    s_mul_i32 s26, {sI}, 72
    s_add_u32 s26, s26, {sJ}""")
    for t in range(9):
        if t == 0: a("s_mov_b32 s88, 8")
        else: a(f"s_add_u32 s88, {sJ}, {t}\ns_and_b32 s88, s88, 7")
        a(f"""s_lshl_b32 s89, s88, 2
        s_add_u32 s89, s89, s27
        s_mul_i32 s89, s89, 18432
        s_add_u32 s{sT2+t}, s89, {WD_SW}
        s_lshl_b32 s88, s88, 3
        s_add_u32 s88, s88, s26
        s_lshl_b32 s88, s88, 2
        s_add_u32 s88, s88, {sW}
        s_lshl_b32 s88, s88, 11
        s_add_u32 s{PT[t]}, s88, {PART}""")
    for g in range(9): a(f"v_add_u32 v{8+g}, {4096*g}, v21")
    a(f"""s_cmp_lt_u32 {sW}, 2
    s_cselect_b32 s88, 0, 0x7ff00000
    v_add_u32 v17, s88, v12
    s_lshl_b32 s88, {sW}, 10
    v_add_u32 v18, s88, v21
    v_add_u32 v19, {3*HRT}, v18
    v_add_u32 v22, {3*HRT}, v21
    s_lshl_b32 s88, {sW}, 7
    s_add_u32 s88, s88, {MV2}
    v_lshlrev_b32 v23, 5, {vQ}
    v_add_u32 v23, s88, v23
    s_lshl_b32 s92, {sJ}, 12
    s_add_u32 s92, s92, {F_S}""")

def stream_op(x):
    if x >= 486: return None
    pre = None
    if x < 324:
        t, k = divmod(x, 36); base = sT1
        if k == 0 and t: pre = f"s_add_u32 s{sT1}, s{sT1}, {4*36864}"
    else:
        t, k = divmod(x - 324, 18); base = sT2 + t
    txt = f"buffer_load_dwordx4 {vr(RG.take(x))}, v{8 + k//4}, {SWS}, s{base} offen offset:{(k%4)*1024}"
    return ((pre + "\n" if pre else "") + txt, f'w{x}')
NEXT = [0]
def stream_next(vm):
    if NEXT[0] >= 486 or len(RG.free) <= RG.hold: return False
    for lim, nm in ((108, 'ps1'), (216, 'ps2'), (324, 'ps3')):
        assert NEXT[0] < lim or nm in RG.checked, (NEXT[0], nm)
    o = stream_op(NEXT[0]); NEXT[0] += 1
    vm.issue(o[0], o[1]); return True

def cost(op):
    if isinstance(op, tuple): return 2
    if callable(op): return 2
    n = 0
    for l in op.split("\n"):
        n += 2 if l.startswith(('v_exp', 'v_rcp', 'buffer_')) else 1
    return n

class Stream:
    def __init__(self, a, vm): self.a = a; self.vm = vm
    def emit(self, op):
        if isinstance(op, tuple): self.vm.issue(op[0], op[1])
        elif callable(op): op()
        else: self.a(op)

def glu_ops(acc, tt):
    ops = []
    if X_NOGLU: return ops
    for r in range(4):
        g = acc + 8*r; u = g + 4; t = 88 + 4*(r & 1)
        ops += [f"v_mul_f32 v{t+e}, s89, v{g+e}" for e in range(4)]
        ops += [f"v_exp_f32 v{t+e}, v{t+e}" for e in range(4)]
        ops += [f"v_add_f32 v{t+e}, 1.0, v{t+e}" for e in range(4)]
        ops += [f"v_rcp_f32 v{t+e}, v{t+e}" for e in range(4)]
        ops += [f"v_mul_f32 v{t+e}, v{t+e}, v{u+e}" for e in range(4)]
        ops += [f"v_cvt_pk_bf16_f32 v{t+e}, v{t+2*e}, v{t+2*e+1}" for e in range(2)]
        ad, off = ("v18", r*HRT) if r < 3 else ("v19", 0)
        ops += [f"ds_write_b64 {ad}, {vr(t,2)} offset:{off + 2048*tt}"]
    return ops

def bread_ops(s, a0, a1):
    return [f"ds_read_b128 {bfrag(r, s)}, {a0 if r < 3 else a1} offset:{(r*HRT if r < 3 else 0) + s*1024}" for r in range(4)]

SA_, SD_ = 216, 200

def gemm1(a, vm, extra, hard, stamps=False):
    S = Stream(a, vm)
    a(f"s_mov_b32 s89, {fbits(-LOG2E)}")
    for s in range(3):
        for o in bread_ops(s, "v21", "v22"): a(o)
    q2 = []
    for t in range(9):
        acc = 24 + 32*(t & 1)
        if t and DIAG is None: cstamp(a, 45 + t, stamps)
        glu = glu_ops(24 + 32*((t-1) & 1), t-1) if t else []
        total = sum(cost(o) for o in glu); done = 0
        for s in range(18):
            x = 36*t + 2*s
            if DIAG == ('g1', t): cstamp(a, 45 + s, stamps)
            if DIAG == ('g1', t - 1) and s == 0: cstamp(a, 63, stamps)
            q2 += extra.get((t, s), [])
            for o in hard.get((t, s), []): o()
            rd = bread_ops(s+3, "v21", "v22") if t == 0 and s + 3 < 18 else []
            if t == 0: a("s_waitcnt lgkmcnt(%d)" % (8 if s < 16 else 4 if s == 16 else 0))
            vm.wait(f'w{x}', f'w{x+1}')
            for n in range(8):
                r, m = (n >> 1, n & 1) if X_ORDER == 0 else (n & 3, n >> 2)
                c = vr(acc + 8*r + 4*m)
                a(f"v_mfma_f32_16x16x32_bf16 {c}, {vr(ring(x+m))}, {bfrag(r, s)}, {c if s else 0}")
                budget = 2 if n < 7 else 1
                if n in (1, 4) and stream_next(vm): continue
                if rd and n in (0, 2, 3, 5): S.emit(rd.pop(0)); budget -= 1
                pos = 8*s + n
                while glu and pos >= 4 and budget >= cost(glu[0]) and done <= total*(pos - 3)/132:
                    o = glu.pop(0); S.emit(o); done += cost(o); budget -= cost(o)
                while q2 and budget >= min(2, cost(q2[0])):
                    o = q2.pop(0); S.emit(o); budget -= cost(o)
            RG.give(x); RG.give(x+1)
            assert not rd
        for o in glu: S.emit(o)
    assert not q2
    for o in glu_ops(24, 8): a(o)
    a("s_waitcnt lgkmcnt(0)")

def epi2_ops(acc, t):
    ops = []
    for r in range(4):
        ops += [f"v_cvt_pk_bf16_f32 v{56+2*r}, v{acc+4*r}, v{acc+4*r+1}", f"v_cvt_pk_bf16_f32 v{57+2*r}, v{acc+4*r+2}, v{acc+4*r+3}"]
        if r & 1:
            ops.append((f"buffer_store_dwordx4 {vr(56+2*(r-1))}, v21, {SWS}, s{PT[t]} offen offset:{(r>>1)*1024} sc1", f'part{t}') if not X_NOSTORE else "s_nop 0")
    return ops

def gemm2(a, vm, extra, hard, stamps=False):
    S = Stream(a, vm)
    a(f"v_add_u32 v20, {HH}, v21\nv_add_u32 v22, {HH + 3*HRT}, v21")
    for s in range(3):
        for o in bread_ops(s, "v20", "v22"): a(o)
    q2 = []
    for t in range(9):
        acc = 24 + 16*(t & 1)
        if t and DIAG is None: cstamp(a, 54 + t, stamps)
        epi = epi2_ops(24 + 16*((t-1) & 1), t-1) if t else []
        for s in range(18):
            x = 324 + 18*t + s
            if DIAG == ('g2', t): cstamp(a, 45 + s, stamps)
            if DIAG == ('g2', t - 1) and s == 0: cstamp(a, 63, stamps)
            q2 += extra.get((t, s), [])
            for o in hard.get((t, s), []): o()
            rd = bread_ops(s+3, "v20", "v22") if t == 0 and s + 3 < 18 else []
            if t == 0: a("s_waitcnt lgkmcnt(%d)" % (8 if s < 16 else 4 if s == 16 else 0))
            vm.wait(f'w{x}')
            for r in range(4):
                c = vr(acc + 4*r)
                a(f"v_mfma_f32_16x16x32_bf16 {c}, {vr(ring(x))}, {bfrag(r, s)}, {c if s else 0}")
                budget = 2 if r < 3 else 1
                if rd: S.emit(rd.pop(0)); budget -= 1
                if r == 1 and stream_next(vm): continue
                if r == 2 and len(RG.free) > 1 and stream_next(vm): continue
                first = 2 if (len(epi) > 5 or t == 8) else 10
                if epi and s >= first and budget >= cost(epi[0]):
                    o = epi.pop(0); S.emit(o); budget -= cost(o)
                while q2 and budget >= min(2, cost(q2[0])):
                    o = q2.pop(0); S.emit(o); budget -= cost(o)
            RG.give(x)
        assert not epi
    for o in q2: S.emit(o)

SEL, SEL2 = 88, 92
PCR = {}
def tail_setup_ops():
    c = L()
    t = Asm(); V2.tail_prefetch(t, Vm(t))
    ops = []
    for l in t.ins: ops.append((l, 'tx') if l.startswith('buffer_') else l)
    return group_scc_mixed(ops)

def group_scc_mixed(ops):
    out = []; i = 0
    while i < len(ops):
        o = ops[i]
        if isinstance(o, str) and o.startswith('s_cmp'):
            g = [o]; j = i + 1
            while j < len(ops) and isinstance(ops[j], str) and ops[j].startswith(('s_cselect', 's_mov')):
                g.append(ops[j]); j += 1
            out.append("\n".join(g)); i = j
        else:
            out.append(o); i += 1
    return out

def sel_ops():
    c = L()
    c(f"""v_and_b32 v8, 1, {vN}
    v_lshlrev_b32 v8, 4, v8
    v_mov_b32 v9, 0x3f80
    v_lshlrev_b32 v8, v8, v9
    v_cndmask_b32 v8, 0, v8, s[82:83]
    v_and_b32 v9, 2, {vN}
    v_cmp_eq_u32 vcc, 0, v9
    v_cndmask_b32 v{SEL}, 0, v8, vcc
    v_cndmask_b32 v{SEL+1}, v8, 0, vcc
    v_mov_b32 v{SEL+2}, 0
    v_mov_b32 v{SEL+3}, 0
    v_mov_b32 v{SEL2}, 0
    v_mov_b32 v{SEL2+1}, 0
    v_mov_b32 v{SEL2+2}, v{SEL}
    v_mov_b32 v{SEL2+3}, v{SEL+1}
    v_mov_b32 v8, v{SEL}
    v_mov_b32 v9, v{SEL+1}
    v_mov_b32 v10, v{SEL}
    v_mov_b32 v11, v{SEL+1}""")
    out = []; i = 0
    for l in c.l:
        if l.startswith('v_cndmask') and l.endswith('vcc'): out[-1] += "\n" + l
        else: out.append(l)
    return out

def pflag_addr_ops(stage):
    return group_scc(f"""s_lshl_b32 s22, {sI}, 2
    s_add_u32 s22, s22, {sW}
    s_lshl_b32 s22, s22, 3
    s_add_u32 s22, s22, {sJ}
    s_lshl_b32 s22, s22, 7
    s_add_u32 s22, s22, {F_P + stage*131072}""".replace("    ", "").split("\n"))
def pflag_op():
    return f"v_mov_b32 v16, {sTAG}\ns_mov_b64 exec, 1\nbuffer_store_dword v16, off, {SWS}, s22 sc1\ns_mov_b64 exec, -1"

def ppoll_addr_ops():
    o = f"""s_lshl_b32 s23, {sI}, 2
    s_add_u32 s24, s23, {sW}
    s_lshl_b32 s24, s24, 10
    s_add_u32 s24, s24, {F_P}
    s_add_u32 s23, s23, s56
    s_lshl_b32 s23, s23, 10
    s_add_u32 s23, s23, {F_P}
    v_and_b32 v16, 3, {vL}
    v_min_u32 v16, 2, v16
    v_sub_u32 v15, {sJ}, v16
    v_add_u32 v16, -1, v15
    v_and_b32 v16, 7, v16
    v_lshlrev_b32 v16, 7, v16
    v_add_u32 v13, s24, v16
    v_add_u32 v16, -4, v15
    v_and_b32 v16, 7, v16
    v_lshlrev_b32 v16, 7, v16
    s_add_u32 s24, s24, 131072
    v_add_u32 v14, s24, v16
    v_and_b32 v16, 7, {vL}
    v_lshlrev_b32 v16, 7, v16
    v_add_u32 v16, s23, v16
    v_cmp_gt_u32 vcc, 8, {vL}|v_cndmask_b32 v13, v16, v13, vcc
    s_add_u32 s23, {sJ}, 1
    s_and_b32 s23, s23, 7
    s_lshl_b32 s23, s23, 7
    s_add_u32 s23, s23, s24
    s_add_u32 s60x, s23, 131072""".replace("    ", "").replace("s60x", "s91").split("\n")
    return [x.replace("|", "\n") for x in o]

def poll1_check(a, name, vaddr, vres):
    a(f"""s_mov_b32 s88, 0
    L_{name}:
    v_cmp_ne_u32 vcc, {sTAG}, {vres}
    s_cbranch_vccz L_{name}_ok
    s_add_u32 s88, s88, 1
    s_cmp_gt_u32 s88, {POLL_MAX}
    s_cbranch_scc1 L_{name}_ok
    s_sleep 2
    buffer_load_dword {vres}, {vaddr}, {SWS}, 0 offen sc1 ;@uncounted
    s_waitcnt vmcnt(0)
    s_branch L_{name}
    L_{name}_ok:""")

def piece_load_ops(vm, taus):
    ops = []
    for tau in taus:
        ops.append(f"s_sub_u32 s24, {sJ}, {tau}\ns_and_b32 s24, s24, 7\ns_lshl_b32 s24, s24, 13\ns_add_u32 s24, s24, s25")
        for h in range(2):
            ops.append(lambda tau=tau, h=h: vm.issue(f"buffer_load_dwordx4 {vr(RG.take(('pc', tau, h)))}, v21, {SWS}, s24 offen offset:{1024*h} sc1", f'pc{tau}'))
    return ops
def p8_load_ops(vm):
    ops = []
    for p in range(8):
        def f(p=p):
            if p % 2 == 0: RG.take(('p8', p//2))
            vm.issue(("s_add_u32 s27, s27, 8192\n" if p else "") + f"buffer_load_dwordx2 {vr(RG.slot[('p8', p//2)] + 2*(p&1), 2)}, v17, {SWS}, s27 offen sc1", 'p8')
        ops.append(f)
    return ops

def piece_base_ops():
    return f"""s_mul_i32 s23, {sI}, 9
    s_add_u32 s25, s23, {sJ}
    s_lshl_b32 s25, s25, 5
    s_add_u32 s25, s25, {sW}
    s_lshl_b32 s25, s25, 11
    s_add_u32 s25, s25, {PART}
    s_add_u32 s27, s23, 8
    s_lshl_b32 s27, s27, 5
    s_add_u32 s27, s27, s56
    s_lshl_b32 s27, s27, 11
    s_add_u32 s27, s27, {PART}
    s_lshr_b32 s23, s57, 1
    s_lshl_b32 s23, s23, 10
    s_add_u32 s27, s27, s23
    s_and_b32 s23, s57, 1
    s_lshl_b32 s23, s23, 3
    s_add_u32 s27, s27, s23""".replace("    ", "").split("\n")

def piece_mfma(a, tau, acc0=24):
    for h in range(2):
        b = vr(RG.slot[('pc', tau, h)])
        a(f"v_mfma_f32_16x16x32_bf16 {vr(acc0+8*h)}, {vr(SEL)}, {b}, {vr(acc0+8*h)}")
        a(f"v_mfma_f32_16x16x32_bf16 {vr(acc0+8*h+4)}, {vr(SEL2)}, {b}, {vr(acc0+8*h+4)}")

def tail(a, vm, stamps, st):
    acc0 = 24
    run = lambda ops: [o() if callable(o) else a(o) for o in ops]
    vm.wait('part7')
    run(pflag_addr_ops(2)); vm.issue(pflag_op(), 'fl')
    vm.wait('poll2'); poll1_check(a, "pq2", "v14", "v15")
    run(piece_load_ops(vm, [4, 5, 6]))
    a("v_mov_b32 v14, s91")
    vm.issue(f"buffer_load_dword v15, v14, {SWS}, 0 offen sc1", 'poll3')
    st(26, "stage2 ok")
    vm.wait('pc1', 'pc2', 'pc3', 'p8', 'tx')
    for k in (1, 2, 3): piece_mfma(a, k)
    for p in range(4):
        a(f"v_mfma_f32_16x16x32_bf16 v[84:87], v[8:11], {vr(RG.slot[('p8', p)])}, {'v[84:87]' if p else 0}")
    vm.wait('poll3'); poll1_check(a, "pq3", "v14", "v15")
    run(piece_load_ops(vm, [7]))
    st(27, "stage3 ok")
    for tau in (4, 5, 6): piece_mfma(a, tau)
    def finish(acc, xr, gb, vaddr, soff):
        a(f"""v_lshlrev_b32 v12, 16, v{xr}
        v_and_b32 v13, {sMSK}, v{xr}
        v_lshlrev_b32 v14, 16, v{xr+1}
        v_and_b32 v15, {sMSK}, v{xr+1}
        v_pk_fma_f32 v[12:13], {vr(acc,2)}, {vr(gb,2)}, v[12:13]
        v_pk_fma_f32 v[14:15], {vr(acc+2,2)}, {vr(gb+2,2)}, v[14:15]
        v_cvt_pk_bf16_f32 v{acc}, v12, v13
        v_cvt_pk_bf16_f32 v{acc+1}, v14, v15""")
        vm.issue(f"buffer_store_dwordx2 {vr(acc,2)}, {vaddr}, {SOUT}, {soff} offen")
    finish(84, 76, 80, "v7", "s59")
    vm.wait('pc7'); piece_mfma(a, 7)
    for r in range(4):
        finish(acc0 + 4*r, 64 + 2*r, 72, "v5", "s55")
        if r < 3: a(f"s_add_u32 s55, s55, {16*1152}")

NAMES = {}
def build(stamps=False, dbg=None):
    a = Asm(); vm = Vm(a)
    NAMES.clear()
    def st(i, name):
        NAMES[i] = name; stamp(a, i, stamps)
    prologue(a, "L_end", t0=stamps)
    if stamps:
        a("v_writelane_b32 v0, s98, 0"); NAMES[0] = "wave start"
    a(f"s_add_u32 s8, s26, {EPOCH}\ns_addc_u32 s9, s27, 0\ns_load_dword {sTAG}, s[8:9], 0")
    map1(a)
    a(f"v_lshlrev_b32 v21, 4, {vL}")
    loads_mod3(a)
    xl = lines_of(x_dma, None)
    for l in xl: a(l)
    a(f"s_waitcnt lgkmcnt(0)\ns_mul_i32 {sTAG}, {sTAG}, 0x9E3779B1\ns_add_u32 {sTAG}, {sTAG}, 0x7F4A7C15\ns_mov_b32 {sMSK}, 0xffff0000")
    st(28, "x issued")
    a(";@assume_drained")
    mod_compute3(a)
    st(1, "mod pub")
    w_setup(a)
    emitW = lambda o: vm.issue(o[1], o[0])
    Wops = lambda s: [(f'W{s}', o) for o in w_dma_ops(s)]
    pf = w_prefetch(a)
    vm.issue(pf[0], 'pf'); vm.issue(pf[1], 'pf')
    setup = lines_of(tr_setup)
    setup += [f"v_mov_b32 v{120+r}, 0x3f803f80" for r in range(4)]
    setup += [f"v_mov_b32 v{R1(r,4)+d}, 0" for r in range(5) for d in range(4)]
    setup = [l.replace("s4", "s22").replace("s5", "s23") for l in setup]
    weave(a, setup, Wops(0) + Wops(1), emitW)
    wo_dma(a)
    a("s_waitcnt vmcnt(14)\ns_barrier")
    st(29, "x landed")
    for k in range(5):
        if k == 4: a(f"s_cmp_ge_u32 {sW}, 2\ns_cbranch_scc0 L_xz")
        for r in range(5):
            ad, off = ("v18", r*HRT) if r < 3 else ("v19", (r-3)*HRT)
            a(f"ds_read_b128 {vr(R1(r,k))}, {ad} offset:{off + 2048*k}")
    a("L_xz:")
    wo_tr(a)
    a("s_waitcnt lgkmcnt(0)\ns_barrier")
    st(2, "x read")
    def stage(s):
        vm.wait(f'W{s}')
        a("s_waitcnt lgkmcnt(0)\ns_barrier")
        for o in w_tr_ops(s): a(o)
    sa = lines_of(ln_stats_a, 5, R1, 120, 24, ST1)
    weave(a, sa[:26], Wops(2) + Wops(3), emitW)
    stage(0)
    weave(a, sa[26:], Wops(4) + Wops(5), emitW)
    stage(1)
    weave(a, lines_of(ln_stats_b, 5, 24, ST1), Wops(6), emitW)
    stage(2)
    ln_stats_c(a, 5, 64)
    for o in Wops(7): emitW(o)
    stage(3)
    sd = lines_of(ln_stats_d, 5, 64, 104)
    weave(a, sd[:55], Wops(8), emitW)
    stage(4)
    weave(a, sd[55:], Wops(9), emitW)
    st(3, "ln1 stats")
    for s in range(5, NPRE):
        stage(s)
        if s <= 8:
            for o in Wops(s + 5): emitW(o)
    early_flags(a)
    a(f"""s_lshl_b32 s4, s88, 10
    v_add_u32 v18, s4, v21
    v_add_u32 v19, {3*HRT}, v18""")
    st(4, "W staged")
    t = Asm(); poll_mod(t)
    for l in t.ins: a(l)
    vm.q = []
    a("s_waitcnt lgkmcnt(0)\ns_barrier")
    st(5, "mod in")
    ln_apply(a, 5, R1, 104, f"s_cmp_ge_u32 {sW}, 2", "m1")
    a("s_barrier")
    st(6, "h1 done"); cstamp(a, 43, stamps)
    a(";@fork g")
    for w in range(4):
        if w: a(f";@restore g\nL_g{w}:")
        if w < 3: a(f"s_cmp_eq_u32 {sW}, {w}\ns_cbranch_scc0 L_g{w+1}")
        vm.q = []
        jobs = qkv_gemm(a, vm, w)
        st(7, "qkv gemm"); cstamp(a, 44, stamps)
        a("s_barrier")
        rec_write(a, jobs)
        if w < 3: a("s_branch L_gE")
    a("L_gE:\n;@assume_drained")
    vm.q = []
    a("v_mov_b32 v162, v160")
    vmem_poll(a, "pw", "v162", 54, wave=None, first_issued=True)
    a("s_waitcnt lgkmcnt(0)\ns_barrier")
    st(8, "rec done")
    a(f"s_mov_b32 s92, {sI}\ns_mov_b32 s93, {sJ}")
    map_M(a)
    a(f"s_mov_b32 s94, {sI}\ns_mov_b32 s95, {sJ}")
    fill = wo_dma_fillers()
    a(fill.pop(0))
    a(f"s_mov_b32 {sI}, s92\ns_mov_b32 {sJ}, s93")
    interleave(a, P1.attention, fill, 11)
    a("s_waitcnt lgkmcnt(0)\ns_barrier")
    st(9, "attn done")
    P1.o_store(a, SC1)
    a(f"""s_lshl_b32 s22, {sI}, 5
    s_lshl_b32 s23, {sJ}, 2
    s_add_u32 s22, s22, s23
    s_add_u32 s22, s22, {F_O}
    s_mov_b32 {sI}, s94
    s_mov_b32 {sJ}, s95
    s_waitcnt vmcnt(0)
    s_barrier""")
    flag_store(a, vm, ["s22"])
    st(10, "o pub")
    P2.p2_side_loads(a, vm, SC1)
    for l in slot_decode(0): a(l)
    v, d = slot_dma(0, 240)
    for l in v: a(l)
    for o in d: vm.issue(o, 'swd')
    v, rd = slot_tr_ops(240, 224)
    for l in v: a(l)
    a(f"s_lshl_b32 s22, {sI}, 5\ns_add_u32 s22, s22, {F_O}")
    smem_poll8(a, "po", "s22")
    a("s_barrier")
    st(11, "o flags")
    P2.p2_o_loads(a, vm, SC1)
    vm.wait('swd')
    for o in rd: a(o)
    a("s_waitcnt lgkmcnt(0)")
    for o in slot_store_ops(224): vm.issue(o, 'sw')
    p2_gemm(a, vm)
    st(12, "wo gemm")
    P2.p2_epilogue(a, vm, SC1)
    a(f"""s_lshl_b32 s22, {sI}, 5
    s_lshl_b32 s23, {sJ}, 2
    s_add_u32 s22, s22, s23
    s_add_u32 s22, s22, {F_X}""")
    map_F(a)
    vm.drain()
    a("s_barrier")
    flag_store(a, vm, ["s22", "s10"])
    st(13, "x1 pub")
    a(f"s_lshl_b32 s91, {sI}, 5\ns_add_u32 s91, s91, {F_X}")
    a(f"""s_lshl_b32 s88, {sW}, 10
    s_add_u32 m0, s88, {MV2}
    s_add_u32 s88, s88, {MOD + 6912}""")
    vm.issue(f"buffer_load_dwordx4 v21, {SWS}, s88 offen sc1 lds", 'mv')
    a(f"s_mov_b32 m0, {MV2 + 4096}\ns_mov_b32 s88, {MOD + 6912 + 4096}")
    vm.issue(f"buffer_load_dwordx4 v21, {SWS}, s88 offen sc1 lds", 'mv')
    for l in slot_decode(1): a(l)
    p3_setup(a)
    v, d = slot_dma(SZ, 240)
    for l in v: a(l)
    a(f"s_cmp_eq_u32 {sW}, 2\ns_cbranch_scc0 L_ps0_skip\nv_mov_b32 v202, v23\nv_and_b32 v23, 31, {vL}\nv_lshlrev_b32 v23, 7, v23\nbuffer_load_dword v6, v23, {SWS}, s92 offen sc1 ;@uncounted\ns_waitcnt vmcnt(0)")
    poll2_check(a, "ps0", "s92")
    a("v_mov_b32 v23, v202\nL_ps0_skip:")
    smem_poll8(a, "px", "s91")
    a("s_waitcnt vmcnt(0)\ns_barrier")
    vm.q = []
    st(14, "x1 flags")
    V2.x1_loads(a, vm)
    for o in d: vm.issue(o, 'swd')
    RG.reset(); NEXT[0] = 0
    RG.add([96 + 4*k for k in range(12)])
    while stream_next(vm): pass
    v, rd = slot_tr_ops(240, 224)
    for l in v: a(l)
    for r in range(4): a(f"v_mov_b32 v{92+r}, 0x3f803f80")
    vm.wait('x1')
    st(15, "x1 landed")
    ln_stats_a(a, 4, R2, 92, 24, ST2)
    ln_stats_b(a, 4, 24, ST2)
    vm.wait('swd')
    for o in rd: a(o)
    a("s_waitcnt lgkmcnt(0)\ns_barrier")
    ln_stats_c(a, 4, 56)
    for o in slot_store_ops(224): vm.issue(o, 'sw')
    a("s_waitcnt lgkmcnt(0)")
    ln_stats_d(a, 4, 56, 88)
    st(16, "ln2 stats")
    def refill(r, k):
        if R2(r, k) < SA_:
            RG.add([R2(r, k)]); stream_next(vm)
    ln_apply(a, 4, R2, 88, f"s_cmp_lt_u32 {sW}, 2", "m2", refill)
    st(17, "ln2 main")
    RG.add([R2(r, 4) for r in range(3)])
    while stream_next(vm): pass
    a(f"""s_and_b32 s88, {sW}, 1
    s_lshl_b32 s88, s88, 3
    s_lshr_b32 s89, {sW}, 1
    s_lshl_b32 s89, s89, 10
    s_add_u32 s88, s88, s89
    s_add_u32 s88, s88, {HH}
    v_add_u32 v18, s88, v21
    v_add_u32 v19, {3*HRT}, v18
    v_and_b32 v23, 31, {vL}
    v_lshlrev_b32 v23, 7, v23
    s_barrier""")
    st(18, "ln2 bar"); cstamp(a, 40, stamps)
    ex = {}; hard = {}
    def add(t, s, ops): ex.setdefault((t, s), []).extend(ops)
    def addh(t, s, f): hard.setdefault((t, s), []).append(f)
    def step(t, s, d):
        s += d
        return (t + s // 18, s % 18)
    def slot(k, dec, dma, tr, sto, flag):
        v, d = slot_dma(SZ, SA_)
        add(*dec, group_scc(slot_decode(k)) + v)
        for n in range(4): add(*dma[n], [(d[n], 'swd')])
        addh(*step(*tr, -3), lambda: setattr(RG, 'hold', 4))
        v2, _ = slot_tr_ops(SA_, [0, 0, 0, 0])
        add(*step(*tr, -5), v2)
        def do_tr():
            regs = [RG.take(('sw', k, n)) for n in range(4)]; RG.hold = 0
            vm.wait('swd')
            for o in slot_tr_ops(SA_, regs)[1]: a(o)
        add(*tr, [do_tr])
        for n in range(4):
            def do_st(n=n):
                if n == 0: a("s_waitcnt lgkmcnt(0)")
                regs = [RG.slot[('sw', k, m)] for m in range(4)]
                vm.issue(slot_store_ops(regs)[n], 'sw'); RG.give(('sw', k, n))
            add(*sto[n], [do_st])
        add(*flag, [lambda: vm.wait('sw'), (slot_flag_op(k), 'fl')])
    def poll(iss, chk, k):
        addh(*iss, lambda: vm.issue(f"s_add_u32 s92, s92, 32768\nbuffer_load_dword v6, v23, {SWS}, s92 offen sc1", f'ps{k}'))
        addh(*chk, lambda: (vm.wait(f'ps{k}'), poll2_check(a, f"ps{k}", "s92"), RG.checked.add(f'ps{k}')))
    add(0, 7, [lambda: vm.wait('sw'), (slot_flag_op(1), 'fl')])
    slot(2, (0, 0), [(0, 11), (0, 14), (0, 17), (1, 2)], (1, 16), [(2, 0), (2, 4), (2, 8), (2, 12)], (3, 8))
    slot(3, (2, 13), [(3, 4), (3, 7), (3, 10), (3, 13)], (4, 9), [(4, 11), (4, 15), (5, 1), (5, 5)], (6, 1))
    poll((1, 0), (1, 15), 1)
    poll((3, 15), (4, 12), 2)
    poll((6, 9), (7, 6), 3)
    gemm1(a, vm, ex, hard, stamps)
    a("s_barrier")
    st(19, "gemm1"); cstamp(a, 41, stamps)
    ex = {}; hard = {}
    extra_slots = [64 + 4*k for k in range(6)]
    RG.add(extra_slots + [216, 220])
    addh(3, 0, lambda: (RG.retire.update(extra_slots), [RG.free.remove(r) for r in extra_slots if r in RG.free]))
    add(5, 12, tail_setup_ops() + ppoll_addr_ops() + piece_base_ops())
    add(6, 14, pflag_addr_ops(0) + [lambda: vm.wait('part3'), (pflag_op(), 'fl')])
    add(7, 6, [(f"buffer_load_dword v15, v13, {SWS}, 0 offen sc1", 'poll1')])
    addh(8, 0, lambda: (vm.wait('poll1'), poll1_check(a, "pq1", "v13", "v15")))
    add(8, 0, piece_load_ops(vm, [1, 2, 3]))
    add(8, 7, pflag_addr_ops(1) + [lambda: vm.wait('part6'), (pflag_op(), 'fl')])
    add(8, 8, p8_load_ops(vm) + sel_ops())
    add(8, 16, [(f"buffer_load_dword v15, v14, {SWS}, 0 offen sc1", 'poll2')])
    gemm2(a, vm, ex, hard, stamps)
    st(20, "gemm2"); cstamp(a, 42, stamps)
    tail(a, vm, stamps, st)
    a(f"""s_cmp_eq_u32 {sB}, 0
    s_cselect_b32 s4, {sW}, 1
    s_cmp_eq_u32 s4, 0
    s_cbranch_scc0 L_noep
    v_mov_b32 v4, {sTAG}
    s_mov_b32 s4, {EPOCH}
    s_mov_b64 exec, 1
    buffer_store_dword v4, off, {SWS}, s4 sc1
    s_mov_b64 exec, -1
    L_noep:""")
    if stamps: vm.drain()
    st(21, "end")
    stamp_flush(a, 0, 64, stamps)
    if dbg:
        a(f"""s_cmp_eq_u32 {sB}, {dbg[0]}
        s_cselect_b32 s4, {sW}, 1
        s_cmp_eq_u32 s4, 0
        s_cbranch_scc0 L_nodbg
        s_load_dwordx2 s[72:73], s[0:1], 80
        s_mov_b32 s74, 256
        s_mov_b32 s75, 0x20000
        v_readlane_b32 s4, v0, 0
        s_waitcnt lgkmcnt(0)""")
        for n, k in enumerate(dbg[1]):
            a(f"v_readlane_b32 s5, v0, {k}\ns_sub_u32 s5, s5, s4\nv_mov_b32 v4, s5\ns_mov_b32 s6, {4*n}\ns_mov_b64 exec, 1\nbuffer_store_dword v4, off, s[72:75], s6\ns_mov_b64 exec, -1")
        a("L_nodbg:")
    a("L_end:\ns_endpgm")
    return file_text("; adaLN block (sliding dilated attention + gated FFN), one persistent launch\n",
                     [dict(name=KNAME, body=a.finish(), vgpr=256, agpr=256, sgpr=102, grid=256, block=256, lds=163840)])

if __name__ == "__main__":
    if len(sys.argv) > 2:
        open(sys.argv[1], "w").write(build(True, (int(sys.argv[2]), [int(x) for x in sys.argv[3].split(",")])))
    else:
        open(sys.argv[1], "w").write(build())
```

```python
import sys, re
from gen_v3 import *
import gen_v3 as V3

def sal(s): return [x.strip() for x in s.split("\n") if x.strip()]
def pairs(items, n=2):
    out = []
    for it in items:
        if isinstance(it, str) and out and isinstance(out[-1], str) and all(l.startswith('s_') for l in (it + "\n" + out[-1]).split("\n")) and out[-1].count("\n") + it.count("\n") + 2 <= n:
            out[-1] += "\n" + it
        else: out.append(it)
    return out

def w_prefetch4(a):
    a(f"""s_and_b32 s4, {sI}, 7
    s_lshl_b32 s4, s4, 6
    s_lshl_b32 s5, {sW}, 4
    s_add_u32 s4, s4, s5
    s_add_u32 s4, s4, 64
    s_mul_i32 s4, s4, 3456
    s_mul_i32 s5, {sJ}, 144
    s_and_b32 s5, s5, 0xffffff80
    s_add_u32 s4, s4, s5
    s_add_u32 s5, s4, {8*3456}
    v_lshrrev_b32 v4, 3, {vL}
    v_mul_u32_u24 v4, 3456, v4
    v_and_b32 v5, 7, {vL}
    v_min_u32 v5, 5, v5
    v_lshrrev_b32 v6, 1, v5
    v_mul_u32_u24 v6, 1152, v6
    v_and_b32 v5, 1, v5
    v_lshl_add_u32 v6, v5, 7, v6
    v_add_u32 v4, v4, v6
    buffer_load_dword v254, v4, {SQKV}, s4 offen
    buffer_load_dword v255, v4, {SQKV}, s5 offen""")

XL = [f"s{10+l}" for l in range(9)]
sWR = "s95"
def x_prep(a):
    a(f"""v_lshrrev_b32 v4, 3, {vL}
    v_mul_u32_u24 v8, 1152, v4
    v_lshrrev_b32 v4, 4, {vL}
    s_and_b32 s4, {sW}, 1
    s_lshl_b32 s4, s4, 2
    v_or_b32 v4, s4, v4
    v_and_b32 v5, 7, {vL}
    v_xor_b32 v4, v4, v5
    v_lshl_add_u32 v8, v4, 4, v8
    s_and_b32 s27, {sI}, 7
    s_mul_i32 {sWR}, s27, {2*110592}
    s_mul_i32 s5, {sI}, {64*1152}
    s_mul_i32 s6, {sW}, {8*1152}
    s_add_u32 s5, s5, s6
    s_sub_u32 s7, s5, {16*1152}
    s_cmp_lt_u32 {sW}, 2
    s_cselect_b32 s8, {sI}, 1
    s_cselect_b32 s26, 3, 2
    s_cmp_eq_u32 s8, 0
    s_cselect_b32 s7, s6, s7
    s_sub_u32 s5, s5, {16*1152}
    s_and_b32 s8, {sJ}, 3
    s_cmp_ge_u32 s8, s26
    s_cselect_b32 s9, s26, 0
    s_sub_u32 s8, s8, s9
    s_cmp_ge_u32 s8, s26
    s_cselect_b32 s9, s26, 0
    s_sub_u32 s8, s8, s9""")
    for l in range(9):
        a(f"""s_add_u32 s9, s27, {l}
        s_cmp_ge_u32 s9, 9
        s_cselect_b32 s4, 9, 0
        s_sub_u32 s9, s9, s4
        s_lshl_b32 {XL[l]}, s9, 7""")
def x_group_base(t):
    return f"""s_add_u32 s9, s8, {t}
    s_cmp_ge_u32 s9, s26
    s_cselect_b32 s4, s26, 0
    s_sub_u32 s9, s9, s4
    s_mul_i32 s4, s9, 36864
    s_add_u32 s91, s6, s4
    s_add_u32 s92, s5, s4
    s_cmp_eq_u32 s9, 0
    s_cselect_b32 s92, s7, s92""".replace("    ", "")
def x_group_ops():
    return [f"s_add_u32 m0, s91, {l*1024}\ns_add_u32 s4, s92, {XL[l]}\nbuffer_load_dwordx4 v8, {SX}, s4 offen lds" for l in range(9)]

def w_dma_ops(s):
    ops = []
    for seg in range(3):
        for h in range(2):
            pre = f"s_add_u32 {sWR}, {sWR}, 110592\ns_cmp_eq_u32 {sWR}, {18*110592}\ns_cselect_b32 {sWR}, 0, {sWR}\n" if s and seg == 0 and h == 0 else ""
            ops.append(pre + f"s_add_u32 m0, s84, {wslot(s) + seg*8192 + h*1024}\ns_add_u32 s4, {sWR}, {h*4*3456 + seg*1152}\nbuffer_load_dwordx4 v9, {SQKV}, s4 offen lds")
    return ops

def poll_mod4_issue(a, vm):
    ls = lines_of(poll_mod)
    i = ls.index("s_mov_b32 s89, 0")
    for l in ls[:i]: a(re.sub(r'\bs([4-8])\b', lambda m: f"s{int(m.group(1))+48}", l))
    a(f"""s_and_b32 s52, {sI}, 7
    s_lshl_b32 s52, s52, 8
    v_mov_b32 v38, 2304""")
    for r in ("v5", "v7", "v6"):
        a(f"""v_subrev_u32 v36, {MV1}, {r}
        v_cmp_le_u32 vcc, 2304, v36
        v_cndmask_b32 v37, 0, v38, vcc
        v_add_u32 v37, s52, v37
        v_cmp_lt_u32 vcc, v36, v37
        v_subrev_u32 {r}, s52, {r}
        v_cndmask_b32 v36, 0, v38, vcc
        v_add_u32 {r}, {r}, v36""")
    for k in range(3):
        vm.issue(f"buffer_load_dwordx4 {vr(24+4*k)}, v21, {SWS}, s{53+k} offen sc1", 'pm')

def poll_mod4(a, vm):
    ls = [re.sub(r'\bs([4-8])\b', lambda m: f"s{int(m.group(1))+48}", l) for l in lines_of(poll_mod)]
    i = ls.index("s_mov_b32 s89, 0"); j = ls.index("s_waitcnt vmcnt(0)")
    vm.wait('pm')
    a("s_mov_b32 s89, 0\ns_branch L_pm_chk")
    for l in ls[i+1:j]: a(l + (" ;@uncounted" if l.startswith('buffer') else ""))
    a("s_waitcnt vmcnt(0)\nL_pm_chk:")
    k = ls.index("L_pm_done:")
    for l in ls[j+1:k]: a(l)
    a("s_branch L_pm_ok\nL_pm_done:\ns_waitcnt vmcnt(0)\nL_pm_ok:")
    for l in ls[k+2:]: a(l)

PARTM = MOD + 0x10000
def mod1_loads(a):
    a(f"""s_mul_i32 s4, {sB}, 1214
    s_lshr_b32 s4, s4, 16
    s_mul_i32 s5, s4, 54
    s_sub_u32 s5, {sB}, s5
    s_lshl_b32 s6, s4, 2
    s_add_u32 s6, s6, {sW}
    s_lshl_b32 s93, s5, 4
    s_add_u32 s93, s93, s6
    s_lshl_b32 s93, s93, 9
    s_add_u32 s93, s93, {PARTM}
    s_mul_i32 s6, s6, 36
    v_lshrrev_b32 v4, 3, {vL}
    v_mul_u32_u24 v5, 5, v4
    v_add_u32 v5, s6, v5
    v_lshlrev_b32 v17, 1, v5
    v_mul_u32_u24 v16, 6912, v5
    v_and_b32 v5, 7, {vL}
    v_lshl_add_u32 v16, v5, 4, v16
    s_lshl_b32 s5, s5, 7
    v_add_u32 v16, s5, v16
    s_cmp_lt_u32 {sB}, 216
    s_cselect_b32 s4, 0, 0x7ff00000
    v_add_u32 v16, s4, v16
    v_add_u32 v17, s4, v17
    v_mov_b32 v5, 0x7ff00000
    v_cmp_eq_u32 vcc, 7, v4
    v_cndmask_b32 v5, 0, v5, vcc
    v_add_u32 v14, v5, v16
    v_add_u32 v15, v5, v17""")
    for t in range(5):
        a(f"buffer_load_ushort v{24+t}, {'v17' if t == 0 else 'v15'}, {SC}, 0 offen offset:{2*t}")
    for t in range(5):
        a(f"s_mov_b32 s4, {6912*t}\nbuffer_load_dwordx4 {vr(48+4*t)}, {'v16' if t == 0 else 'v14'}, {SMOD}, s4 offen")

def mod1_compute(a):
    T = range(5); tmp = lambda t: f"v{32+t}"
    a(f"v_mov_b32 v42, {fbits(-LOG2E)}")
    for t in T: a(f"v_lshlrev_b32 v{24+t}, 16, v{24+t}")
    for t in T: a(f"v_mul_f32 {tmp(t)}, v42, v{24+t}")
    for t in T: a(f"v_exp_f32 {tmp(t)}, {tmp(t)}")
    for t in T: a(f"v_add_f32 {tmp(t)}, 1.0, {tmp(t)}")
    for t in T: a(f"v_rcp_f32 {tmp(t)}, {tmp(t)}")
    for t in T: a(f"v_mul_f32 {tmp(t)}, {tmp(t)}, v{24+t}")
    for t in T: a(f"v_cvt_pk_bf16_f32 {tmp(t)}, {tmp(t)}, {tmp(t)}")
    for t in T: a(f"v_and_b32 v{24+t}, {sMSK}, {tmp(t)}")
    for t in T:
        pp = vr(24 + (t & ~1), 2)
        sel = "op_sel:[0,1,0] op_sel_hi:[1,1,1]" if t & 1 else "op_sel:[0,0,0] op_sel_hi:[1,0,1]"
        unpack(a, 80, 48 + 4*t)
        for d in range(4):
            if t == 0: a(f"v_pk_mul_f32 {vr(72+2*d,2)}, {vr(80+2*d,2)}, {pp} op_sel:[0,0] op_sel_hi:[1,0]")
            else: a(f"v_pk_fma_f32 {vr(72+2*d,2)}, {vr(80+2*d,2)}, {pp}, {vr(72+2*d,2)} {sel}")
    for e in range(4): a(f"v_permlane32_swap_b32 v{72+e}, v{76+e}")
    for e in range(4): a(f"v_add_f32 v{72+e}, v{72+e}, v{76+e}")
    for e in range(2): a(f"v_permlane16_swap_b32 v{72+e}, v{74+e}")
    for e in range(2): a(f"v_add_f32 v{72+e}, v{72+e}, v{74+e}")
    a(f"""v_and_b32 v4, 8, {vL}
    v_cmp_eq_u32 vcc, 0, v4
    v_cndmask_b32 v74, v73, v72, vcc
    v_cndmask_b32 v75, v72, v73, vcc
    v_add_f32_dpp v74, v75, v74 row_ror:8 row_mask:0xf bank_mask:0xf
    v_mov_b32 v75, {sTAG}
    v_and_b32 v4, 7, {vL}
    v_lshrrev_b32 v5, 3, {vL}
    v_lshl_add_u32 v4, v4, 3, v5
    v_lshlrev_b32 v4, 3, v4
    s_cmp_lt_u32 {sB}, 216
    s_cselect_b32 s22, s93, 0x7ff00000
    buffer_store_dwordx2 v[74:75], v4, {SWS}, s22 offen sc1 ;@uncounted""")

def mod2_issue(a, vm):
    a(f"""s_cmp_lt_u32 {sB}, 54
    s_cselect_b32 s4, {sW}, 1
    s_cmp_eq_u32 s4, 0
    s_cselect_b32 s4, 0, 0x7ff00000
    s_lshl_b32 s22, {sB}, 13
    s_add_u32 s22, s22, {PARTM}
    s_add_u32 s23, s22, 4096
    v_lshlrev_b32 v7, 3, {vL}
    v_add_u32 v7, s4, v7""")
    for p in range(16):
        vm.issue(f"buffer_load_dwordx2 {vr(224+2*p,2)}, v7, {SWS}, {'s22' if p < 8 else 's23'} offen offset:{512*(p%8)} sc1", 'm2')

def mod2(a, vm):
    vm.wait('m2')
    a(f"""s_cmp_lt_u32 {sB}, 54
    s_cselect_b32 s4, {sW}, 1
    s_cmp_eq_u32 s4, 0
    s_cbranch_scc0 L_nomod2
    s_mov_b32 s89, 0
    s_branch L_m2_chk
    L_m2:""")
    for p in range(16):
        a(f"buffer_load_dwordx2 {vr(224+2*p,2)}, v7, {SWS}, {'s22' if p < 8 else 's23'} offen offset:{512*(p%8)} sc1 ;@uncounted")
    a(f"""s_add_u32 s89, s89, 1
    s_cmp_gt_u32 s89, {POLL_MAX}
    s_cbranch_scc1 L_m2_to
    s_waitcnt vmcnt(0)
    L_m2_chk:""")
    for p in range(16): a(f"v_xor_b32 v{225+2*p}, {sTAG}, v{225+2*p}")
    for p in range(1, 15, 2): a(f"v_or3_b32 v225, v225, v{225+2*p}, v{227+2*p}")
    a(f"""v_or_b32 v225, v225, v255
    v_cmp_ne_u32 vcc, 0, v225
    s_cbranch_vccnz L_m2
    s_branch L_m2_ok
    L_m2_to:
    s_waitcnt vmcnt(0)
    L_m2_ok:""")
    for st in (1, 2, 4, 8):
        for p in range(0, 16, 2*st): a(f"v_add_f32 v{224+2*p}, v{224+2*p}, v{224+2*(p+st)}")
    ls = lines_of(mod_compute)
    i = next(k for k, l in enumerate(ls) if l.startswith("v_cvt_pk_bf16_f32 v24, v24, v24"))
    a(f"""s_mul_i32 s4, {sB}, 57
    s_lshr_b32 s4, s4, 9
    s_cmp_eq_u32 s4, 1
    s_cselect_b32 s5, 1, 0
    s_cmp_eq_u32 s4, 4
    s_cselect_b32 s5, 1, s5
    s_cmp_eq_u32 s5, 1
    s_cselect_b64 vcc, -1, 0
    v_lshlrev_b32 v4, 2, {vL}""")
    for l in ls[i:]: a(l.replace("v24", "v224").replace("v25", "v225").replace("v[24:25]", "v[224:225]"))

ZB = 98304
ALIGN = True
FINE = []
CODEPF = True
TOUCH = True
WOPF = True
NL = 1
SRC = lambda k: f"s{10+3*k}"; DST = lambda k: f"s{11+3*k}"; TYP = lambda k: f"s{12+3*k}"
def ffn_decode(a):
    a(f"""s_lshr_b32 s22, {sB}, 3
    s_lshl_b32 s22, s22, 2
    s_add_u32 s22, s22, {sW}
    s_and_b32 s23, {sB}, 7
    s_mul_i32 s24, s22, 57
    s_lshr_b32 s24, s24, 11
    s_mul_i32 s25, s24, 36
    s_sub_u32 s25, s22, s25
    s_cmp_ge_u32 s25, 18
    s_cselect_b32 s26, 18, 0
    s_cselect_b32 s27, 1, 0
    s_sub_u32 s25, s25, s26
    s_mul_i32 s4, s25, {32*9216}
    s_mul_i32 s26, s23, 1152
    s_add_u32 s4, s4, s26
    s_lshl_b32 s26, s24, 7
    s_add_u32 s4, s4, s26
    s_mul_i32 s5, s23, 36
    s_lshl_b32 s26, s24, 2
    s_add_u32 s5, s5, s26
    s_mul_i32 s5, s5, 18
    s_add_u32 s5, s5, s25
    s_lshl_b32 s5, s5, 1
    s_add_u32 s5, s5, s27
    s_lshl_b32 s5, s5, 10
    s_add_u32 s5, s5, {WGU_SW}""")
    for k in range(4):
        if k > 0:
            off = {1: -108, 2: -88, 3: 40}[k]
            a(f"""s_add_i32 s24, s22, {off}
            s_mul_i32 s25, s24, 57
            s_lshr_b32 s25, s25, 9
            s_mul_i32 s26, s25, 9
            s_sub_u32 s24, s24, s26
            s_mul_i32 s6, s23, {576*1152}
            s_mul_i32 s26, s25, {32*1152}
            s_add_u32 s6, s6, s26
            s_lshl_b32 s26, s24, 7
            s_add_u32 s6, s6, s26
            s_mul_i32 s7, s23, 36
            s_lshl_b32 s26, s24, 2
            s_add_u32 s7, s7, s26
            s_mul_i32 s7, s7, 18
            s_add_u32 s7, s7, s25
            s_lshl_b32 s7, s7, 10
            s_add_u32 s7, s7, {WD_SW}""")
        if k < 3:
            a(f"s_add_u32 {SRC(k)}, s4, {3*k*128}\ns_add_u32 {DST(k)}, s5, {3*k*147456}\ns_cmp_ge_u32 s22, 108")
            if k == 0: a(f"s_cselect_b32 {TYP(k)}, 3, s27\ns_cselect_b32 {DST(k)}, 0x7ff00000, {DST(k)}")
            else: a(f"s_cselect_b32 {TYP(k)}, 2, s27\ns_cselect_b32 {SRC(k)}, s6, {SRC(k)}\ns_cselect_b32 {DST(k)}, s7, {DST(k)}")
        else:
            a(f"s_mov_b32 {SRC(k)}, s6\ns_cmp_ge_u32 s22, 122\ns_cselect_b32 {TYP(k)}, 3, 2\ns_cselect_b32 {DST(k)}, 0x7ff00000, s7")

def ffn_prep_fillers():
    c = L()
    dma_chunk(c, "v150", 0, "v4", "v5"); dma_chunk(c, "v151", 1, "v4", "v5")
    c(f"""v_lshlrev_b32 v150, 4, v150
    v_lshlrev_b32 v151, 4, v151
    v_lshrrev_b32 v146, 3, {vL}
    s_lshl_b32 s27, {sW}, 14
    s_add_u32 s27, s27, {ZB}""")
    return c.l
def ffn_slot_fillers(k):
    f = [f"""s_cmp_eq_u32 {TYP(k)}, 1
    s_cselect_b32 s72, s44, s40
    s_cselect_b32 s73, s45, s41""", f"""s_cmp_eq_u32 {TYP(k)}, 2
    s_cselect_b32 s72, s48, s72
    s_cselect_b32 s73, s49, s73
    s_movk_i32 s8, 9216
    s_cselect_b32 s8, 1152, s8""", f"""s_mov_b32 s74, {D*F*2}
    s_cmp_eq_u32 {TYP(k)}, 3
    s_cselect_b32 s74, 0, s74
    s_mov_b32 s75, 0x20000""", "v_mul_u32_u24 v147, s8, v146", "v_add_u32 v144, v147, v150", "v_add_u32 v145, v147, v151", "s_lshl_b32 s26, s8, 3"]
    f = [x.replace("    ", "") for x in f]
    for ii in range(4):
        f.append(('swd', f"s_add_u32 m0, s27, {k*4096 + ii*1024}\n" + (f"s_add_u32 {SRC(k)}, {SRC(k)}, s26" if ii else "s_nop 0") + f"\nbuffer_load_dwordx4 v{144 + (ii&1)}, s[72:75], {SRC(k)} offen lds"))
    return f

def qkv_gemm4(a, vm, w, stamps=False):
    units = [(t, rt) for rt in range(5) for t in range(4) if t < 2 or rt > 0] if w < 2 else [(t, rt) for rt in range(5) for t in range(3)]
    rf, jobs = rec_fillers(w)
    pw = [f"""s_and_b32 s5, {sB}, 63
        s_lshr_b32 s5, s5, 3""".replace("        ", ""), f"s_mul_i32 s5, s5, 72\ns_add_u32 s5, s5, {F_W - 36*4}", f"v_min_u32 v160, 53, {vL}", "v_lshlrev_b32 v160, 2, v160", f"v_add_u32 v4, {F_M}, v160", "v_add_u32 v160, s5, v160",
        f"v_cmp_gt_u32 vcc, 36, {vL}\nv_cndmask_b32 v160, v160, v4, vcc"]
    misc = pw + ffn_prep_fillers() + rf
    d16 = [('W16', o) for o in w_dma_ops(16)]; d17 = [('W17', o) for o in w_dma_ops(17)]
    plan = {0: w_tr_ops(14), 1: w_tr_ops(15), 2: d16[:3], 3: d16[3:], 4: d17[:3], 5: d17[3:], 6: [('pw', f"buffer_load_dword v7, v160, {SWS}, 0 offen sc1")],
            7: w_tr_ops(16), 8: w_tr_ops(17)}
    ffn = []
    for k in range(4): ffn += ffn_slot_fillers(k)
    def rd(s, rt):
        ad, off = ("v21", rt*HRT) if rt < 3 else ("v22", (rt-3)*HRT)
        return f"ds_read_b128 {vr(BB1(s, rt))}, {ad} offset:{off + s*1024}"
    for rt in range(5): a(rd(0, rt))
    for s in range(18):
        a("s_waitcnt lgkmcnt(0)")
        if s in (2, 7, 9, 13): cstamp(a, {2: 34, 7: 35, 9: 36, 13: 38}[s], stamps)
        if s == 7: vm.wait('W17')
        if s == 9:
            vm.wait('pw')
            poll1_check(a, f"pw{w}", "v160", "v7")
        if s in (2, 7, 9): a("s_barrier")
        if s == 9: cstamp(a, 37, stamps)
        nxt = [rd(s+1, rt) for rt in range(5)] if s < 17 else []
        here = list(plan.get(s, []))
        spaced = s in (2, 3, 4, 5)
        ndma = 0
        for n, (tau, rt) in enumerate(units):
            acc = vr(ACC1(tau, rt))
            a(f"v_mfma_f32_16x16x32_bf16 {acc}, {wfrag(tau, s)}, {vr(BB1(s, rt))}, {acc if s else 0}")
            if nxt and n % 3 == 0: a(nxt.pop(0))
            elif here and (not spaced or n % 4 == 1):
                o = here.pop(0)
                if isinstance(o, tuple): vm.issue(o[1], o[0])
                else: a(o)
            elif s >= 9 and ffn and not (isinstance(ffn[0], tuple) and (ndma >= 2 or n % 5 != 1 and n % 5 != 2)):
                o = ffn.pop(0)
                if isinstance(o, tuple): vm.issue(o[1], o[0]); ndma += 1
                else: a(o)
            elif misc:
                a(misc.pop(0))
                if w >= 2 and s in (6, 10) and misc: a(misc.pop(0))
        assert not nxt and not here, (s, nxt, here)
    assert not misc and not ffn, (len(misc), len(ffn))
    return jobs

def z_tr(a):
    a(f"v_lshrrev_b32 v6, 2, {vN}\nv_lshl_add_u32 v7, {vQ}, 3, v6")
    tr_addr(a, "v8", "v7", "v4", "v5")
    a("v_add_u32 v7, 4, v7"); tr_addr(a, "v9", "v7", "v4", "v5")
    a(f"v_lshl_add_u32 v7, {vQ}, 2, v6"); tr_addr(a, "v10", "v7", "v4", "v5")
    a("v_add_u32 v7, 16, v7"); tr_addr(a, "v11", "v7", "v4", "v5")
    a(f"s_lshl_b32 s27, {sW}, 14\ns_add_u32 s27, s27, {ZB}")
    for r in range(8, 12): a(f"v_add_u32 v{r}, s27, v{r}")
    for k in range(4):
        b = 24 + 8*k
        a(f"""s_cmp_eq_u32 {TYP(k)}, 2
        s_cselect_b64 vcc, -1, 0
        v_cndmask_b32 v{b}, v8, v10, vcc
        v_cndmask_b32 v{b+1}, v9, v11, vcc""")
        for tau in range(1, 4):
            a(f"v_xor_b32 v{b+2*tau}, {32*tau}, v{b}\nv_xor_b32 v{b+2*tau+1}, {32*tau}, v{b+1}")
        a(f"s_cmp_eq_u32 {TYP(k)}, 2\ns_mov_b32 {TYP(k)}, 36864\ns_cselect_b32 {TYP(k)}, 18432, {TYP(k)}")
    rd = []
    for k in range(4):
        for tau in range(4):
            r = 16*k + 4*tau; x = 24 + 8*k + 2*tau
            rd += [f"ds_read_b64_tr_b16 {ar(r,2)}, v{x} offset:{k*4096}", f"ds_read_b64_tr_b16 {ar(r+2,2)}, v{x+1} offset:{k*4096}"]
    return rd

ZD = [40, 41, 42, 43, 44, 45, 46, 47]
def z_store_ops(k):
    d, t = f"s{ZD[2*k]}", f"s{ZD[2*k+1]}"
    return [(f"s_add_u32 {d}, {d}, {t}\n" if tau else "") + f"buffer_store_dwordx4 {ar(16*k + 4*tau)}, v21, {SWS}, {d} offen sc1" for tau in range(4)]

NAMES = V3.NAMES
def build(stamps=False, dbg=None):
    a = Asm(); vm = Vm(a)
    NAMES.clear()
    def st(i, name):
        NAMES[i] = name; stamp(a, i, stamps)
    FINE.clear()
    def fs(group, name):
        if V3.DIAG == group:
            FINE.append(name); cstamp(a, 44 + len(FINE), stamps)
    prologue(a, "L_end", t0=stamps, page=TOUCH)
    if stamps:
        a("v_writelane_b32 v0, s98, 0"); NAMES[0] = "wave start"
    a(f"s_add_u32 s8, s26, {EPOCH}\ns_addc_u32 s9, s27, 0\ns_load_dword {sTAG}, s[8:9], 0")
    map1(a)
    a(f"v_lshlrev_b32 v21, 4, {vL}")
    if CODEPF:
        a(f"""s_cmp_eq_u32 {sW}, 3
        s_cbranch_scc0 L_nopf
        s_getpc_b64 s[22:23]
        L_pc:
        s_lshr_b32 s4, {sB}, 3
        s_lshl_b32 s4, s4, 12
        v_lshlrev_b32 v4, 7, {vL}
        v_add_u32 v4, s4, v4
        s_mov_b32 s5, L_end-L_pc
        v_min_u32 v4, s5, v4
        s_mov_b32 exec_hi, 0
        global_load_dword v253, v4, s[22:23] ;@uncounted
        s_mov_b32 exec_hi, -1
        L_nopf:""")
    mod1_loads(a)
    emitW = lambda o: vm.issue(o[1], o[0])
    Wops = lambda s: [(f'W{s}', o) for o in w_dma_ops(s)]
    x_prep(a)
    setup = lines_of(w_setup) + lines_of(tr_setup)
    setup += [f"v_mov_b32 v{120+r}, 0x3f803f80" for r in range(4)]
    setup += [f"v_mov_b32 v{R1(r,4)+d}, 0" for r in range(5) for d in range(4)]
    import re
    ren = {'s4': 's22', 's5': 's23'}
    setup = [re.sub(r'\bs([45])\b', lambda m: ren['s' + m.group(1)], l) for l in setup]
    a(x_group_base(0))
    g0 = x_group_ops(); g1 = x_group_ops(); g1[0] = x_group_base(1) + "\n" + g1[0]
    weave(a, setup, g0 + g1, a)
    a(f"s_cmp_lt_u32 {sW}, 2\ns_cbranch_scc0 L_x2")
    a(x_group_base(2))
    for o in x_group_ops(): a(o)
    a("L_x2:")
    a(f"s_waitcnt lgkmcnt(0)\ns_mul_i32 {sTAG}, {sTAG}, 0x9E3779B1\ns_add_u32 {sTAG}, {sTAG}, 0x7F4A7C15")
    st(28, "x issued")
    a(";@assume_drained")
    for o in Wops(0)[:3]: emitW(o)
    a("s_waitcnt vmcnt(21)")
    weave(a, lines_of(mod1_compute), Wops(0)[3:] + Wops(1), emitW, start=8)
    st(1, "mod pub")
    wo_dma(a)
    a(";@touch m0 m1\n;@mark m0")
    a("s_waitcnt vmcnt(12)\ns_barrier")
    st(29, "x landed")
    for k in range(5):
        if k == 4: a(f"s_cmp_ge_u32 {sW}, 2\ns_cbranch_scc0 L_xz")
        for r in range(5):
            ad, off = ("v18", r*HRT) if r < 3 else ("v19", (r-3)*HRT)
            a(f"ds_read_b128 {vr(R1(r,k))}, {ad} offset:{off + 2048*k}")
    a("L_xz:")
    wo_tr(a)
    a("s_waitcnt lgkmcnt(0)\ns_barrier")
    st(2, "x read")
    def stage(s):
        fs('stg', f'pre{s}') if s < 6 else None
        vm.wait(f'W{s}')
        fs('stg', f'landed{s}') if s < 6 else None
        a("s_waitcnt lgkmcnt(0)\ns_barrier")
        fs('stg', f'bar{s}') if s < 6 else None
        for o in w_tr_ops(s): a(o)
    sa = lines_of(ln_stats_a, 5, R1, 120, 24, ST1)
    weave(a, sa[:26], Wops(2) + Wops(3)[:2], emitW)
    stage(0)
    weave(a, sa[26:], Wops(3)[2:] + Wops(4)[:4], emitW)
    stage(1)
    weave(a, lines_of(ln_stats_b, 5, 24, ST1), Wops(4)[4:] + Wops(5), emitW)
    stage(2)
    ln_stats_c(a, 5, 64)
    mod2_issue(a, vm)
    for o in Wops(6): emitW(o)
    stage(3)
    mod2(a, vm)
    sd = lines_of(ln_stats_d, 5, 64, 104)
    weave(a, sd[:55], Wops(7) + Wops(8), emitW)
    stage(4)
    weave(a, sd[55:], Wops(9), emitW)
    st(3, "ln1 stats")
    a(";@touch m1 m2")
    dec = lines_of(ffn_decode)
    for s in range(5, 12):
        stage(s)
        if s <= 8:
            for o in Wops(s + 5): emitW(o)
        if s == 9:
            for l in dec: a(l)
        if s == 10: poll_mod4_issue(a, vm)
    vm.wait('W13')
    a("s_waitcnt lgkmcnt(0)\ns_barrier")
    for o in w_tr_ops(12) + w_tr_ops(13): a(o)
    a(f"""s_lshl_b32 s4, s88, 10
    v_add_u32 v18, s4, v21
    v_add_u32 v19, {3*HRT}, v18""")
    st(4, "W staged")
    poll_mod4(a, vm)
    early_flags(a)
    vm.q = []
    a("s_waitcnt lgkmcnt(0)\ns_barrier")
    st(5, "mod in")
    wq = Wops(14) + Wops(15)
    def wdma(r, k):
        if wq and (5*k + r) % 3 != 2: emitW(wq.pop(0))
    ln_apply(a, 5, R1, 104, f"s_cmp_ge_u32 {sW}, 2", "m1", wdma)
    assert not wq
    vm.wait('W15')
    a("s_barrier")
    st(6, "h1 done"); cstamp(a, 43, stamps)
    a(";@fork g")
    for w in range(4):
        if w: a(f";@restore g\nL_g{w}:")
        if w < 3: a(f"s_cmp_eq_u32 {sW}, {w}\ns_cbranch_scc0 L_g{w+1}")
        vm.q = []
        jobs = qkv_gemm4(a, vm, w, stamps)
        st(7, "qkv gemm"); cstamp(a, 44, stamps)
        a("s_barrier")
        rec_write(a, jobs)
        if w < 3: a("s_branch L_gE")
    a("L_gE:\n;@assume_drained")
    vm.q = []
    a("s_waitcnt lgkmcnt(0)\ns_barrier")
    st(8, "rec done")
    a(";@mark m1")
    if WOPF:
        a(f"""s_lshr_b32 s4, {sB}, 3
        s_and_b32 s5, s4, 7
        s_lshr_b32 s4, s4, 3
        s_lshl_b32 s4, s4, 2
        s_add_u32 s4, s4, {sW}
        s_mul_i32 s4, s4, {45*128}
        s_mul_i32 s5, s5, {90*1024}
        s_add_u32 s4, s4, s5
        s_add_u32 s4, s4, {WO_SW}
        v_min_u32 v4, 44, {vL}
        v_lshlrev_b32 v4, 7, v4
        buffer_load_dword v255, v4, {SWS}, s4 offen sc1 ;@uncounted""")
    P1.attention(a)
    a("s_waitcnt lgkmcnt(0)\ns_barrier")
    st(9, "attn done")
    P1.o_store(a, SC1)
    a(f"""s_lshl_b32 s22, {sI}, 5
    s_lshl_b32 s23, {sJ}, 2
    s_add_u32 s22, s22, s23
    s_add_u32 s22, s22, {F_O}""")
    map_M(a)
    rd = z_tr(a)
    a("s_waitcnt vmcnt(0)\ns_barrier")
    flag_store(a, vm, ["s22"])
    st(10, "o pub")
    fs('p2', 'pub')
    for o in rd: a(o)
    for k in range(4): a(f"s_mov_b32 s{ZD[2*k]}, {DST(k)}\ns_mov_b32 s{ZD[2*k+1]}, {TYP(k)}")
    fill = wo_dma_fillers()
    a(fill.pop(0))
    a("s_waitcnt lgkmcnt(0)")
    fs('p2', 'ztr')
    a("s_barrier")
    fs('p2', 'bar')
    for o in fill: vm.issue(o, 'wo')
    fs('p2', 'wo issued')
    P2.p2_side_loads(a, vm, SC1)
    fs('p2', 'side')
    for o in z_store_ops(0): vm.issue(o, 'sw')
    fs('p2', 'zst')
    a(f"s_lshl_b32 s22, {sI}, 5\ns_add_u32 s22, s22, {F_O}")
    smem_poll8(a, "po", "s22")
    fs('p2', 'polled')
    vm.wait('wo')
    fs('p2', 'wo landed')
    a("s_barrier")
    fs('p2', 'bar2')
    st(11, "o flags")
    P2.p2_o_loads(a, vm, SC1)
    fs('p2', 'o issued')
    if V3.DIAG == 'p2': vm.wait('o17'); fs('p2', 'o landed')
    p2_gemm(a, vm)
    fs('p2', 'gemm')
    st(12, "wo gemm")
    P2.p2_epilogue(a, vm, SC1)
    a(f"""s_lshl_b32 s22, {sI}, 5
    s_lshl_b32 s23, {sJ}, 2
    s_add_u32 s22, s22, s23
    s_add_u32 s22, s22, {F_X}
    s_and_b32 s23, {sB}, 7
    s_lshl_b32 s23, s23, 5
    s_lshr_b32 s24, {sB}, 3
    s_add_u32 s23, s23, s24
    s_lshl_b32 s23, s23, 7
    s_add_u32 s10, s23, {F_S}
    s_add_u32 s93, s10, 32768""")
    map_F(a)
    fs('p2', 'epi')
    vm.drain()
    fs('p2', 'drain')
    a("s_barrier")
    flag_store(a, vm, ["s22", "s10"])
    st(13, "x1 pub")
    a(";@mark m2")
    a(f"s_lshl_b32 s91, {sI}, 5\ns_add_u32 s91, s91, {F_X}")
    a(f"""s_lshl_b32 s88, {sW}, 10
    s_add_u32 m0, s88, {MV2}
    s_add_u32 s88, s88, {MOD + 6912}""")
    vm.issue(f"buffer_load_dwordx4 v21, {SWS}, s88 offen sc1 lds", 'mv')
    a(f"s_mov_b32 m0, {MV2 + 4096}\ns_mov_b32 s88, {MOD + 6912 + 4096}")
    vm.issue(f"buffer_load_dwordx4 v21, {SWS}, s88 offen sc1 lds", 'mv')
    p3_setup(a)
    a(f"s_cmp_eq_u32 {sW}, 2\ns_cbranch_scc0 L_ps0_skip\nv_mov_b32 v202, v23\nv_and_b32 v23, 31, {vL}\nv_lshlrev_b32 v23, 7, v23\nbuffer_load_dword v6, v23, {SWS}, s92 offen sc1 ;@uncounted\ns_waitcnt vmcnt(0)")
    poll2_check(a, "ps0", "s92")
    a("v_mov_b32 v23, v202\nL_ps0_skip:")
    fs('p2', 'setup+ps0')
    a(";@touch m2 m3")
    fs('p2', 'touch')
    smem_poll8(a, "px", "s91")
    fs('p2', 'px')
    a("s_waitcnt vmcnt(0)\ns_barrier")
    vm.q = []
    st(14, "x1 flags")
    V2.x1_loads(a, vm)
    RG.reset(); NEXT[0] = 0
    RG.checked.update(('ps2', 'ps3'))
    RG.add([96 + 4*k for k in range(12)])
    while stream_next(vm): pass
    for r in range(4): a(f"v_mov_b32 v{92+r}, 0x3f803f80")
    vm.wait('x1')
    st(15, "x1 landed")
    zs = [('sw', o) for k in (1, 2, 3) for o in z_store_ops(k)]
    weave(a, lines_of(ln_stats_a, 4, R2, 92, 24, ST2), zs[:6], emitW)
    ln_stats_b(a, 4, 24, ST2)
    a("s_waitcnt lgkmcnt(0)\ns_barrier")
    ln_stats_c(a, 4, 56)
    for o in zs[6:8]: emitW(o)
    a("s_waitcnt lgkmcnt(0)")
    weave(a, lines_of(ln_stats_d, 4, 56, 88), zs[8:], emitW)
    st(16, "ln2 stats")
    def refill(r, k):
        RG.add([R2(r, k)]); stream_next(vm)
    ln_apply(a, 4, R2, 88, f"s_cmp_lt_u32 {sW}, 2", "m2", refill)
    st(17, "ln2 main")
    RG.add([R2(r, 4) for r in range(4)])
    while stream_next(vm): pass
    a(f"""s_and_b32 s88, {sW}, 1
    s_lshl_b32 s88, s88, 3
    s_lshr_b32 s89, {sW}, 1
    s_lshl_b32 s89, s89, 10
    s_add_u32 s88, s88, s89
    s_add_u32 s88, s88, {HH}
    v_add_u32 v18, s88, v21
    v_add_u32 v19, {3*HRT}, v18
    v_and_b32 v23, 31, {vL}
    v_lshlrev_b32 v23, 7, v23
    s_barrier""")
    st(18, "ln2 bar"); cstamp(a, 40, stamps)
    ex = {}; hard = {}
    def add(t, s, ops): ex.setdefault((t, s), []).extend(ops)
    def addh(t, s, f): hard.setdefault((t, s), []).append(f)
    add(0, 7, [lambda: vm.wait('sw'), (slot_flag_op(1), 'fl')])
    addh(1, 2, lambda: vm.issue(f"s_add_u32 s92, s92, 32768\nbuffer_load_dword v6, v23, {SWS}, s92 offen sc1", 'ps1'))
    addh(2, 0, lambda: (vm.wait('ps1'), poll2_check(a, "ps1", "s92"), RG.checked.add('ps1')))
    gemm1(a, vm, ex, hard, stamps)
    a("s_barrier")
    st(19, "gemm1"); cstamp(a, 41, stamps)
    ex = {}; hard = {}
    extra_slots = [64 + 4*k for k in range(6)]
    RG.add(extra_slots)
    addh(3, 0, lambda: (RG.retire.update(extra_slots), [RG.free.remove(r) for r in extra_slots if r in RG.free]))
    add(5, 12, tail_setup_ops() + ppoll_addr_ops() + piece_base_ops())
    add(6, 14, pflag_addr_ops(0) + [lambda: vm.wait('part3'), (pflag_op(), 'fl')])
    add(7, 10, [(f"buffer_load_dword v15, v13, {SWS}, 0 offen sc1", 'poll1')])
    addh(8, 5, lambda: (vm.wait('poll1'), poll1_check(a, "pq1", "v13", "v15")))
    add(8, 5, piece_load_ops(vm, [1, 2, 3]))
    add(8, 7, pflag_addr_ops(1) + [lambda: vm.wait('part6'), (pflag_op(), 'fl')])
    add(8, 8, p8_load_ops(vm) + sel_ops())
    add(8, 16, [(f"buffer_load_dword v15, v14, {SWS}, 0 offen sc1", 'poll2')])
    gemm2(a, vm, ex, hard, stamps)
    st(20, "gemm2"); cstamp(a, 42, stamps)
    tail(a, vm, stamps, st)
    a(";@mark m3")
    finish_kernel(a, vm, st, stamps, dbg)
    return file_text("; adaLN block (sliding dilated attention + gated FFN), one persistent launch\n",
                     [dict(name=KNAME, body=align8(a.finish(), (1 << 30) if TOUCH else None, nl=NL), vgpr=256, agpr=256, sgpr=102, grid=256, block=256, lds=163840)])

def finish_kernel(a, vm, st, stamps, dbg):
    a(f"""s_cmp_eq_u32 {sB}, 0
    s_cselect_b32 s4, {sW}, 1
    s_cmp_eq_u32 s4, 0
    s_cbranch_scc0 L_noep
    v_mov_b32 v4, {sTAG}
    s_mov_b32 s4, {EPOCH}
    s_mov_b64 exec, 1
    buffer_store_dword v4, off, {SWS}, s4 sc1
    s_mov_b64 exec, -1
    L_noep:""")
    if stamps: vm.drain()
    st(21, "end")
    stamp_flush(a, 0, 64, stamps)
    if dbg:
        a(f"""s_cmp_eq_u32 {sB}, {dbg[0]}
        s_cselect_b32 s4, {sW}, 1
        s_cmp_eq_u32 s4, 0
        s_cbranch_scc0 L_nodbg
        s_load_dwordx2 s[72:73], s[0:1], 80
        s_mov_b32 s74, 256
        s_mov_b32 s75, 0x20000
        v_readlane_b32 s4, v0, 0
        s_waitcnt lgkmcnt(0)""")
        for n, k in enumerate(dbg[1]):
            a(f"v_readlane_b32 s5, v0, {k}\ns_sub_u32 s5, s5, s4\nv_mov_b32 v4, s5\ns_mov_b32 s6, {4*n}\ns_mov_b64 exec, 1\nbuffer_store_dword v4, off, s[72:75], s6\ns_mov_b64 exec, -1")
        a("L_nodbg:")
    a("L_end:\ns_endpgm")

if __name__ == "__main__":
    if len(sys.argv) > 2:
        open(sys.argv[1], "w").write(build(True, (int(sys.argv[2]), [int(x) for x in sys.argv[3].split(",")])))
    else:
        open(sys.argv[1], "w").write(build())
```

```python
import sys, re
from gen_v4 import *
import gen_v4 as V4
import gen_v3 as V3

WQ_SW = 0x3400000
F_Q = FLAGS + 0x100000
QSLOT = 98304
sJQ = "s94"

def q_duty_issue(a):
    a(f"""s_mul_i32 {sJQ}, {sB}, 57
    s_lshr_b32 {sJQ}, {sJQ}, 10
    s_min_u32 {sJQ}, {sJQ}, 7
    s_cmp_lt_u32 {sB}, 144
    s_cbranch_scc0 L_mduty
    s_mul_i32 s6, {sJQ}, 18
    s_sub_u32 s6, {sB}, s6
    s_mul_i32 s6, s6, 110592""")
    for l in lines_of(w_setup): a(l.replace(sJ, sJQ))
    for seg in range(3):
        for h in range(2):
            a(f"s_add_u32 m0, s84, {QSLOT + seg*8192 + h*1024}\ns_add_u32 s4, s6, {h*4*3456 + seg*1152}\nbuffer_load_dwordx4 v9, {SQKV}, s4 offen lds")
    a(f"""s_branch L_dutyE
    L_mduty:
    s_sub_u32 s4, {sB}, 144
    s_cmp_ge_u32 s4, 54
    s_cselect_b32 s5, 54, 0
    s_cselect_b32 s6, 4, 0
    s_sub_u32 s5, s4, s5
    s_add_u32 s6, s6, {sW}
    s_lshl_b32 s93, s5, 3
    s_add_u32 s93, s93, s6
    s_lshl_b32 s93, s93, 9
    s_add_u32 s93, s93, {PARTM}
    s_cmp_lt_u32 {sB}, 252
    s_cselect_b32 s93, s93, 0x7ff00000
    s_cselect_b32 s4, 0, 0x7ff00000
    s_mul_i32 s6, s6, 72
    v_lshrrev_b32 v4, 3, {vL}
    v_mul_u32_u24 v5, 9, v4
    v_add_u32 v5, s6, v5
    v_lshlrev_b32 v17, 1, v5
    v_and_b32 v17, -4, v17
    v_mul_u32_u24 v16, 6912, v5
    v_and_b32 v5, 7, {vL}
    v_lshl_add_u32 v16, v5, 4, v16
    s_lshl_b32 s5, s5, 7
    s_add_u32 s5, s5, s4
    v_add_u32 v16, s5, v16
    v_add_u32 v17, s4, v17
    buffer_load_dwordx4 v[232:235], v17, {SC}, 0 offen
    buffer_load_dword v236, v17, {SC}, 0 offen offset:16""")
    for t in range(9):
        a(f"s_mov_b32 s4, {6912*t}\nbuffer_load_dwordx4 {vr(48+4*t)}, v16, {SMOD}, s4 offen")
    a("L_dutyE:")

def tile_regs(a):
    w = [sum((T if T is not None else 0xff) << (8*n) for n, T in enumerate(TILES[x] + [None]*(4-len(TILES[x])))) for x in range(4)]
    a(f"s_mov_b32 s22, {w[0]}")
    for x in range(1, 4): a(f"s_cmp_eq_u32 {sW}, {x}\ns_cselect_b32 s22, {w[x]}, s22")
    for n in range(4):
        a(f"s_bfe_u32 s23, s22, {(8 << 16) | (8*n)}\ns_lshl_b32 s23, s23, 10\ns_cmp_gt_u32 s23, 0x10000\ns_cselect_b32 s23, 0x7ff00000, s23\nv_add_u32 v{10+n}, s23, v21")

def tr_setup5(a):
    for l in lines_of(tr_setup):
        if re.match(r"v_add_u32 v1[4-7], 73728", l): continue
        l = l.replace(f"v_add_u32 v4, {sJ}, v4", f"v_add_u32 v4, {sJQ}, v4")
        m = re.match(r"v_lshl_add_u32 v1([0-3]), v5, 13, v4", l)
        if m:
            r = 44 + int(m.group(1))
            l = f"v_lshl_add_u32 v{r}, v5, 13, v4\nv_add_u32 v{r}, 65536, v{r}"
        a(l)

def duty_finish(a):
    a(f"""s_cmp_lt_u32 {sB}, 144
    s_cbranch_scc0 L_mfin
    s_waitcnt vmcnt(18)
    s_barrier""")
    for tau in range(4):
        for hf in range(2):
            a(f"ds_read_b64_tr_b16 {vr(24+4*tau+2*hf,2)}, v{44+tau} offset:{QSLOT - 65536 + 1024*hf}")
    a(f"s_mul_i32 s22, {sB}, 14336\ns_add_u32 s22, s22, {WQ_SW}")
    for tau in range(4):
        a(f"s_waitcnt lgkmcnt({6 - 2*tau})\nbuffer_store_dwordx4 {vr(24+4*tau)}, v{10+tau}, {SWS}, s22 offen sc1 ;@uncounted")
    a("s_branch L_finE\nL_mfin:\ns_waitcnt vmcnt(18)")
    a(f"v_lshrrev_b32 v4, 3, {vL}\nv_and_b32 v4, 1, v4\nv_lshlrev_b32 v4, 4, v4")
    for k in range(5): a(f"v_alignbit_b32 v{232+k}, v{232+min(k+1,4)}, v{232+k}, v4")
    for t in range(9):
        a(f"v_lshlrev_b32 v{24+t}, 16, v{232+t//2}" if t % 2 == 0 else f"v_and_b32 v{24+t}, {sMSK}, v{232+t//2}")
    T = range(9); tmp = lambda t: f"v{224+t}"
    a(f"v_mov_b32 v42, {fbits(-LOG2E)}")
    for t in T: a(f"v_mul_f32 {tmp(t)}, v42, v{24+t}")
    for t in T: a(f"v_exp_f32 {tmp(t)}, {tmp(t)}")
    for t in T: a(f"v_add_f32 {tmp(t)}, 1.0, {tmp(t)}")
    for t in T: a(f"v_rcp_f32 {tmp(t)}, {tmp(t)}")
    for t in T: a(f"v_mul_f32 {tmp(t)}, {tmp(t)}, v{24+t}")
    for t in T: a(f"v_cvt_pk_bf16_f32 {tmp(t)}, {tmp(t)}, {tmp(t)}")
    for t in T: a(f"v_and_b32 v{24+t}, {sMSK}, {tmp(t)}")
    for t in T:
        pp = vr(24 + (t & ~1), 2)
        sel = "op_sel:[0,1,0] op_sel_hi:[1,1,1]" if t & 1 else "op_sel:[0,0,0] op_sel_hi:[1,0,1]"
        unpack(a, 96, 48 + 4*t)
        for d in range(4):
            if t == 0: a(f"v_pk_mul_f32 {vr(88+2*d,2)}, {vr(96+2*d,2)}, {pp} op_sel:[0,0] op_sel_hi:[1,0]")
            else: a(f"v_pk_fma_f32 {vr(88+2*d,2)}, {vr(96+2*d,2)}, {pp}, {vr(88+2*d,2)} {sel}")
    for e in range(4): a(f"v_permlane32_swap_b32 v{88+e}, v{92+e}")
    for e in range(4): a(f"v_add_f32 v{88+e}, v{88+e}, v{92+e}")
    for e in range(2): a(f"v_permlane16_swap_b32 v{88+e}, v{90+e}")
    for e in range(2): a(f"v_add_f32 v{88+e}, v{88+e}, v{90+e}")
    a(f"""v_and_b32 v4, 8, {vL}
    v_cmp_eq_u32 vcc, 0, v4
    v_cndmask_b32 v90, v89, v88, vcc
    v_cndmask_b32 v91, v88, v89, vcc
    v_add_f32_dpp v90, v91, v90 row_ror:8 row_mask:0xf bank_mask:0xf
    v_mov_b32 v91, {sTAG}
    v_and_b32 v4, 7, {vL}
    v_lshrrev_b32 v5, 3, {vL}
    v_lshl_add_u32 v4, v4, 3, v5
    v_lshlrev_b32 v4, 3, v4
    buffer_store_dwordx2 v[90:91], v4, {SWS}, s93 offen sc1 ;@uncounted
    L_finE:""")

def mod2_5(a):
    a(f"""s_cmp_lt_u32 {sB}, 54
    s_cselect_b32 s4, {sW}, 0
    s_cmp_eq_u32 s4, 1
    s_cbranch_scc0 L_nomod2
    s_lshl_b32 s22, {sB}, 12
    s_add_u32 s22, s22, {PARTM}
    v_lshlrev_b32 v7, 3, {vL}
    s_mov_b32 s89, 0
    L_m2:""")
    for p in range(8):
        a(f"buffer_load_dwordx2 {vr(224+2*p,2)}, v7, {SWS}, s22 offen offset:{512*p} sc1 ;@uncounted")
    a(f"""s_add_u32 s89, s89, 1
    s_cmp_gt_u32 s89, {POLL_MAX}
    s_cbranch_scc1 L_m2_to
    s_waitcnt vmcnt(0)""")
    for p in range(8): a(f"v_xor_b32 v{225+2*p}, {sTAG}, v{225+2*p}")
    for p in range(1, 7, 2): a(f"v_or3_b32 v225, v225, v{225+2*p}, v{227+2*p}")
    a(f"""v_or_b32 v225, v225, v239
    v_cmp_ne_u32 vcc, 0, v225
    s_cbranch_vccnz L_m2
    L_m2_to:
    s_waitcnt vmcnt(0)""")
    for st in (1, 2, 4):
        for p in range(0, 8, 2*st): a(f"v_add_f32 v{224+2*p}, v{224+2*p}, v{224+2*(p+st)}")
    ls = lines_of(mod_compute)
    i = next(k for k, l in enumerate(ls) if l.startswith("v_cvt_pk_bf16_f32 v24, v24, v24"))
    a(f"""s_mul_i32 s4, {sB}, 57
    s_lshr_b32 s4, s4, 9
    s_cmp_eq_u32 s4, 1
    s_cselect_b32 s5, 1, 0
    s_cmp_eq_u32 s4, 4
    s_cselect_b32 s5, 1, s5
    s_cmp_eq_u32 s5, 1
    s_cselect_b64 vcc, -1, 0
    v_lshlrev_b32 v4, 2, {vL}""")
    for l in ls[i:]: a(l.replace("v24", "v224").replace("v25", "v225").replace("v[24:25]", "v[224:225]"))

sWB = "s84"
def wq_ops(sig, ntile=4):
    ops = []
    for tau in range(ntile):
        pre = ""
        if tau == 0:
            if sig: pre = f"s_add_u32 {sWR}, {sWR}, 14336\ns_cmp_eq_u32 {sWR}, {18*14336}\ns_cselect_b32 {sWR}, 0, {sWR}\n"
            pre += f"s_add_u32 s4, {sWB}, {sWR}\n"
        ops.append((f'W{sig}', pre + f"buffer_load_dwordx4 {wfrag(tau, sig)}, v{10+tau}, {SWS}, s4 offen"))
    return ops

def qkv_gemm5(a, vm, w, npre):
    nt = 4 if w < 2 else 3
    units = [(t, rt) for rt in range(5) for t in range(4) if t < 2 or rt > 0] if w < 2 else [(t, rt) for rt in range(5) for t in range(3)]
    rf, jobs = rec_fillers(w)
    pw = [f"s_and_b32 s5, {sB}, 63\ns_lshr_b32 s5, s5, 3", f"s_mul_i32 s5, s5, 72\ns_add_u32 s5, s5, {F_W - 36*4}",
          f"v_min_u32 v160, 53, {vL}", "v_lshlrev_b32 v160, 2, v160", f"v_add_u32 v4, {F_M}, v160", "v_add_u32 v160, s5, v160",
          f"v_cmp_gt_u32 vcc, 36, {vL}\nv_cndmask_b32 v160, v160, v4, vcc"]
    misc = pw + ffn_prep_fillers() + rf
    ffn = []
    for k in range(4): ffn += ffn_slot_fillers(k)
    def rd(s, rt):
        ad, off = ("v21", rt*HRT) if rt < 3 else ("v22", (rt-3)*HRT)
        return f"ds_read_b128 {vr(BB1(s, rt))}, {ad} offset:{off + s*1024}"
    for rt in range(5): a(rd(0, rt))
    for s in range(18):
        a("s_waitcnt lgkmcnt(0)")
        vm.wait(f'W{s}')
        if s == 17:
            vm.wait('pw')
            poll1_check(a, f"pw{w}", "v160", "v7")
        nxt = [rd(s+1, rt) for rt in range(5)] if s < 17 else []
        here = wq_ops(s + npre, nt) if s + npre < 18 else []
        if s == 18 - npre: here = [('pw', f"buffer_load_dword v7, v160, {SWS}, 0 offen sc1")]
        ndma = 0
        for n, (tau, rt) in enumerate(units):
            acc = vr(ACC1(tau, rt))
            a(f"v_mfma_f32_16x16x32_bf16 {acc}, {wfrag(tau, s)}, {vr(BB1(s, rt))}, {acc if s else 0}")
            if nxt and n % 3 == 0: a(nxt.pop(0))
            elif here and n % 3 == 1 and (n % 6 == 1 or len(here) > (len(units) - n) // 6):
                o = here.pop(0); vm.issue(o[1], o[0])
            elif s + npre >= 18 and ffn and not (isinstance(ffn[0], tuple) and (ndma >= 2 or n % 5 not in (1, 2, 4))):
                o = ffn.pop(0)
                if isinstance(o, tuple): vm.issue(o[1], o[0]); ndma += 1
                else: a(o)
            elif misc: a(misc.pop(0))
        assert not nxt and not here, (s, nxt, here)
    assert not misc and not ffn, (len(misc), len(ffn))
    return jobs

def smem_issue(a, soff, wave=1):
    Lb = a.label("L_si")
    a(f"""s_add_u32 s86, s64, {soff}
    s_addc_u32 s87, s65, 0
    s_cmp_eq_u32 {sW}, {wave}
    s_cbranch_scc0 {Lb}
    s_load_dwordx8 s[52:59], s[86:87], 0 glc
    {Lb}:""")
def smem_check(a, name, wave=1):
    a(f"""s_cmp_eq_u32 {sW}, {wave}
    s_cbranch_scc0 L_{name}_skip
    s_mov_b32 s89, 0
    s_branch L_{name}_chk
    ;@assume_drained_lg
    L_{name}:
    s_load_dwordx8 s[52:59], s[86:87], 0 glc
    s_add_u32 s89, s89, 1
    s_cmp_gt_u32 s89, {POLL_MAX}
    s_cbranch_scc1 L_{name}_to
    L_{name}_chk:
    s_waitcnt lgkmcnt(0)""")
    for k in range(8): a(f"s_xor_b32 s{52+k}, s{52+k}, {sTAG}")
    for st in (1, 2, 4):
        for k in range(0, 8, 2*st): a(f"s_or_b32 s{52+k}, s{52+k}, s{52+k+st}")
    a(f"s_cbranch_scc1 L_{name}\nL_{name}_to:\ns_waitcnt lgkmcnt(0)\nL_{name}_skip:")

def p2_gemm5(a, vm, fill):
    a(f"v_add_u32 v22, {P2.WOB}, v21\nv_add_u32 v23, {P2.WOB + 3*18432}, v21")
    def rd(s, t):
        ad, off = ("v22", t*18432) if t < 3 else ("v23", (t-3)*18432)
        return f"ds_read_b128 {vr(152 + 20*(s%3) + 4*t)}, {ad} offset:{off + s*1024}"
    for s in range(2):
        for t in range(5): a(rd(s, t))
    for s in range(18):
        a(f"s_waitcnt lgkmcnt({5 if s < 17 else 0})")
        vm.wait(f'o{s}')
        for t in range(5):
            acc = vr(56 + 4*t)
            a(f"v_mfma_f32_16x16x32_bf16 {acc}, {vr(152 + 20*(s%3) + 4*t)}, {vr(80+4*s)}, {acc if s else 0}")
            if s + 2 < 18: a(rd(s+2, t))
            if t in (1, 3) and fill and (t == 1 or fill[0][0].startswith('o')):
                o = fill.pop(0); vm.issue(o[1], o[0])
    assert not fill

NPRE5 = 9
HYB = True
def map3(a):
    if not HYB: return map_F(a)
    a(f"""s_and_b32 s4, {sB}, 1
    s_lshl_b32 {sI}, s4, 4
    s_lshr_b32 s4, {sB}, 4
    s_add_u32 {sI}, {sI}, s4
    s_and_b32 {sJ}, {sB}, 6
    s_bfe_u32 s4, {sB}, 0x10003
    s_add_u32 {sJ}, {sJ}, s4""")

def x1_loads5(a, vm):
    a(f"""s_lshl_b32 s88, {sI}, 2
    s_mul_i32 s88, s88, {HRT}
    s_lshl_b32 s89, {sW}, 10
    s_add_u32 s88, s88, s89
    s_add_u32 s88, s88, {X1}
    s_bfe_u32 s89, {sB}, 0x10003
    s_mul_i32 s89, s89, {2*HRT if HYB else 0}
    s_add_u32 s22, s88, s89
    s_add_u32 s23, s88, {2*HRT}
    s_sub_u32 s23, s23, s89
    v_add_u32 v19, {2*HRT}, v18
    v_subrev_u32 v19, s89, v19
    v_add_u32 v18, s89, v18""")
    for r in range(4):
        b = "s22" if r < 2 else "s23"
        if r & 1: a(f"s_add_u32 {b}, {b}, {HRT}")
        for k in range(5):
            vm.issue(f"buffer_load_dwordx4 {vr(R2(r,k))}, v{8+k if k < 4 else 17}, {SWS}, {b} offen sc1", 'x1')

def side_early(a):
    a(f"""s_and_b32 s22, {sB}, 7
    s_lshl_b32 s22, s22, 2
    s_lshr_b32 s23, {sB}, 6
    s_add_u32 s22, s22, s23
    s_bfe_u32 s24, {sB}, 0x30003
    s_lshl_b32 s4, s22, 6
    s_lshl_b32 s5, {sW}, 4
    s_add_u32 s4, s4, s5
    v_add_u32 v11, s4, {vN}
    v_mul_u32_u24 v11, 1152, v11
    s_mul_i32 s5, s24, 144
    v_add_u32 v11, s5, v11
    v_lshl_add_u32 v23, {vQ}, 4, v11
    v_lshl_add_u32 v11, {vQ}, 3, v11
    s_mul_i32 s25, s24, 288
    s_add_u32 s25, s25, {MOD + 1152*4}
        s_lshl_b32 s26, s23, 2
    s_add_u32 s26, s26, {sW}
    s_mul_i32 s26, s26, {45*128}
    s_mul_i32 s24, s24, {90*1024}
    s_add_u32 s26, s26, s24
    s_add_u32 s26, s26, {WO_SW}
    v_min_u32 v22, 44, {vL}
    v_lshlrev_b32 v22, 7, v22""")
    ops = [f"buffer_load_dword v22, v22, {SWS}, s26 offen sc1",
           f"buffer_load_dwordx4 v[226:229], v23, {SX}, 0 offen", f"buffer_load_dwordx4 v[230:233], v23, {SX}, 0 offen offset:64",
           f"buffer_load_dwordx2 v[234:235], v11, {SX}, 0 offen offset:128"]
    for k in range(4):
        ops.append(("v_lshlrev_b32 v23, 5, {q}\n".format(q=vQ) if k == 0 else "") + f"buffer_load_dwordx4 {vr(236+4*k)}, v23, {SWS}, s25 offen offset:{(k>>1)*128 + (k&1)*16} sc1")
    ops.append(f"v_lshlrev_b32 v23, 4, {vQ}\nbuffer_load_dwordx4 v[252:255], v23, {SWS}, s25 offen offset:256 sc1")
    return [o + " ;@uncounted" for o in ops]

def p2_epilogue5(a, vm):
    t = Asm(); P2.p2_epilogue(t, Vm(t), SC1)
    ren = {**{24+k: 226+k for k in range(10)}, **{36+k: 236+k for k in range(20)}}
    def f(m):
        if m.group(2) is not None:
            lo, hi = int(m.group(2)), int(m.group(3))
            return f"v[{ren.get(lo, lo)}:{ren.get(lo, lo) + hi - lo}]"
        n = int(m.group(1)); return f"v{ren.get(n, n)}"
    for l in t.ins:
        l = re.sub(r'\bv(?:(\d+)|\[(\d+):(\d+)\])', f, l)
        if l.startswith('buffer_'): vm.issue(l)
        else: a(l)
AV1 = lambda tau, rt: 0
def build(stamps=False, dbg=None):
    a = Asm(); vm = Vm(a)
    NAMES.clear(); FINE.clear()
    def st(i, name):
        NAMES[i] = name; stamp(a, i, stamps)
    def fs(group, name):
        if V3.DIAG == group:
            FINE.append(name); cstamp(a, 44 + len(FINE), stamps)
    prologue(a, "L_end", t0=stamps, page=V4.TOUCH)
    if stamps:
        a("v_writelane_b32 v0, s98, 0"); NAMES[0] = "wave start"
    a(f"s_add_u32 s8, s26, {EPOCH}\ns_addc_u32 s9, s27, 0\ns_load_dword {sTAG}, s[8:9], 0")
    map1(a)
    a(f"v_lshlrev_b32 v21, 4, {vL}")
    q_duty_issue(a)
    emit = lambda o: vm.issue(o[1], o[0])
    x_prep(a)
    setup = lines_of(tr_setup5) + lines_of(tile_regs)
    setup += [f"v_mov_b32 v{120+r}, 0x3f803f80" for r in range(4)]
    setup += [f"v_mov_b32 v{R1(r,4)+d}, 0" for r in range(5) for d in range(4)]
    setup = [re.sub(r'\bs([45])\b', lambda m: {'4': 's22', '5': 's23'}[m.group(1)], l) for l in setup]
    a(x_group_base(0))
    g0 = x_group_ops(); g1 = x_group_ops(); g1[0] = x_group_base(1) + "\n" + g1[0]
    weave(a, setup, g0 + g1, a)
    a(f"s_cmp_lt_u32 {sW}, 2\ns_cbranch_scc0 L_x2")
    a(x_group_base(2))
    for o in x_group_ops(): a(o)
    a("L_x2:")
    if V4.CODEPF:
        a(f"""s_cmp_eq_u32 {sW}, 3
        s_cbranch_scc0 L_nopf
        s_getpc_b64 s[22:23]
        L_pc:
        s_sub_u32 s22, s22, L_pc-L_main
        s_subb_u32 s23, s23, 0
        s_lshr_b32 s4, {sB}, 3
        s_lshl_b32 s4, s4, 12
        v_lshlrev_b32 v4, 7, {vL}
        v_add_u32 v4, s4, v4
        s_mov_b32 s5, L_end-L_main
        v_min_u32 v4, s5, v4
        s_mov_b32 exec_hi, 0
        global_load_dword v253, v4, s[22:23] ;@uncounted
        s_mov_b32 exec_hi, -1
        L_nopf:""")
    wo_dma(a)
    a(f"""s_waitcnt lgkmcnt(0)
    s_mul_i32 {sTAG}, {sTAG}, 0x9E3779B1
    s_add_u32 {sTAG}, {sTAG}, 0x7F4A7C15
    s_and_b32 s4, {sI}, 7
    s_mul_i32 {sWR}, s4, {2*14336}
    s_mul_i32 {sWB}, {sJ}, {18*14336}
    s_add_u32 {sWB}, {sWB}, {WQ_SW}
    s_lshl_b32 s6, {sB}, 7
    s_add_u32 s6, s6, {F_Q}
    s_cmp_lt_u32 {sB}, 144
    s_cselect_b32 s6, s6, 0x7ff00000""")
    st(28, "x issued")
    a(";@assume_drained")
    duty_finish(a)
    st(1, "duty done")
    a(";@touch m0 m1\n;@mark m0")
    a("s_waitcnt vmcnt(0)\ns_barrier")
    flag_store(a, vm, ["s6"])
    st(29, "x landed")
    for k in range(5):
        if k == 4: a(f"s_cmp_ge_u32 {sW}, 2\ns_cbranch_scc0 L_xz")
        for r in range(5):
            ad, off = ("v18", r*HRT) if r < 3 else ("v19", (r-3)*HRT)
            a(f"ds_read_b128 {vr(R1(r,k))}, {ad} offset:{off + 2048*k}")
    a("L_xz:")
    wo_tr(a)
    mod2_5(a)
    a(f"""s_mul_i32 s4, {sJ}, {18*128}
    s_add_u32 s4, s4, {F_Q}
    v_min_u32 v8, 17, {vL}
    v_lshlrev_b32 v8, 7, v8
    v_add_u32 v8, s4, v8
    s_waitcnt lgkmcnt(0)""")
    st(2, "x read")
    ln_stats_a(a, 5, R1, 120, 24, ST1)
    ln_stats_b(a, 5, 24, ST1)
    vm.issue(f"buffer_load_dword v9, v8, {SWS}, 0 offen sc1", 'pq')
    a("s_waitcnt lgkmcnt(0)\ns_barrier")
    ln_stats_c(a, 5, 64)
    a(";@touch m1 m2")
    a("s_waitcnt lgkmcnt(0)")
    ln_stats_d(a, 5, 64, 104)
    st(3, "ln1 stats")
    vm.wait('pq'); poll1_check(a, "pq", "v8", "v9")
    poll_mod4_issue(a, vm)
    wq = [o for s in range(NPRE5) for o in wq_ops(s)]
    dec = lines_of(ffn_decode)
    dec = group_scc([re.sub(r'\bs4\b', 's9', l) for l in dec])
    for n in range(12):
        emit(wq.pop(0))
        for l in dec[n*len(dec)//12: (n+1)*len(dec)//12]: a(l)
    a(f"""s_sub_u32 s4, 3, {sW}
    s_lshl_b32 s4, s4, 10
    v_add_u32 v18, s4, v21
    v_add_u32 v19, {3*HRT}, v18""")
    st(4, "W started")
    poll_mod4(a, vm)
    early_flags(a)
    a("s_waitcnt lgkmcnt(0)\ns_barrier")
    st(5, "mod in")
    def wdma(r, k):
        if wq: emit(wq.pop(0))
        if wq and k == 0: emit(wq.pop(0))
    ln_apply(a, 5, R1, 104, f"s_cmp_ge_u32 {sW}, 2", "m1", wdma)
    assert not wq
    a("s_barrier")
    st(6, "h1 done"); cstamp(a, 43, stamps)
    a(";@fork g")
    q0 = list(vm.q)
    for w in range(4):
        if w: a(f";@restore g\nL_g{w}:")
        if w < 3: a(f"s_cmp_eq_u32 {sW}, {w}\ns_cbranch_scc0 L_g{w+1}")
        vm.q = list(q0)
        jobs = qkv_gemm5(a, vm, w, NPRE5)
        st(7, "qkv gemm"); cstamp(a, 44, stamps)
        a("s_barrier")
        rec_write(a, jobs)
        if w < 3: a("s_branch L_gE")
    a("L_gE:\n;@assume_drained")
    vm.q = []
    a("s_waitcnt lgkmcnt(0)\ns_barrier")
    st(8, "rec done")
    a(";@mark m1")
    interleave(a, P1.attention, side_early(a), 30)
    a("s_waitcnt lgkmcnt(0)\ns_barrier")
    st(9, "attn done")
    P1.o_store(a, SC1)
    a(f"""s_lshl_b32 s22, {sI}, 5
    s_lshl_b32 s23, {sJ}, 2
    s_add_u32 s22, s22, s23
    s_add_u32 s22, s22, {F_O}""")
    map_M(a)
    rd = z_tr(a)
    a("s_waitcnt vmcnt(0)\ns_barrier")
    flag_store(a, vm, ["s22"])
    st(10, "o pub")
    fs('p2', 'pub')
    for o in rd: a(o)
    for k in range(4): a(f"s_mov_b32 s{ZD[2*k]}, {DST(k)}\ns_mov_b32 s{ZD[2*k+1]}, {TYP(k)}")
    fill = wo_dma_fillers()
    a(fill.pop(0))
    a(f"s_lshl_b32 s22, {sI}, 5\ns_add_u32 s22, s22, {F_O}")
    a("s_waitcnt lgkmcnt(0)")
    fs('p2', 'ztr')
    a("s_barrier")
    for n, o in enumerate(fill):
        vm.issue(o, 'wo')
        if n == 13: smem_issue(a, "s22")
    fs('p2', 'wo issued')
    smem_check(a, "po")
    fs('p2', 'polled')
    vm.wait('wo')
    a("s_barrier")
    fs('p2', 'bar2')
    st(11, "o flags")
    ol = lines_of(lambda t: P2.p2_o_loads(t, Vm(t), SC1))
    i0 = next(i for i, l in enumerate(ol) if l.startswith('buffer_'))
    for l in ol[:i0]: a(l)
    oops = []; pre = ""
    for l in ol[i0:]:
        if l.startswith('buffer_'): oops.append((f'o{len(oops)}', pre + l)); pre = ""
        else: pre += l + "\n"
    for o in oops[:8]: emit(o)
    fs('p2', 'o issued')
    p2_gemm5(a, vm, oops[8:] + [('sw', o) for o in z_store_ops(0)])
    fs('p2', 'gemm')
    st(12, "wo gemm")
    p2_epilogue5(a, vm)
    a(f"""s_lshl_b32 s22, {sI}, 5
    s_lshl_b32 s23, {sJ}, 2
    s_add_u32 s22, s22, s23
    s_add_u32 s22, s22, {F_X}
    s_and_b32 s23, {sB}, 7
    s_lshl_b32 s23, s23, 5
    s_lshr_b32 s24, {sB}, 3
    s_add_u32 s23, s23, s24
    s_lshl_b32 s23, s23, 7
    s_add_u32 s10, s23, {F_S}
    s_add_u32 s93, s10, 32768""")
    map3(a)
    fs('p2', 'epi')
    vm.drain()
    fs('p2', 'drain')
    a("s_barrier")
    flag_store(a, vm, ["s22", "s10"])
    st(13, "x1 pub")
    a(";@mark m2")
    a(f"s_lshl_b32 s91, {sI}, 5\ns_add_u32 s91, s91, {F_X}")
    a(f"""s_lshl_b32 s88, {sW}, 10
    s_add_u32 m0, s88, {MV2}
    s_add_u32 s88, s88, {MOD + 6912}""")
    vm.issue(f"buffer_load_dwordx4 v21, {SWS}, s88 offen sc1 lds", 'mv')
    a(f"s_mov_b32 m0, {MV2 + 4096}\ns_mov_b32 s88, {MOD + 6912 + 4096}")
    vm.issue(f"buffer_load_dwordx4 v21, {SWS}, s88 offen sc1 lds", 'mv')
    p3_setup(a)
    a(f"v_and_b32 v20, 31, {vL}\nv_lshlrev_b32 v20, 7, v20\nv_add_u32 v20, s92, v20")
    fs('p2', 'setup')
    smem_issue(a, "s91")
    a(";@touch m2 m3 1")
    fs('p2', 'touch')
    smem_check(a, "px")
    fs('p2', 'px')
    a("s_waitcnt vmcnt(0)\ns_barrier")
    vm.q = []
    st(14, "x1 flags")
    x1_loads5(a, vm)
    vm.issue(f"buffer_load_dword v6, v20, {SWS}, 0 offen sc1", 'ps0')
    RG.reset(); NEXT[0] = 0
    RG.checked.update(('ps2', 'ps3'))
    for r in range(4): a(f"v_mov_b32 v{92+r}, 0x3f803f80")
    vm.wait('x1')
    st(15, "x1 landed")
    zs = [('sw', o) for k in (1, 2, 3) for o in z_store_ops(k)]
    sa = lines_of(ln_stats_a, 4, R2, 92, 24, ST2)
    for l in sa[:12]: a(l)
    vm.wait('ps0'); poll1_check(a, "ps0", "v20", "v6")
    RG.add([96 + 4*k for k in range(12)])
    weave(a, sa[12:], list(range(6)), lambda o: stream_next(vm))
    weave(a, lines_of(ln_stats_b, 4, 24, ST2), list(range(2)), lambda o: stream_next(vm))
    a("s_waitcnt lgkmcnt(0)\ns_barrier")
    ln_stats_c(a, 4, 56)
    for k in range(2): stream_next(vm)
    a("s_waitcnt lgkmcnt(0)")
    weave(a, lines_of(ln_stats_d, 4, 56, 88), list(range(2)) + zs[:2], lambda o: stream_next(vm) if isinstance(o, int) else emit(o))
    zs = zs[2:]
    st(16, "ln2 stats")
    def refill(r, k):
        if zs: emit(zs.pop(0))
        RG.add([R2(r, k)])
        if k >= 2 or not zs: stream_next(vm)
    ln_apply(a, 4, R2, 88, f"s_cmp_lt_u32 {sW}, 2", "m2", refill, split=2)
    st(17, "ln2 main")
    RG.add([R2(r, 4) for r in range(4)])
    for k in range(6): stream_next(vm)
    a(f"""s_and_b32 s88, {sW}, 1
    s_lshl_b32 s88, s88, 3
    s_lshr_b32 s89, {sW}, 1
    s_lshl_b32 s89, s89, 10
    s_add_u32 s88, s88, s89
    s_add_u32 s88, s88, {HH}
    v_add_u32 v18, s88, v21
    v_add_u32 v19, {3*HRT}, v18
    v_and_b32 v23, 31, {vL}
    v_lshlrev_b32 v23, 7, v23
    s_barrier""")
    st(18, "ln2 bar"); cstamp(a, 40, stamps)
    ffn_and_tail(a, vm, st, stamps)
    a(";@mark m3")
    finish_kernel(a, vm, st, stamps, dbg)
    return file_text("; adaLN block (sliding dilated attention + gated FFN), one persistent launch\n",
                     [dict(name=KNAME, body=align8(a.finish(), (1 << 30) if V4.TOUCH else None, nl=V4.NL), vgpr=256, agpr=256, sgpr=102, grid=256, block=256, lds=163840)])

def ffn_and_tail(a, vm, st, stamps):
    ex = {}; hard = {}
    def add(t, s, ops): ex.setdefault((t, s), []).extend(ops)
    def addh(t, s, f): hard.setdefault((t, s), []).append(f)
    add(0, 7, [lambda: vm.wait('sw'), (slot_flag_op(1), 'fl')])
    addh(1, 2, lambda: vm.issue(f"s_add_u32 s92, s92, 32768\nbuffer_load_dword v6, v23, {SWS}, s92 offen sc1", 'ps1'))
    addh(2, 0, lambda: (vm.wait('ps1'), poll2_check(a, "ps1", "s92"), RG.checked.add('ps1')))
    gemm1(a, vm, ex, hard, stamps)
    a("s_barrier")
    st(19, "gemm1"); cstamp(a, 41, stamps)
    ex = {}; hard = {}
    extra_slots = [64 + 4*k for k in range(6)]
    RG.add(extra_slots)
    addh(3, 0, lambda: (RG.retire.update(extra_slots), [RG.free.remove(r) for r in extra_slots if r in RG.free]))
    add(5, 12, tail_setup_ops() + ppoll_addr_ops() + piece_base_ops())
    add(6, 14, pflag_addr_ops(0) + [lambda: vm.wait('part3'), (pflag_op(), 'fl')])
    add(7, 10, [(f"buffer_load_dword v15, v13, {SWS}, 0 offen sc1", 'poll1')])
    addh(8, 5, lambda: (vm.wait('poll1'), poll1_check(a, "pq1", "v13", "v15")))
    add(8, 5, piece_load_ops(vm, [1, 2, 3]))
    add(8, 7, pflag_addr_ops(1) + [lambda: vm.wait('part6'), (pflag_op(), 'fl')])
    add(8, 8, p8_load_ops(vm) + sel_ops())
    add(8, 16, [(f"buffer_load_dword v15, v14, {SWS}, 0 offen sc1", 'poll2')])
    gemm2(a, vm, ex, hard, stamps)
    st(20, "gemm2"); cstamp(a, 42, stamps)
    tail(a, vm, stamps, st)

if __name__ == "__main__":
    if len(sys.argv) > 2:
        open(sys.argv[1], "w").write(build(True, (int(sys.argv[2]), [int(x) for x in sys.argv[3].split(",")])))
    else:
        open(sys.argv[1], "w").write(build())
```
